```python
import torch

def _softmax(x, axis=-1):
    return torch.softmax(x, dim=axis)
def _gelu(x):
    return torch.nn.functional.gelu(x, approximate="tanh")
def _silu(x):
    return torch.nn.functional.silu(x)
def _sigmoid(x):
    return torch.sigmoid(x)
def _layernorm(x, axis=-1, eps=1e-5):
    m = x.mean(dim=axis, keepdim=True)
    v = x.var(dim=axis, keepdim=True, unbiased=False)
    return (x - m) / torch.sqrt(v + eps)
def _scatter_add(tgt, idx, src, axis=0):
    return tgt.clone().index_add_(axis, idx, src)
def _segment_sum(src, seg, n):
    out = torch.zeros((n,) + src.shape[1:], dtype=src.dtype)
    return out.index_add_(0, seg, src)
def _pad(x, pw):
    flat = tuple(v for pair in reversed(pw) for v in pair)
    return torch.nn.functional.pad(x, flat)

kernel_name = 'concat_heads__gqa_block_cached__mha_block_cached__near_ridge'

def setup_inputs():

    _w = (lambda a: (lambda t: t.to(torch.bfloat16) if t.is_floating_point() else t)(torch.as_tensor(a)))
    def _A_setup():
        B, Sq, D = 8, 96, 448
        Hq, Hkv, Sk, Dh = 16, 8, 512, 256
        assert Hq % Hkv == 0, (Hq, Hkv)
        return {
            "x": _w((lambda *s: torch.randn(*s, dtype=torch.bfloat16) * 0.8)(B, Sq, D)),
            "k_cache": _w((lambda *s: torch.randn(*s, dtype=torch.bfloat16) * 0.8)(B, Hkv, Sk, Dh)),
            "v_cache": _w((lambda *s: torch.randn(*s, dtype=torch.bfloat16) * 0.05)(B, Hkv, Sk, Dh)),
            "wq": _w((lambda *s: torch.randn(*s, dtype=torch.bfloat16) * 0.8)(D, Hq * Dh) * (D ** -0.5)),
            "wo": _w((lambda *s: torch.randn(*s, dtype=torch.bfloat16) * 0.05)(Hq * Dh, D) * ((Hq * Dh) ** -0.5)),
        }
    _A_in = _A_setup()

    def _B_setup():
        B, Sq, D = 8, 96, 448
        H, Sk, Dh = 16, 512, 256
        return {
            "x": _w((lambda *s: torch.randn(*s, dtype=torch.bfloat16) * 0.8)(B, Sq, D)),
            "k_cache": _w((lambda *s: torch.randn(*s, dtype=torch.bfloat16) * 0.8)(B, H, Sk, Dh)),
            "v_cache": _w((lambda *s: torch.randn(*s, dtype=torch.bfloat16) * 0.05)(B, H, Sk, Dh)),
            "wq": _w((lambda *s: torch.randn(*s, dtype=torch.bfloat16) * 0.8)(D, H * Dh) * (D ** -0.5)),
            "wo": _w((lambda *s: torch.randn(*s, dtype=torch.bfloat16) * 0.05)(H * Dh, D) * ((H * Dh) ** -0.5)),
        }
    _B_in = _B_setup()

    return {
        "A_x": _A_in["x"],
        "A_k_cache": _A_in["k_cache"],
        "A_v_cache": _A_in["v_cache"],
        "A_wq": _A_in["wq"],
        "A_wo": _A_in["wo"],
        "B_x": _B_in["x"],
        "B_k_cache": _B_in["k_cache"],
        "B_v_cache": _B_in["v_cache"],
        "B_wq": _B_in["wq"],
        "B_wo": _B_in["wo"],
    }

def reference(A_x, A_k_cache, A_v_cache, A_wq, A_wo, B_x, B_k_cache, B_v_cache, B_wq, B_wo):
    def _A_ref(x, k_cache, v_cache, wq, wo):
        B, Sq, D = x.shape
        Hq, Dh = 16, 256
        Hkv = k_cache.shape[1]
        rep = Hq // Hkv
        q = (lambda x, *d: x.permute(*d))((x @ wq).reshape(B, Sq, Hq, Dh), 0, 2, 1, 3)
        k = (lambda x, n, axis: torch.repeat_interleave(x, n, dim=axis))(k_cache, rep, axis=1)
        v = (lambda x, n, axis: torch.repeat_interleave(x, n, dim=axis))(v_cache, rep, axis=1)
        scores = torch.einsum("bhqd,bhkd->bhqk", q, k) * (Dh ** -0.5)
        p = _softmax(scores, axis=-1)
        o = torch.einsum("bhqk,bhkd->bhqd", p, v)
        return (lambda x, *d: x.permute(*d))(o, 0, 2, 1, 3).reshape(B, Sq, Hq * Dh) @ wo

    def _B_ref(x, k_cache, v_cache, wq, wo):
        B, Sq, D = x.shape
        H, Dh = 16, 256
        q = (lambda x, *d: x.permute(*d))((x @ wq).reshape(B, Sq, H, Dh), 0, 2, 1, 3)
        scores = torch.einsum("bhqd,bhkd->bhqk", q, k_cache) * (Dh ** -0.5)
        p = _softmax(scores, axis=-1)
        o = torch.einsum("bhqk,bhkd->bhqd", p, v_cache)
        return (lambda x, *d: x.permute(*d))(o, 0, 2, 1, 3).reshape(B, Sq, H * Dh) @ wo

    a = _A_ref(A_x, A_k_cache, A_v_cache, A_wq, A_wo)
    b = _B_ref(B_x, B_k_cache, B_v_cache, B_wq, B_wo)
    return torch.concatenate([a, b], axis=-1)
```

```python
import re

REG_RE = re.compile(r'(?<![\w.])([vas])\[(\d+):(\d+)\]|(?<![\w.])([vas])(\d+)(?![\w\[])')

def regs_of(op):
    out = []
    for m in REG_RE.finditer(op):
        if m.group(1):
            out += [(m.group(1), i) for i in range(int(m.group(2)), int(m.group(3)) + 1)]
        else:
            out.append((m.group(4), int(m.group(5))))
    if re.search(r'\bvcc\b', op): out.append(('x', 'vcc'))
    if re.search(r'\bm0\b', op): out.append(('x', 'm0'))
    if re.search(r'\bexec\b', op): out.append(('x', 'exec'))
    return out

TRANS = ('v_exp_f32', 'v_log_f32', 'v_rcp_f32', 'v_rsq_f32', 'v_sqrt_f32', 'v_sin_f32', 'v_cos_f32')

class Ins:
    __slots__ = ('text', 'mn', 'kind', 'defs', 'uses', 'tag', 'pre_nop', 'pre_lgkm', 'pre_vm', 'meta', 'passes')
    def __init__(self, text, tag=None, meta=None):
        self.text = text
        self.tag = tag
        self.meta = meta
        self.pre_nop = 0
        self.pre_lgkm = None
        self.pre_vm = None
        self.passes = 0
        t = text.split(';')[0].strip()
        parts = t.split(None, 1)
        self.mn = mn = parts[0] if parts else ''
        ops = [o.strip() for o in parts[1].split(',')] if len(parts) > 1 else []
        self.defs, self.uses = set(), set()
        k = 'other'
        if mn.endswith(':'):
            k = 'label'
        elif mn.startswith('v_mfma'):
            k = 'mfma'
            self.defs = set(regs_of(ops[0]))
            for o in ops[1:]: self.uses |= set(regs_of(o))
            self.passes = 8 if '32x32' in mn else 4
            self.meta = dict(self.meta or {}, A=set(regs_of(ops[1])), B=set(regs_of(ops[2])), C=set(regs_of(ops[3])))
        elif mn.startswith('ds_read'):
            k = 'ds_read'
            self.defs = set(regs_of(ops[0]))
            for o in ops[1:]: self.uses |= set(regs_of(o))
        elif mn.startswith('ds_write'):
            k = 'ds_write'
            for o in ops: self.uses |= set(regs_of(o))
        elif mn.startswith('buffer_load') or mn.startswith('global_load'):
            if re.search(r'\blds\b', t):
                k = 'dma'
                for o in ops: self.uses |= set(regs_of(o))
                self.uses.add(('x', 'm0'))
            else:
                k = 'vload'
                self.defs = set(regs_of(ops[0]))
                for o in ops[1:]: self.uses |= set(regs_of(o))
        elif mn.startswith('buffer_store') or mn.startswith('global_store') or mn.startswith('buffer_atomic') or mn.startswith('global_atomic'):
            k = 'vstore'
            for o in ops: self.uses |= set(regs_of(o))
            if mn.startswith('buffer_store'): self.meta = dict(self.meta or {}, data=set(regs_of(ops[0])))
            elif mn.startswith('global_store'): self.meta = dict(self.meta or {}, data=set(regs_of(ops[1])))
        elif mn.startswith('s_load') or mn.startswith('s_memtime') or mn.startswith('s_memrealtime'):
            k = 'smem'
            self.defs = set(regs_of(ops[0]))
            for o in ops[1:]: self.uses |= set(regs_of(o))
        elif mn in ('s_waitcnt', 's_nop', 's_barrier', 's_endpgm', 's_setprio', 's_sleep'):
            k = mn
        elif mn.startswith('s_cbranch') or mn == 's_branch':
            k = 'branch'
        elif mn.startswith('s_cmp'):
            k = 'salu'
            for o in ops: self.uses |= set(regs_of(o))
        elif mn.startswith('s_'):
            k = 'salu'
            self.defs = set(regs_of(ops[0]))
            for o in ops[1:]: self.uses |= set(regs_of(o))
            if 'saveexec' in mn: self.defs.add(('x', 'exec'))
        elif mn.startswith('v_'):
            k = 'valu'
            if mn.startswith('v_cmp'):
                self.defs = set(regs_of(ops[0]))
                for o in ops[1:]: self.uses |= set(regs_of(o))
            elif mn.startswith('v_permlane') and 'swap' in mn:
                self.defs = set(regs_of(ops[0])) | set(regs_of(ops[1]))
                self.uses = set(self.defs)
            else:
                self.defs = set(regs_of(ops[0]))
                for o in ops[1:]: self.uses |= set(regs_of(o))
                if mn.startswith('v_fmac') or mn.startswith('v_dot2c'): self.uses |= self.defs
                if mn.startswith('v_add_co') or mn.startswith('v_addc_co') or mn.startswith('v_sub_co'):
                    self.defs |= set(regs_of(ops[1]))
                if mn.startswith('v_cndmask') and len(ops) == 3: self.uses.add(('x', 'vcc'))
        self.kind = k

class Marker:
    def __init__(self, what, name=None, back=0):
        self.what, self.name, self.back = what, name, back
        self.n = None
        self.kind = 'marker'

class Loop:
    def __init__(self, label, trips):
        self.label, self.trips, self.body = label, trips, []
        self.kind = 'loop'

class Prog:
    def __init__(self):
        self.items = []
        self.stack = [self.items]
    def e(self, text, tag=None):
        for line in text.split('\n'):
            line = line.strip()
            if not line or line.startswith(';'):
                continue
            self.stack[-1].append(Ins(line, tag))
    def raw(self, ins):
        self.stack[-1].append(ins)
    def group(self, name):
        self.stack[-1].append(Marker('group', name))
    def wait_vm(self, name, back=0):
        self.stack[-1].append(Marker('waitvm', name, back))
    def wait_vm_all(self):
        self.e("s_waitcnt vmcnt(0)")
    def loop_begin(self, label, trips):
        l = Loop(label, trips)
        self.stack[-1].append(l)
        self.stack.append(l.body)
        return l
    def loop_end(self):
        self.stack.pop()

    def trace(self, items=None):
        out = []
        for it in (self.items if items is None else items):
            if it.kind == 'loop':
                for _ in range(it.trips):
                    out += self.trace(it.body)
            else:
                out.append(it)
        return out

    def resolve(self):
        tr = self.trace()
        changed = True
        rounds = 0
        while changed:
            changed = False
            rounds += 1
            assert rounds < 20
            changed |= self._pass_waits(tr)
            changed |= self._pass_hazards(tr)

    def _pass_waits(self, tr):
        changed = False
        lg = []
        vm = []
        inst = {}
        def apply_lg(n):
            del lg[:max(0, len(lg) - n)]
        def apply_vm(n):
            del vm[:max(0, len(vm) - n)]
        for it in tr:
            if it.kind == 'marker':
                if it.what == 'group':
                    inst[it.name] = inst.get(it.name, 0) + 1
                elif it.what == 'waitvm':
                    target = inst.get(it.name, 0) - it.back
                    idx = -1
                    for i, (o, g, n) in enumerate(vm):
                        if g == it.name and n <= target: idx = i
                    need = 63 if idx < 0 else min(63, len(vm) - 1 - idx)
                    if it.n is None or need < it.n:
                        it.n = need; changed = True
                    if it.n < 63: apply_vm(it.n)
                continue
            if it.kind == 'label' or it.kind == 'loop': continue
            if it.kind == 's_waitcnt':
                m = re.search(r'lgkmcnt\((\d+)\)', it.text)
                if m: apply_lg(int(m.group(1)))
                m = re.search(r'vmcnt\((\d+)\)', it.text)
                if m: apply_vm(int(m.group(1)))
                continue
            touched = it.defs | it.uses
            need = None
            for i, o in enumerate(lg):
                if o.kind in ('ds_read', 'smem') and (o.defs & touched):
                    n = 0 if o.kind == 'smem' or any(x.kind == 'smem' for x in lg) else len(lg) - 1 - i
                    need = n if need is None else min(need, n)
            if need is not None:
                need = min(need, 15)
                if it.pre_lgkm is None or need < it.pre_lgkm:
                    it.pre_lgkm = need; changed = True
            if it.pre_lgkm is not None: apply_lg(it.pre_lgkm)
            need = None
            for i, (o, g, n) in enumerate(vm):
                if o.kind == 'vload' and (o.defs & touched):
                    k = len(vm) - 1 - i
                    need = k if need is None else min(need, k)
            if need is not None:
                need = min(need, 63)
                if it.pre_vm is None or need < it.pre_vm:
                    it.pre_vm = need; changed = True
            if it.pre_vm is not None: apply_vm(it.pre_vm)
            if it.kind in ('ds_read', 'ds_write', 'smem'):
                lg.append(it)
            if it.kind in ('dma', 'vload', 'vstore'):
                vm.append((it, it.tag, inst.get(it.tag, 0)))
                assert len(vm) <= 63, "more than 63 outstanding vmem ops at: " + it.text
        return changed

    def _pass_hazards(self, tr):
        changed = False
        hist = []
        slot = 0
        last = {}
        mfma_w = {}
        mfma_c = {}
        valu_w = {}
        trans_w = {}
        valu_sw = {}
        m0_w = -100
        store_data = {}
        exec_w = -100
        for it in tr:
            if it.kind in ('marker', 'label', 'loop'): continue
            req = 0
            def need(producer_slot, ws):
                nonlocal req
                req = max(req, producer_slot + 1 + ws)
            k = it.kind
            if k == 'mfma':
                for r in it.uses:
                    if r in valu_w: need(valu_w[r], 2)
                AB = it.meta['A'] | it.meta['B']
                for r in AB:
                    if r in mfma_w:
                        s, p, d = mfma_w[r]; need(s, {4: 8, 8: 12}[p])
                C = it.meta['C']
                for r in C:
                    if r in mfma_w:
                        s, p, d = mfma_w[r]
                        if d == frozenset(C) and p == it.passes: pass
                        else: need(s, {4: 6, 8: 10}[p])
                for r in it.defs:
                    if r in mfma_w:
                        s, p, d = mfma_w[r]
                        if not (d == frozenset(it.defs) and p == it.passes): need(s, {4: 8, 8: 12}[p])
                if exec_w > -100: need(exec_w, 4)
            elif k in ('valu', 'ds_read', 'ds_write', 'dma', 'vload', 'vstore'):
                for r in (it.uses | it.defs):
                    if r in mfma_w:
                        s, p, d = mfma_w[r]; need(s, {4: 8, 8: 12}[p])
                if k == 'valu' or k in ('ds_read', 'vload'):
                    for r in it.defs:
                        if r in mfma_c and k == 'valu':
                            s, p = mfma_c[r]; need(s, {4: 3, 8: 7}[p])
                        if r in store_data: need(store_data[r], 2 if k == 'valu' else 1)
                if k == 'valu':
                    if it.mn not in TRANS:
                        for r in it.uses:
                            if r in trans_w: need(trans_w[r], 1)
                    else:
                        for r in it.uses:
                            if r in trans_w: need(trans_w[r], 1)
                    for r in it.uses:
                        if r in valu_sw:
                            need(valu_sw[r], 4 if it.mn.startswith(('v_readlane', 'v_writelane')) else 2)
                    if it.mn.startswith(('v_readfirstlane', 'v_readlane')):
                        for r in it.uses:
                            if r in valu_w: need(valu_w[r], 1)
                    if it.mn.startswith('v_permlane') or 'dpp' in it.text or 'row_' in it.text or 'quad_perm' in it.text:
                        for r in it.uses:
                            if r in valu_w: need(valu_w[r], 2)
                if k in ('dma', 'vload', 'vstore'):
                    for r in it.uses:
                        if r in valu_sw: need(valu_sw[r], 5)
                    if k == 'dma': need(m0_w, 1)
                if k in ('ds_write', 'vstore', 'ds_read', 'dma', 'vload'):
                    for r in it.uses:
                        if r in trans_w: need(trans_w[r], 1)
            elif k == 'salu':
                for r in it.uses:
                    if r in valu_sw: need(valu_sw[r], 4)
            pre = (1 if it.pre_lgkm is not None or it.pre_vm is not None else 0)
            if it.pre_lgkm is not None and it.pre_vm is not None: pre = 1
            have = slot + pre + it.pre_nop
            if req > have:
                it.pre_nop += req - have; changed = True
                have = req
            slot = have
            if k == 'mfma':
                for r in it.defs:
                    mfma_w[r] = (slot, it.passes, frozenset(it.defs)); valu_w.pop(r, None); trans_w.pop(r, None)
                for r in it.meta['C']: mfma_c[r] = (slot, it.passes)
            elif k == 'valu':
                for r in it.defs:
                    if r[0] == 's' or r == ('x', 'vcc'): valu_sw[r] = slot
                    elif r == ('x', 'exec'): exec_w = slot
                    else:
                        valu_w[r] = slot; mfma_w.pop(r, None)
                        if it.mn in TRANS: trans_w[r] = slot
                        else: trans_w.pop(r, None)
            elif k in ('ds_read', 'vload'):
                for r in it.defs:
                    mfma_w.pop(r, None); valu_w.pop(r, None); trans_w.pop(r, None)
            elif k == 'salu':
                for r in it.defs:
                    valu_sw.pop(r, None)
                    if r == ('x', 'm0'): m0_w = slot
            elif k == 'vstore' and it.meta and 'data' in it.meta and ('x4' in it.mn or 'x3' in it.mn):
                for r in it.meta['data']: store_data[r] = slot
            if k == 's_nop':
                n = int(it.text.split()[1]); slot += n + 1
            else:
                slot += 1
        return changed

    def text(self, items=None, out=None):
        top = out is None
        if top: out = []
        for it in (self.items if items is None else items):
            if it.kind == 'loop':
                out.append(it.label + ':')
                self.text(it.body, out)
            elif it.kind == 'marker':
                if it.what == 'waitvm' and it.n is not None and it.n < 63:
                    out.append('s_waitcnt vmcnt(%d)' % it.n)
            else:
                w = []
                if it.pre_vm is not None: w.append('vmcnt(%d)' % it.pre_vm)
                if it.pre_lgkm is not None: w.append('lgkmcnt(%d)' % it.pre_lgkm)
                if w: out.append('s_waitcnt ' + ' '.join(w))
                n = it.pre_nop
                while n > 0:
                    c = min(n, 16); out.append('s_nop %d' % (c - 1)); n -= c
                out.append(it.text)
        if top: return '\n'.join(out)
```

```python
import sys
from asmgen import Prog, Ins

KNAME = "concat_heads__gqa_block_cached__mha_block_cached__near_ridge_kernel"

class Cfg:
    aux_kv = "nt"
    aux_w = ""
    aux_x = ""
    aux_wo = ""
    aux_st = "sc1"
    stamps = False
    rot = True
    k2_wgs = 336
    def __init__(self, **kw):
        for k, v in kw.items():
            assert hasattr(Cfg, k), k
            setattr(self, k, v)

SLOT = [0, 32768, 65536]
XS = [65536, 77824, 147456]
R = 98304
ST = 159744
PART = 86016
TS_OFF = 64 << 20

vLane = 0
vK0, vK1, vV, vW, vX, vWo = 1, 2, 3, 4, 5, 6
vKr0, vKr1 = 7, 8
vVr0, vVr1 = 9, 10
vXr = [11, 12, 13, 14]
vQr = [15, 16, 17, 18]
vPw = 19
vQw = 20
vWor = 21
vStW, vStR = 22, 23
vStO = 24
vM = [25, 26, 27, 28, 29, 30]
vL = [31, 32, 33, 34, 35, 36]
vA0, vA1 = 37, 38
vXa = [39, 40, 41, 42]
vT = list(range(44, 64))
vS = 64

def S(i, t):
    return vS + (i * 6 + t) * 4

s_w = 3
sT0, sSoff, sT1, sT2 = 4, 5, 6, 7
SRD_X, SRD_W, SRD_K, SRD_V, SRD_O, SRD_P = 8, 12, 16, 20, 24, 28
s_c = 32
s_kvb = 33
s_wrb = 34
s_w1k = 35
s_cnt = 60
sWA, sWB, sWC = 61, 62, 63
sXc, sXn, sXnn = 64, 65, 66
s_cc1, s_cc2 = 69, 70
sWoff, sXoff = 67, 68
s_ng, s_ng2, s_slotR, s_slotN, s_slotD, s_stoff, s_stprev, s_wooff = 71, 72, 73, 74, 75, 76, 77, 78
s_b, s_hh, s_h, s_br = 79, 80, 81, 82
s_ts = 84
s_tsoff = 88

def srd(n): return "s[%d:%d]" % (n, n + 3)
def vr(n, c=4): return "v[%d:%d]" % (n, n + c - 1)
def ar(n, c=4): return "a[%d:%d]" % (n, n + c - 1)

def weave(main, fill, lo=0, hi=None):
    if hi is None: hi = len(main)
    out = []
    n = hi - lo
    k = 0
    for i, m in enumerate(main):
        out.append(m)
        if lo <= i < hi:
            tgt = (len(fill) * (i - lo + 1) + n - 1) // n if n > 0 else len(fill)
            tgt = min(len(fill), (len(fill) * (i - lo + 1)) // n + (1 if (len(fill) * (i - lo + 1)) % n and False else 0))
            while k < tgt:
                out.append(fill[k]); k += 1
    while k < len(fill):
        out.append(fill[k]); k += 1
    return out

class K1:
    def __init__(self, cfg):
        self.cfg = cfg
        self.p = Prog()
        self.nstamp = 0

    def emit(self, seq):
        for u in seq:
            if isinstance(u, (list, tuple)):
                self.emit(u)
            elif callable(u):
                u()
            else:
                if isinstance(u, Ins): self.p.raw(u)
                else: self.p.e(u)

    def dma(self, vaddr, srdn, soff, m0, tag, aux):
        u = []
        if isinstance(m0, int): u.append("s_mov_b32 m0, %d" % m0)
        else: u.append("s_add_u32 m0, s%d, %d" % m0 if m0[1] else "s_mov_b32 m0, s%d" % m0[0])
        if isinstance(soff, int): u.append("s_mov_b32 s%d, %d" % (sSoff, soff))
        else: u.append("s_add_u32 s%d, s%d, %d" % (sSoff, soff[0], soff[1]))
        u.append(Ins("buffer_load_dwordx4 v%d, %s, s%d offen %s lds" % (vaddr, srd(srdn), sSoff, aux), tag))
        return u

    def stamp(self):
        if not self.cfg.stamps: return []
        i = self.nstamp; self.nstamp += 1
        t = vT
        return ["s_memrealtime s[86:87]", "s_waitcnt lgkmcnt(0)",
                "v_mov_b32 v%d, s86" % self.vTs, "v_mov_b32 v%d, s%d" % (self.vTs + 1, s_tsoff),
                Ins("global_store_dword v%d, v%d, s[84:85] offset:%d" % (self.vTs + 1, self.vTs, 4 * i), 'stamp')]

    def kv_block(self, n):
        cfg = self.cfg
        slot = SLOT[n % 3]
        tag = "B%d" % n
        us = [lambda: self.p.group(tag)]
        if n < 8:
            for m in range(4):
                for kh in range(2):
                    us.append(self.dma(vK1 if kh else vK0, SRD_K, n * 32768 + m * 128, (s_kvb, slot + (m * 2 + kh) * 1024), tag, cfg.aux_kv))
        else:
            for m in range(8):
                us.append(self.dma(vV, SRD_V, (n - 8) * 32768 + m * 4096, (s_kvb, slot + m * 1024), tag, cfg.aux_kv))
        return us

    def build(self):
        cfg, p, e = self.cfg, self.p, self.p.e
        self.vTs = 62
        e("s_cmp_ge_u32 s2, 256")
        e("s_cbranch_scc1 L_k1_end")
        e("s_load_dwordx8 s[36:43], s[0:1], 0")
        e("s_load_dwordx2 s[44:45], s[0:1], 32")
        e("s_load_dwordx8 s[48:55], s[0:1], 40")
        e("s_load_dwordx2 s[56:57], s[0:1], 72")
        e("s_load_dwordx2 s[58:59], s[0:1], 96")
        e("v_lshrrev_b32 v60, 6, v0")
        e("v_and_b32 v0, 63, v0")
        e("v_readfirstlane_b32 s%d, v60" % s_w)
        e("s_and_b32 s4, s2, 7")
        e("s_lshr_b32 s6, s2, 3")
        e("s_lshr_b32 s%d, s6, 4" % s_br)
        e("s_lshr_b32 s%d, s6, 1" % s_b)
        e("s_and_b32 s%d, s%d, 7" % (s_b, s_b))
        e("s_and_b32 s%d, s6, 1" % s_hh)
        e("s_lshl_b32 s%d, s4, 1" % s_h)
        e("s_add_u32 s%d, s%d, s%d" % (s_h, s_h, s_hh))
        e("s_lshl_b32 s6, s%d, 3" % s_b); e("s_add_u32 s6, s6, s4")
        e("s_lshl_b32 s7, s%d, 4" % s_b); e("s_add_u32 s7, s7, s%d" % s_h)
        e("s_cmp_eq_u32 s%d, 0" % s_br)
        e("s_cselect_b32 s6, s6, s7")
        e("s_lshl_b32 s6, s6, 18")
        e("s_lshl_b32 s%d, s%d, 13" % (s_kvb, s_w))
        e("s_mul_i32 s%d, s%d, 12288" % (s_wrb, s_w)); e("s_add_u32 s%d, s%d, %d" % (s_wrb, s_wrb, R))
        e("s_lshl_b32 s%d, s%d, 10" % (s_w1k, s_w))
        e("s_mov_b32 s%d, 0x3db8aa3b" % s_c)
        t0, t1, t2, t3, t4 = vT[:5]
        l3, l7, l4, i15, g = vT[5:10]
        e("v_lshrrev_b32 v%d, 3, v0" % l3)
        e("v_and_b32 v%d, 7, v0" % l7)
        e("v_lshrrev_b32 v%d, 4, v0" % l4)
        e("v_and_b32 v%d, 15, v0" % i15)
        e("s_lshl_b32 s4, s%d, 4" % s_w)
        e("v_add_u32 v%d, s4, v%d" % (t0, l3)); e("v_lshlrev_b32 v%d, 9, v%d" % (t0, t0))
        e("v_xor_b32 v%d, v%d, v%d" % (t1, l7, l4)); e("v_lshlrev_b32 v%d, 4, v%d" % (t1, t1))
        e("v_add_u32 v%d, v%d, v%d" % (vK0, t0, t1))
        e("v_xor_b32 v%d, 64, v%d" % (vK1, vK0)); e("v_add_u32 v%d, 4096, v%d" % (vK1, vK1))
        e("s_waitcnt lgkmcnt(0)")
        e("s_cmp_eq_u32 s%d, 0" % s_br)
        for (dst, a, b) in ((SRD_X, 36, 48), (SRD_K, 38, 50), (SRD_V, 40, 52), (SRD_W, 42, 54), (SRD_O, 44, 56)):
            e("s_cselect_b32 s%d, s%d, s%d" % (dst, a, b)); e("s_cselect_b32 s%d, s%d, s%d" % (dst + 1, a + 1, b + 1))
        e("s_add_u32 s%d, s%d, s6" % (SRD_K, SRD_K)); e("s_addc_u32 s%d, s%d, 0" % (SRD_K + 1, SRD_K + 1))
        e("s_mov_b32 s%d, 262144" % (SRD_K + 2)); e("s_mov_b32 s%d, 0x20000" % (SRD_K + 3))
        self.emit(self.kv_block(0)); self.emit(self.kv_block(1))
        e("s_add_u32 s%d, s%d, s6" % (SRD_V, SRD_V)); e("s_addc_u32 s%d, s%d, 0" % (SRD_V + 1, SRD_V + 1))
        e("s_mov_b32 s%d, 262144" % (SRD_V + 2)); e("s_mov_b32 s%d, 0x20000" % (SRD_V + 3))
        e("s_mul_i32 s4, s%d, %d" % (s_b, PART))
        e("s_add_u32 s%d, s%d, s4" % (SRD_X, SRD_X)); e("s_addc_u32 s%d, s%d, 0" % (SRD_X + 1, SRD_X + 1))
        e("s_mov_b32 s%d, %d" % (SRD_X + 2, PART)); e("s_mov_b32 s%d, 0x20000" % (SRD_X + 3))
        e("s_lshl_b32 s4, s%d, 9" % s_h)
        e("s_add_u32 s%d, s%d, s4" % (SRD_W, SRD_W)); e("s_addc_u32 s%d, s%d, 0" % (SRD_W + 1, SRD_W + 1))
        e("s_sub_u32 s%d, %d, s4" % (SRD_W + 2, 448 * 8192)); e("s_mov_b32 s%d, 0x20000" % (SRD_W + 3))
        e("s_mul_i32 s4, s%d, %d" % (s_h, 256 * 896))
        e("s_add_u32 s%d, s%d, s4" % (SRD_O, SRD_O)); e("s_addc_u32 s%d, s%d, 0" % (SRD_O + 1, SRD_O + 1))
        e("s_mov_b32 s%d, %d" % (SRD_O + 2, 256 * 896)); e("s_mov_b32 s%d, 0x20000" % (SRD_O + 3))
        e("s_lshl_b32 s4, s%d, 3" % s_br); e("s_add_u32 s4, s4, s%d" % s_b); e("s_lshl_b32 s4, s4, 4"); e("s_add_u32 s4, s4, s%d" % s_h)
        e("s_mul_i32 s4, s4, %d" % PART)
        e("s_add_u32 s%d, s58, s4" % SRD_P); e("s_addc_u32 s%d, s59, 0" % (SRD_P + 1))
        e("s_mov_b32 s%d, %d" % (SRD_P + 2, PART)); e("s_mov_b32 s%d, 0x20000" % (SRD_P + 3))
        if cfg.stamps:
            e("s_mov_b32 s84, s58"); e("s_mov_b32 s85, s59")
            e("s_lshl_b32 s%d, s2, 2" % s_tsoff); e("s_add_u32 s%d, s%d, s%d" % (s_tsoff, s_tsoff, s_w))
            e("s_lshl_b32 s%d, s%d, 8" % (s_tsoff, s_tsoff)); e("s_add_u32 s%d, s%d, %d" % (s_tsoff, s_tsoff, TS_OFF))
        self.emit(self.stamp())
        if cfg.rot:
            e("s_mul_i32 s4, s%d, 3" % s_hh); e("s_add_u32 s4, s4, s%d" % s_b)
            e("s_cmp_ge_u32 s4, 7"); e("s_cselect_b32 s6, 7, 0"); e("s_sub_u32 s4, s4, s6")
        else:
            e("s_mov_b32 s4, 0")
        e("s_add_u32 s%d, s4, 1" % s_cc1); e("s_cmp_eq_u32 s%d, 7" % s_cc1); e("s_cselect_b32 s%d, 0, s%d" % (s_cc1, s_cc1))
        e("s_add_u32 s%d, s%d, 1" % (s_cc2, s_cc1)); e("s_cmp_eq_u32 s%d, 7" % s_cc2); e("s_cselect_b32 s%d, 0, s%d" % (s_cc2, s_cc2))
        e("v_lshrrev_b32 v%d, 4, v0" % t0); e("v_and_b32 v%d, 1, v%d" % (t0, t0)); e("v_lshlrev_b32 v%d, 2, v%d" % (t0, t0))
        e("v_xor_b32 v%d, v%d, v%d" % (t0, l7, t0)); e("v_lshlrev_b32 v%d, 4, v%d" % (t0, t0))
        e("s_lshl_b32 s6, s%d, 7" % s_w)
        e("v_add_u32 v%d, s6, v%d" % (t0, t0))
        e("v_lshlrev_b32 v%d, 13, v%d" % (t1, l3)); e("v_add_u32 v%d, v%d, v%d" % (vW, t0, t1))
        e("v_lshlrev_b32 v%d, 9, v%d" % (t1, l3)); e("v_add_u32 v%d, v%d, v%d" % (vV, t0, t1))
        e("s_lshl_b32 s6, s%d, 3" % s_w); e("v_add_u32 v%d, s6, v%d" % (t2, l3)); e("v_mul_u32_u24 v%d, 896, v%d" % (t2, t2))
        e("s_and_b32 s7, s%d, 1" % s_w); e("s_lshl_b32 s7, s7, 2")
        e("v_add_u32 v%d, s7, v%d" % (t3, l4)); e("v_xor_b32 v%d, v%d, v%d" % (t3, l7, t3)); e("v_lshlrev_b32 v%d, 4, v%d" % (t3, t3))
        e("v_add_u32 v%d, v%d, v%d" % (vX, t2, t3))
        e("s_lshl_b32 s%d, s4, 7" % sXoff)
        e("s_lshl_b32 s%d, s4, 19" % sWoff)
        def xdma(slot_sgpr_or_int):
            us = [lambda: p.group("X")]
            for i in range(3):
                m0 = None
                if isinstance(slot_sgpr_or_int, int): m0 = (s_w1k, slot_sgpr_or_int + i * 4096)
                else: m0 = (slot_sgpr_or_int[0], i * 4096)
                us.append(self.dma(vX, SRD_X, (sXoff, i * 32 * 896), m0, "X", cfg.aux_x))
            return us
        def wdma(st, slot_sgpr):
            us = [lambda: p.group("W")]
            for m in range(4):
                us.append(self.dma(vW, SRD_W, (sWoff, (32 * st + 8 * m) * 8192), (slot_sgpr, m * 1024), "W", cfg.aux_w))
            return us
        e("s_mov_b32 s%d, s%d" % (sWA, s_wrb)); e("s_add_u32 s%d, s%d, 4096" % (sWB, s_wrb)); e("s_add_u32 s%d, s%d, 8192" % (sWC, s_wrb))
        e("s_add_u32 s%d, s%d, %d" % (sXc, s_w1k, XS[0])); e("s_add_u32 s%d, s%d, %d" % (sXn, s_w1k, XS[1])); e("s_add_u32 s%d, s%d, %d" % (sXnn, s_w1k, XS[2]))
        self.emit(xdma((sXc,)))
        self.emit(wdma(0, sWA)); self.emit(wdma(1, sWB))
        e("s_lshl_b32 s%d, s%d, 7" % (sXoff, s_cc1))
        self.emit(xdma((sXn,)))
        e("v_and_b32 v%d, 1, v%d" % (t3, l4)); e("v_lshlrev_b32 v%d, 1, v%d" % (t3, t3)); e("v_add_u32 v%d, s7, v%d" % (t3, t3))
        e("v_xor_b32 v%d, v%d, v%d" % (t3, l7, t3)); e("v_lshlrev_b32 v%d, 4, v%d" % (t3, t3)); e("v_add_u32 v%d, v%d, v%d" % (vWo, t2, t3))
        e("v_lshrrev_b32 v%d, 3, v%d" % (t0, i15)); e("v_lshlrev_b32 v%d, 10, v%d" % (t0, t0))
        e("v_and_b32 v%d, 7, v%d" % (t1, i15)); e("v_lshlrev_b32 v%d, 7, v%d" % (t1, t1)); e("v_add_u32 v%d, v%d, v%d" % (t0, t0, t1))
        e("v_lshrrev_b32 v%d, 1, v%d" % (t1, i15)); e("v_xor_b32 v%d, v%d, v%d" % (t1, l4, t1)); e("v_lshlrev_b32 v%d, 4, v%d" % (t1, t1))
        e("v_add_u32 v%d, v%d, v%d" % (t0, t0, t1)); e("v_add_u32 v%d, s%d, v%d" % (vKr0, s_kvb, t0)); e("v_xor_b32 v%d, 64, v%d" % (vKr1, vKr0))
        e("v_lshrrev_b32 v%d, 5, v0" % t0); e("v_lshlrev_b32 v%d, 3, v%d" % (t0, t0)); e("v_lshrrev_b32 v%d, 2, v%d" % (t1, i15))
        e("v_add_u32 v%d, v%d, v%d" % (t0, t0, t1)); e("v_lshlrev_b32 v%d, 7, v%d" % (t0, t0))
        e("v_and_b32 v%d, 1, v%d" % (t1, l4)); e("v_lshlrev_b32 v%d, 1, v%d" % (t1, t1))
        e("v_and_b32 v%d, 3, v%d" % (t4, i15)); e("v_lshrrev_b32 v%d, 1, v%d" % (t4, t4)); e("v_add_u32 v%d, v%d, v%d" % (t1, t1, t4))
        e("v_lshrrev_b32 v%d, 3, v%d" % (t4, i15)); e("v_lshlrev_b32 v%d, 2, v%d" % (t4, t4)); e("v_xor_b32 v%d, v%d, v%d" % (t1, t1, t4))
        e("v_lshlrev_b32 v%d, 4, v%d" % (t1, t1)); e("v_add_u32 v%d, v%d, v%d" % (t0, t0, t1))
        e("v_and_b32 v%d, 1, v%d" % (t1, i15)); e("v_lshlrev_b32 v%d, 3, v%d" % (t1, t1)); e("v_add_u32 v%d, v%d, v%d" % (t0, t0, t1))
        e("v_add_u32 v%d, s%d, v%d" % (vVr0, s_kvb, t0)); e("v_xor_b32 v%d, 64, v%d" % (vVr1, vVr0))
        vWb0, vWb1 = vT[10], vT[11]
        e("v_mov_b32 v%d, v%d" % (vWb0, t0)); e("v_xor_b32 v%d, 64, v%d" % (vWb1, t0))
        e("v_and_b32 v%d, 31, v0" % t0); e("v_lshrrev_b32 v%d, 1, v%d" % (t1, t0)); e("v_and_b32 v%d, 7, v%d" % (t1, t1))
        e("v_lshrrev_b32 v%d, 5, v0" % t4); e("v_xor_b32 v%d, v%d, v%d" % (t1, t1, t4)); e("v_lshlrev_b32 v%d, 4, v%d" % (t1, t1))
        e("v_lshlrev_b32 v%d, 7, v%d" % (t0, t0)); e("v_add_u32 v%d, v%d, v%d" % (vXr[0], t0, t1))
        for j in range(1, 4): e("v_xor_b32 v%d, %d, v%d" % (vXr[j], 32 * j, vXr[0]))
        e("v_xor_b32 v%d, v%d, v%d" % (t1, l4, i15)); e("v_lshlrev_b32 v%d, 4, v%d" % (t1, t1)); e("v_lshlrev_b32 v%d, 9, v%d" % (t0, i15))
        e("v_add_u32 v%d, v%d, v%d" % (t0, t0, t1)); e("v_add_u32 v%d, %d, v%d" % (vQr[0], R, t0))
        for j in range(1, 4): e("v_xor_b32 v%d, %d, v%d" % (vQr[j], 64 * j, vQr[0]))
        e("s_lshl_b32 s6, s%d, 1" % s_w)
        e("v_lshrrev_b32 v%d, 1, v%d" % (t0, l4)); e("v_add_u32 v%d, s6, v%d" % (t0, t0)); e("v_lshrrev_b32 v%d, 1, v%d" % (t1, i15))
        e("v_xor_b32 v%d, v%d, v%d" % (t0, t0, t1)); e("v_lshlrev_b32 v%d, 4, v%d" % (t0, t0))
        e("v_lshlrev_b32 v%d, 7, v%d" % (t1, i15)); e("v_add_u32 v%d, v%d, v%d" % (t0, t0, t1))
        e("v_and_b32 v%d, 1, v%d" % (t1, l4)); e("v_lshlrev_b32 v%d, 3, v%d" % (t1, t1)); e("v_add_u32 v%d, v%d, v%d" % (t0, t0, t1))
        e("v_add_u32 v%d, %d, v%d" % (vPw, R, t0))
        e("s_lshl_b32 s6, s%d, 3" % s_w)
        e("v_xor_b32 v%d, s6, v%d" % (t0, i15)); e("v_lshlrev_b32 v%d, 4, v%d" % (t0, t0))
        e("v_and_b32 v%d, 31, v0" % t1); e("v_lshlrev_b32 v%d, 9, v%d" % (t1, t1)); e("v_add_u32 v%d, v%d, v%d" % (t0, t0, t1))
        e("v_lshrrev_b32 v%d, 5, v0" % t1); e("v_lshlrev_b32 v%d, 3, v%d" % (t1, t1)); e("v_add_u32 v%d, v%d, v%d" % (t0, t0, t1))
        e("v_add_u32 v%d, %d, v%d" % (vQw, R, t0))
        e("v_lshlrev_b32 v%d, 3, v%d" % (t0, l4)); e("v_lshrrev_b32 v%d, 2, v%d" % (t1, i15)); e("v_add_u32 v%d, v%d, v%d" % (t0, t0, t1)); e("v_lshlrev_b32 v%d, 7, v%d" % (t0, t0))
        e("s_lshl_b32 s6, s%d, 1" % s_w)
        e("v_and_b32 v%d, 3, v%d" % (t1, i15)); e("v_lshrrev_b32 v%d, 1, v%d" % (t1, t1)); e("v_add_u32 v%d, s6, v%d" % (t1, t1))
        e("v_lshrrev_b32 v%d, 3, v%d" % (t4, i15)); e("v_and_b32 v%d, 1, v%d" % (t3, l4)); e("v_lshlrev_b32 v%d, 1, v%d" % (t3, t3)); e("v_or_b32 v%d, v%d, v%d" % (t4, t4, t3))
        e("v_lshlrev_b32 v%d, 1, v%d" % (t4, t4)); e("v_xor_b32 v%d, v%d, v%d" % (t1, t1, t4)); e("v_lshlrev_b32 v%d, 4, v%d" % (t1, t1)); e("v_add_u32 v%d, v%d, v%d" % (t0, t0, t1))
        e("v_and_b32 v%d, 1, v%d" % (t1, i15)); e("v_lshlrev_b32 v%d, 3, v%d" % (t1, t1)); e("v_add_u32 v%d, v%d, v%d" % (vWor, t0, t1))
        e("v_lshlrev_b32 v%d, 4, v%d" % (t0, i15)); e("v_add_u32 v%d, %d, v%d" % (vStR, ST, t0))
        e("s_lshl_b32 s6, s%d, 2" % s_w); e("v_add_u32 v%d, s6, v%d" % (vStW, vStR))
        e("v_lshlrev_b32 v%d, 4, v0" % vStO)
        for r in range(96): e("v_mov_b32 v%d, 0" % (vS + r))

        def qacc(dt, qt): return vS + (dt * 3 + qt) * 16
        FA = lambda buf, dt: buf * 20 + dt * 4
        FB = lambda buf, qt: buf * 20 + 8 + qt * 4
        def q_reads(buf, ks, ks4):
            r = []
            for dt in range(2):
                va = vA0 if dt == 0 else vA1
                for jj in range(2):
                    r.append("ds_read_b64_tr_b16 %s, v%d offset:%d" % (ar(FA(buf, dt) + 2 * jj, 2), va, (16 * ks + 4 * jj) * 128))
            for qt in range(3):
                r.append("ds_read_b128 %s, v%d offset:%d" % (ar(FB(buf, qt)), vXa[ks4], qt * 4096))
            return r
        def q_mfmas(buf):
            return ["v_mfma_f32_32x32x16_bf16 %s, %s, %s, %s" % (vr(qacc(dt, qt), 16), ar(FA(buf, dt)), ar(FB(buf, qt)), vr(qacc(dt, qt), 16))
                    for qt in range(3) for dt in range(2)]
        def set_wa(slot):
            return ["v_add_u32 v%d, s%d, v%d" % (vA0, slot, vWb0), "v_add_u32 v%d, s%d, v%d" % (vA1, slot, vWb1)]
        def set_xa(j, slot):
            return ["v_add_u32 v%d, s%d, v%d" % (vXa[j], sT1, vXr[j])]
        p.wait_vm("X", 1); p.wait_vm("W", 1)
        e("s_barrier")
        self.emit(self.stamp())
        e("s_sub_u32 s%d, s%d, s%d" % (sT1, sXc, s_w1k))
        self.emit(set_wa(sWA)); self.emit([set_xa(j, None) for j in range(4)])
        self.emit(q_reads(0, 0, 0))
        def q_body(c, in_loop):
            hasW = in_loop or c < 6
            hasX = in_loop or c < 5
            last = (not in_loop) and c == 6
            if hasW:
                e("s_lshl_b32 s%d, s%d, 19" % (sWoff, s_cc1))
            if hasX:
                e("s_lshl_b32 s%d, s%d, 7" % (sXoff, s_cc2))
            self.emit(q_reads(1, 1, 1))
            self.emit(weave(q_mfmas(0), wdma(0, sWC) if hasW else []))
            p.wait_vm("W", 1 if hasW else 0)
            self.emit(set_wa(sWB))
            self.emit(q_reads(0, 0, 2))
            self.emit(weave(q_mfmas(1), xdma((sXnn,)) if hasX else []))
            self.emit(q_reads(1, 1, 3))
            self.emit(weave(q_mfmas(0), wdma(1, sWA) if hasW else []))
            if not last:
                p.wait_vm("W", 1)
                p.wait_vm("X", 1 if hasX else 0)
                e("s_waitcnt lgkmcnt(0)")
                e("s_barrier")
                self.emit(set_wa(sWC))
                e("s_sub_u32 s%d, s%d, s%d" % (sT1, sXn, s_w1k))
                self.emit([set_xa(j, None) for j in range(4)])
                self.emit(q_reads(0, 0, 0))
            self.emit(q_mfmas(1))
            if not last:
                e("s_mov_b32 s%d, s%d" % (sT0, sWA)); e("s_mov_b32 s%d, s%d" % (sWA, sWC)); e("s_mov_b32 s%d, s%d" % (sWC, sWB)); e("s_mov_b32 s%d, s%d" % (sWB, sT0))
                e("s_mov_b32 s%d, s%d" % (sT0, sXc)); e("s_mov_b32 s%d, s%d" % (sXc, sXn)); e("s_mov_b32 s%d, s%d" % (sXn, sXnn)); e("s_mov_b32 s%d, s%d" % (sXnn, sT0))
                e("s_mov_b32 s%d, s%d" % (s_cc1, s_cc2))
                e("s_add_u32 s%d, s%d, 1" % (s_cc2, s_cc2)); e("s_cmp_eq_u32 s%d, 7" % s_cc2); e("s_cselect_b32 s%d, 0, s%d" % (s_cc2, s_cc2))
        e("s_mov_b32 s%d, 5" % s_cnt)
        p.loop_begin("L_qloop", 5)
        q_body(None, True)
        e("s_sub_u32 s%d, s%d, 1" % (s_cnt, s_cnt)); e("s_cmp_lg_u32 s%d, 0" % s_cnt); e("s_cbranch_scc1 L_qloop")
        p.loop_end()
        q_body(5, False)
        q_body(6, False)
        self.emit(self.stamp())
        e("s_waitcnt lgkmcnt(0)")
        e("s_barrier")
        blk2 = self.kv_block(2)
        def exch_write(src_of, is_acc):
            seq = []
            for dt in range(2):
                for rg in range(4):
                    va = vT[12 + ((dt * 4 + rg) & 1)]
                    seq.append("v_xor_b32 v%d, %d, v%d" % (va, (4 * dt + rg) * 16, vQw))
                    for qt in range(3):
                        b = src_of(dt, qt) + rg * 4
                        ta = vT[14 + 2 * ((dt * 12 + rg * 3 + qt) % 3)]
                        if is_acc:
                            tmp = vT[0:4]
                            unit = ["v_accvgpr_read_b32 v%d, a%d" % (tmp[k], b + k) for k in range(4)]
                            unit += ["v_cvt_pk_bf16_f32 v%d, v%d, v%d" % (ta, tmp[0], tmp[1]), "v_cvt_pk_bf16_f32 v%d, v%d, v%d" % (ta + 1, tmp[2], tmp[3])]
                        else:
                            unit = ["v_cvt_pk_bf16_f32 v%d, v%d, v%d" % (ta, b, b + 1), "v_cvt_pk_bf16_f32 v%d, v%d, v%d" % (ta + 1, b + 2, b + 3)]
                        unit.append("ds_write_b64 v%d, %s offset:%d" % (va, vr(ta, 2), qt * 16384))
                        seq.append(unit)
            return seq
        self.emit(weave(exch_write(qacc, False), blk2))
        e("s_waitcnt lgkmcnt(0)")
        e("s_barrier")
        self.emit(self.stamp())
        QF = lambda t, s: (s * 6 + t) * 4
        KF = lambda i, s: 192 + (i & 1) * 32 + s * 4
        def k_read(i, s):
            slot = SLOT[i % 3]
            base = (vKr1 if s & 1 else vKr0)
            off = slot + (s >> 1) * 2048
            if off >= 65536:
                base = (vA1 if s & 1 else vA0); off -= 65536
            return "ds_read_b128 %s, v%d offset:%d" % (ar(KF(i, s)), base, off)
        def q_read(t, s):
            return "ds_read_b128 %s, v%d offset:%d" % (ar(QF(t, s)), vQr[s & 3], t * 8192 + (s >> 2) * 256)
        def qk_mfma(i, t, s):
            c = "0" if s == 0 else vr(S(i, t))
            return "v_mfma_f32_16x16x32_bf16 %s, %s, %s, %s" % (vr(S(i, t)), ar(KF(i, s)), ar(QF(t, s)), c)
        def max_ops(i):
            r = []
            for t in range(6):
                b = S(i, t)
                if i == 0:
                    r.append("v_max3_f32 v%d, v%d, v%d, v%d" % (vM[t], b, b + 1, b + 2))
                    r.append("v_max_f32 v%d, v%d, v%d" % (vM[t], vM[t], b + 3))
                else:
                    r.append("v_max3_f32 v%d, v%d, v%d, v%d" % (vM[t], vM[t], b, b + 1))
                    r.append("v_max3_f32 v%d, v%d, v%d, v%d" % (vM[t], vM[t], b + 2, b + 3))
            return r
        e("v_add_u32 v%d, 0x10000, v%d" % (vA0, vKr0)); e("v_add_u32 v%d, 0x10000, v%d" % (vA1, vKr1))
        for i in range(8):
            p.wait_vm("B%d" % i)
            nxt = self.kv_block(i + 2) if i >= 1 else []
            fill = list(nxt)
            if i >= 1: fill = weave(fill, max_ops(i - 1)) if fill else max_ops(i - 1)
            if i == 0:
                self.emit([k_read(0, 0)] + [q_read(t, 0) for t in range(6)])
                for s in range(8):
                    if s < 7: self.emit([k_read(0, s + 1)] + [q_read(t, s + 1) for t in range(6)])
                    self.emit([qk_mfma(0, t, s) for t in range(6)])
            else:
                self.emit([k_read(i, s) for s in range(8)])
                mf = [qk_mfma(i, t, s) for s in range(8) for t in range(6)]
                self.emit(weave(mf, fill, 6, 46))
        self.emit(self.stamp())
        blk10 = self.kv_block(10)
        self.emit(max_ops(7))
        seq = []
        for t in range(6):
            a, b = vT[0 + 2 * (t & 1)], vT[1 + 2 * (t & 1)]
            seq += ["v_mov_b32 v%d, v%d" % (a, vM[t]), "v_permlane32_swap_b32 v%d, v%d" % (a, vM[t]), "v_max_f32 v%d, v%d, v%d" % (vM[t], vM[t], a),
                    "v_mov_b32 v%d, v%d" % (a, vM[t]), "v_permlane16_swap_b32 v%d, v%d" % (a, vM[t]), "v_max_f32 v%d, v%d, v%d" % (vM[t], vM[t], a),
                    "ds_write_b32 v%d, v%d offset:%d" % (vStW, vM[t], t * 256)]
        self.emit(seq)
        e("s_waitcnt lgkmcnt(0)")
        e("s_barrier")
        for t in range(6):
            e("ds_read_b128 %s, v%d offset:%d" % (vr(vT[4 * (t % 3)], 4) if False else vr(44 + 4 * (t % 4), 4), vStR, t * 256))
            b = 44 + 4 * (t % 4)
            if t >= 0:
                e("v_max3_f32 v%d, v%d, v%d, v%d" % (vM[t], b, b + 1, b + 2)); e("v_max_f32 v%d, v%d, v%d" % (vM[t], vM[t], b + 3))
                e("v_mul_f32 v%d, s%d, v%d" % (vM[t], s_c, vM[t]))
        for j in range(4): e("v_add_u32 v%d, %d, v%d" % (vXr[j], R, vXr[j]))
        def exp_ops(i):
            us = []
            for t in range(6):
                b = S(i, t)
                tm = [vT[0], vT[1], vT[2], vT[3]] if t % 2 == 0 else [vT[4], vT[5], vT[6], vT[7]]
                pk = vT[8 + 2 * (t % 2)]
                for k in range(4): us.append("v_fma_f32 v%d, v%d, s%d, -v%d" % (tm[k], b + k, s_c, vM[t]))
                for k in range(4): us.append("v_exp_f32 v%d, v%d" % (tm[k], tm[k]))
                if i == 0:
                    us.append("v_add_f32 v%d, v%d, v%d" % (vL[t], tm[0], tm[1]))
                else:
                    us.append("v_add_f32 v%d, v%d, v%d" % (vL[t], vL[t], tm[0])); us.append("v_add_f32 v%d, v%d, v%d" % (vL[t], vL[t], tm[1]))
                us.append("v_cvt_pk_bf16_f32 v%d, v%d, v%d" % (pk, tm[0], tm[1]))
                us.append("v_add_f32 v%d, v%d, v%d" % (vL[t], vL[t], tm[2]))
                us.append("v_cvt_pk_bf16_f32 v%d, v%d, v%d" % (pk + 1, tm[2], tm[3]))
                us.append("v_add_f32 v%d, v%d, v%d" % (vL[t], vL[t], tm[3]))
                us.append("ds_write_b64 v%d, %s offset:%d" % (vPw, vr(pk, 2), (i & 1) * 12288 + t * 2048))
            return us
        self.emit(weave(exp_ops(0), blk10))
        self.emit(self.stamp())
        OA = lambda dt, qt: (dt * 3 + qt) * 16
        VF = lambda buf, dt: 96 + buf * 20 + dt * 4
        PF = lambda buf, qt: 96 + buf * 20 + 8 + qt * 4
        e("v_add_u32 v%d, 0x10000, v%d" % (vA0, vVr0)); e("v_add_u32 v%d, 0x10000, v%d" % (vA1, vVr1))
        def v_reads(i, u, buf):
            slot = SLOT[(8 + i) % 3]
            r = []
            for dt in range(2):
                for jj in range(2):
                    off = slot + (16 * u + 4 * jj) * 128
                    base = vVr1 if dt else vVr0
                    if off >= 65536:
                        base = vA1 if dt else vA0; off -= 65536
                    r.append("ds_read_b64_tr_b16 %s, v%d offset:%d" % (ar(VF(buf, dt) + 2 * jj, 2), base, off))
            for qt in range(3):
                r.append("ds_read_b128 %s, v%d offset:%d" % (ar(PF(buf, qt)), vXr[u], (i & 1) * 12288 + qt * 4096))
            return r
        def pv_mfmas(i, u, buf):
            r = []
            for qt in range(3):
                for dt in range(2):
                    c = "0" if (i == 0 and u == 0) else ar(OA(dt, qt), 16)
                    r.append("v_mfma_f32_32x32x16_bf16 %s, %s, %s, %s" % (ar(OA(dt, qt), 16), ar(VF(buf, dt)), ar(PF(buf, qt)), c))
            return r
        def wo_block(ngsrc, slot):
            us = [lambda: p.group("WO")]
            for i in range(8):
                m0 = (s_w1k, slot + i * 4096) if isinstance(slot, int) else (slot[0], i * 4096)
                us.append(self.dma(vWo, SRD_O, (ngsrc, i * 32 * 896), m0, "WO", cfg.aux_wo))
            return us
        if cfg.rot:
            e("s_cmp_eq_u32 s%d, 7" % s_b); e("s_cselect_b32 s%d, 0, s%d" % (s_ng, s_b))
        else:
            e("s_mov_b32 s%d, 0" % s_ng)
        def inc7(dst, src):
            return ["s_add_u32 s%d, s%d, 1" % (dst, src), "s_cmp_eq_u32 s%d, 7" % dst, "s_cselect_b32 s%d, 0, s%d" % (dst, dst)]
        for i in range(8):
            e("s_waitcnt lgkmcnt(0)")
            e("s_barrier")
            p.wait_vm("B%d" % (8 + i))
            fill = []
            if i + 1 < 8: fill = exp_ops(i + 1)
            dm = []
            if 1 <= i <= 5: dm = self.kv_block(8 + i + 2)
            if i == 6:
                dm = ["s_lshl_b32 s%d, s%d, 7" % (s_wooff, s_ng)] + wo_block(s_wooff, SLOT[1])
            if i == 7:
                dm = inc7(s_ng2, s_ng) + ["s_lshl_b32 s%d, s%d, 7" % (s_wooff, s_ng2)] + wo_block(s_wooff, SLOT[2])
            if i == 6:
                red = []
                for t in range(6):
                    a = vT[12 + (t & 1)]
                    red += ["v_mov_b32 v%d, v%d" % (a, vL[t]), "v_permlane32_swap_b32 v%d, v%d" % (a, vL[t]), "v_add_f32 v%d, v%d, v%d" % (vL[t], vL[t], a),
                            "v_mov_b32 v%d, v%d" % (a, vL[t]), "v_permlane16_swap_b32 v%d, v%d" % (a, vL[t]), "v_add_f32 v%d, v%d, v%d" % (vL[t], vL[t], a),
                            "ds_write_b32 v%d, v%d offset:%d" % (vStW, vL[t], 2048 + t * 256)]
                fill = fill + red
            if i == 7:
                for t in range(6):
                    b = 44 + 4 * (t % 4)
                    fill += ["ds_read_b128 %s, v%d offset:%d" % (vr(b, 4), vStR, 2048 + t * 256),
                             ["v_add_f32 v%d, v%d, v%d" % (b, b, b + 1), "v_add_f32 v%d, v%d, v%d" % (b + 2, b + 2, b + 3),
                              "v_add_f32 v%d, v%d, v%d" % (b, b, b + 2), "v_rcp_f32 v%d, v%d" % (vM[t], b)]]
            allfill = weave(fill, dm) if fill else dm
            self.emit(v_reads(i, 0, 0))
            mf = []
            for u in range(4):
                if u < 3: mf.append(v_reads(i, u + 1, (u + 1) & 1))
                mf += pv_mfmas(i, u, u & 1)
            self.emit(weave(mf, allfill, 1, len(mf) - 1))
        self.emit(self.stamp())
        e("s_waitcnt lgkmcnt(0)")
        e("s_barrier")
        self.emit(exch_write(OA, True))
        p.wait_vm("WO", 1)
        e("s_waitcnt lgkmcnt(0)")
        e("s_barrier")
        self.emit(self.stamp())
        OF = QF
        WF = lambda s: 192 + s * 4
        ACC = lambda t: vS + t * 4
        def wo_reads(s, base):
            return ["ds_read_b64_tr_b16 %s, v%d offset:%d" % (ar(WF(s) + 2 * jj, 2), base, (32 * s + 4 * jj) * 128) for jj in range(2)]
        e("v_add_u32 v%d, %d, v%d" % (vA0, SLOT[1], vWor))
        for s in range(8):
            self.emit(wo_reads(s, vA0))
            self.emit([q_read(t, s) for t in range(6)])
        e("s_mov_b32 s%d, %d" % (s_slotN, SLOT[2]))
        e("s_add_u32 s%d, s%d, %d" % (s_slotD, s_w1k, SLOT[0]))
        e("s_mov_b32 s%d, %d" % (s_slotR, SLOT[1]))
        e("s_mov_b32 s%d, 0x40000000" % s_stprev)
        e("s_mov_b32 s%d, 0" % s_cnt)
        def epi(t):
            b = ACC(t)
            pk = vT[12 + 2 * (t & 1)] if False else (vT[8] + 4 * ((t >> 1) & 1) + 2 * (t & 1))
            u = ["v_mul_f32 v%d, v%d, v%d" % (b + k, vM[t], b + k) for k in range(4)]
            u += ["v_cvt_pk_bf16_f32 v%d, v%d, v%d" % (pk, b, b + 1), "v_cvt_pk_bf16_f32 v%d, v%d, v%d" % (pk + 1, b + 2, b + 3)]
            return u
        def st(pair, sbase):
            pk = vT[8] + 4 * (pair & 1)
            return ["s_add_u32 s%d, s%d, %d" % (sSoff, sbase, pair * 1024),
                    Ins("buffer_store_dwordx4 %s, v%d, %s, s%d offen %s" % (vr(pk, 4), vStO, srd(SRD_P), sSoff, cfg.aux_st), "ST")]
        def tile(t):
            return ["v_mfma_f32_16x16x32_bf16 %s, %s, %s, %s" % (vr(ACC(t)), ar(WF(s)), ar(OF(t, s)), "0" if s == 0 else vr(ACC(t))) for s in range(8)]
        p.loop_begin("L_oloop", 7)
        e("s_lshl_b32 s%d, s%d, 2" % (s_stoff, s_ng)); e("s_add_u32 s%d, s%d, s%d" % (s_stoff, s_stoff, s_w)); e("s_mul_i32 s%d, s%d, 3072" % (s_stoff, s_stoff))
        self.emit(inc7(sT1, s_ng2))
        e("s_lshl_b32 s%d, s%d, 7" % (s_wooff, sT1)); e("s_cmp_ge_u32 s%d, 5" % s_cnt); e("s_cselect_b32 s%d, 0x40000000, s%d" % (s_wooff, s_wooff))
        dmas = wo_block(s_wooff, (s_slotD,))
        self.emit(dmas[0:1])
        d = dmas[1:]
        self.emit(weave(tile(0), epi(4) + d[0:2], 0, 8))
        self.emit(weave(tile(1), epi(5) + [st(2, s_stprev)] + d[2:4], 0, 8))
        self.emit(weave(tile(2), epi(0) + d[4:6], 0, 8))
        self.emit(weave(tile(3), epi(1) + [st(0, s_stoff)] + d[6:8], 0, 8))
        self.emit(weave(tile(4), epi(2), 0, 8))
        p.wait_vm("WO", 1)
        e("s_barrier")
        e("v_add_u32 v%d, s%d, v%d" % (vA0, s_slotN, vWor))
        t5 = tile(5)
        seq = []
        ep3 = epi(3) + [st(1, s_stoff)]
        for s in range(8):
            seq.append(t5[s])
            seq.append(wo_reads(s, vA0))
            if s < len(ep3): seq.append(ep3[s])
        self.emit(seq)
        e("s_mov_b32 s%d, s%d" % (s_stprev, s_stoff))
        e("s_mov_b32 s%d, s%d" % (s_ng, s_ng2)); e("s_mov_b32 s%d, s%d" % (s_ng2, sT1))
        e("s_sub_u32 s%d, s%d, s%d" % (sT0, s_slotD, s_w1k))
        e("s_add_u32 s%d, s%d, s%d" % (s_slotD, s_slotR, s_w1k))
        e("s_mov_b32 s%d, s%d" % (s_slotR, s_slotN)); e("s_mov_b32 s%d, s%d" % (s_slotN, sT0))
        e("s_add_u32 s%d, s%d, 1" % (s_cnt, s_cnt)); e("s_cmp_lt_u32 s%d, 7" % s_cnt); e("s_cbranch_scc1 L_oloop")
        p.loop_end()
        self.emit(epi(4)); self.emit(epi(5)); self.emit(st(2, s_stprev))
        if cfg.stamps:
            self.emit(self.stamp())
            e("s_waitcnt vmcnt(0)")
            self.emit(self.stamp())
        e("L_k1_end:")
        e("s_endpgm")
        p.resolve()
        return p.text()

def k2_text(cfg):
    p = Prog(); e = p.e
    NU = 1344
    waves = 4
    e("s_lshl_b32 s3, s2, 2")
    e("v_lshrrev_b32 v1, 6, v0"); e("v_and_b32 v0, 63, v0"); e("v_readfirstlane_b32 s4, v1")
    e("s_load_dwordx2 s[8:9], s[0:1], 96")
    e("s_load_dwordx2 s[12:13], s[0:1], 80")
    e("s_add_u32 s3, s3, s4")
    e("s_cmp_ge_u32 s3, %d" % NU); e("s_cbranch_scc1 L_k2_end")
    e("s_mul_hi_u32 s5, s3, %d" % ((1 << 32) // 84 + 1)); e("s_mul_i32 s6, s5, 84"); e("s_sub_u32 s6, s3, s6")
    e("s_mul_hi_u32 s7, s6, %d" % ((1 << 32) // 12 + 1)); e("s_mul_i32 s14, s7, 12"); e("s_sub_u32 s14, s6, s14")
    e("s_mul_hi_u32 s15, s14, %d" % ((1 << 32) // 3 + 1)); e("s_mul_i32 s16, s15, 3"); e("s_sub_u32 s16, s14, s16")
    e("s_waitcnt lgkmcnt(0)")
    e("s_mul_i32 s17, s5, %d" % (PART * 16))
    e("s_add_u32 s8, s8, s17"); e("s_addc_u32 s9, s9, 0"); e("s_mov_b32 s10, %d" % (PART * 16)); e("s_mov_b32 s11, 0x20000")
    e("s_lshl_b32 s18, s6, 10")
    e("v_lshlrev_b32 v2, 4, v0")
    for h in range(16):
        e("s_add_u32 s19, s18, %d" % (h * PART))
        e("buffer_load_dwordx4 v[%d:%d], v2, s[8:11], s19 offen" % (16 + 4 * h, 19 + 4 * h))
    e("s_and_b32 s20, s5, 7"); e("s_lshr_b32 s21, s5, 3")
    e("s_mul_i32 s20, s20, %d" % (96 * 1792)); e("s_mul_i32 s21, s21, 896"); e("s_add_u32 s20, s20, s21")
    e("s_lshl_b32 s21, s7, 7"); e("s_add_u32 s20, s20, s21"); e("s_lshl_b32 s21, s15, 5"); e("s_add_u32 s20, s20, s21")
    e("s_mul_i32 s21, s16, %d" % (32 * 1792)); e("s_add_u32 s20, s20, s21")
    e("s_mov_b32 s14, %d" % (8 * 96 * 1792)); e("s_mov_b32 s15, 0x20000")
    e("v_and_b32 v3, 15, v0"); e("v_mul_u32_u24 v3, 1792, v3"); e("v_lshrrev_b32 v4, 4, v0"); e("v_lshlrev_b32 v4, 3, v4"); e("v_add_u32 v3, v3, v4")
    acc = list(range(4, 12))
    for h in range(16):
        b = 16 + 4 * h
        for k in range(4):
            if h == 0:
                e("v_lshlrev_b32 v%d, 16, v%d" % (acc[2 * k], b + k)); e("v_and_b32 v%d, 0xffff0000, v%d" % (acc[2 * k + 1], b + k))
            else:
                e("v_lshlrev_b32 v12, 16, v%d" % (b + k)); e("v_and_b32 v13, 0xffff0000, v%d" % (b + k))
                e("v_add_f32 v%d, v%d, v12" % (acc[2 * k], acc[2 * k])); e("v_add_f32 v%d, v%d, v13" % (acc[2 * k + 1], acc[2 * k + 1]))
    for k in range(4): e("v_cvt_pk_bf16_f32 v%d, v%d, v%d" % (12 + k, acc[2 * k], acc[2 * k + 1]))
    e("buffer_store_dwordx2 v[12:13], v3, s[12:15], s20 offen")
    e("s_add_u32 s20, s20, %d" % (16 * 1792))
    e("buffer_store_dwordx2 v[14:15], v3, s[12:15], s20 offen")
    e("L_k2_end:")
    e("s_endpgm")
    p.resolve()
    return p.text()

def desc(name, vg, acc, sg=102):
    return """.amdhsa_kernel %s
  .amdhsa_next_free_vgpr %d
  .amdhsa_next_free_sgpr %d
  .amdhsa_accum_offset %d
  .amdhsa_group_segment_fixed_size 0
  .amdhsa_kernarg_size 104
  .amdhsa_user_sgpr_count 2
  .amdhsa_user_sgpr_kernarg_segment_ptr 1
  .amdhsa_system_sgpr_workgroup_id_x 1
  .amdhsa_float_denorm_mode_32 3
.end_amdhsa_kernel
""" % (name, vg, sg, acc)

HEAD = open("concat_heads__gqa_block_cached__mha_block_cached__near_ridge.s.ref").read().split("; Override launch geometry")[0] \
    if __import__("os").path.exists("concat_heads__gqa_block_cached__mha_block_cached__near_ridge.s.ref") else ""

def generate(cfg):
    k1 = K1(cfg).build()
    k2 = k2_text(cfg)
    out = HEAD
    out += "; @launch kernel=attn_main_kernel grid=(256,1,1) block=(256,1,1) lds=163840\n"
    out += "; @launch kernel=head_reduce_kernel grid=(%d,1,1) block=(256,1,1) lds=0\n" % cfg.k2_wgs
    out += '.amdgcn_target "amdgcn-amd-amdhsa--gfx950"\n.text\n'
    for name, body in (("attn_main_kernel", k1), ("head_reduce_kernel", k2)):
        out += ".globl %s\n.p2align 8\n.type %s,@function\n%s:\n%s\n" % (name, name, name, body)
    out += '.section .rodata,"a"\n.p2align 6\n' + desc("attn_main_kernel", 512, 256) + ".p2align 6\n" + desc("head_reduce_kernel", 80, 80, 32)
    return out

if __name__ == "__main__":
    kw = {}
    for a in sys.argv[2:]:
        k, v = a.split("=", 1)
        kw[k] = eval(v)
    txt = generate(Cfg(**kw))
    open(sys.argv[1], "w").write(txt)
    print("wrote", sys.argv[1], len(txt), "bytes,", txt.count("\n"), "lines")
```

```python
import sys
from asmgen import Prog, Ins

KNAME = "concat_heads__gqa_block_cached__mha_block_cached__near_ridge_kernel"

class Cfg:
    aux_kv = "nt"
    aux_w = ""
    aux_x = ""
    aux_wo = ""
    aux_st = "sc1"
    stamps = False
    rot = True
    k2_wgs = 336
    extra_empty = 0
    aux_k2 = ""
    def __init__(self, **kw):
        for k, v in kw.items():
            assert hasattr(Cfg, k), k
            setattr(self, k, v)

SLOT = [0, 32768, 65536]
XS = [65536, 77824, 147456]
R = 98304
ST = 159744
PART = 86016
TS_OFF = 64 << 20

vLane = 0
vK0, vK1, vV, vW, vX, vWo = 1, 2, 3, 4, 5, 6
vKr0, vKr1 = 7, 8
vVr0, vVr1 = 9, 10
vXr = [11, 12, 13, 14]
vQr = [15, 16, 17, 18]
vPw = 19
vQw = 20
vWor = 21
vStW, vStR = 22, 23
vStO = 24
vM = [25, 26, 27, 28, 29, 30]
vL = [31, 32, 33, 34, 35, 36]
vA0, vA1 = 37, 38
vXa = [39, 40, 41, 42]
vT = list(range(44, 64))
vS = 64

def S(i, t):
    return vS + (i * 6 + t) * 4

s_w = 3
sT0, sSoff, sT1, sT2 = 4, 5, 6, 7
SRD_X, SRD_W, SRD_K, SRD_V, SRD_O, SRD_P = 8, 12, 16, 20, 24, 28
s_c = 32
s_kvb = 33
s_wrb = 34
s_w1k = 35
s_cnt = 60
sWA, sWB, sWC = 61, 62, 63
sXc, sXn, sXnn = 64, 65, 66
s_cc1, s_cc2 = 69, 70
sWoff, sXoff = 67, 68
s_ng, s_ng2, s_slotR, s_slotN, s_slotD, s_stoff, s_stprev, s_wooff = 71, 72, 73, 74, 75, 76, 77, 78
s_b, s_hh, s_h, s_br = 79, 80, 81, 82
s_ts = 84
s_tsoff = 88

def srd(n): return "s[%d:%d]" % (n, n + 3)
def vr(n, c=4): return "v[%d:%d]" % (n, n + c - 1)
def ar(n, c=4): return "a[%d:%d]" % (n, n + c - 1)

def weave(main, fill, lo=0, hi=None):
    if hi is None: hi = len(main)
    out = []
    n = hi - lo
    k = 0
    for i, m in enumerate(main):
        out.append(m)
        if lo <= i < hi:
            tgt = (len(fill) * (i - lo + 1) + n - 1) // n if n > 0 else len(fill)
            tgt = min(len(fill), (len(fill) * (i - lo + 1)) // n + (1 if (len(fill) * (i - lo + 1)) % n and False else 0))
            while k < tgt:
                out.append(fill[k]); k += 1
    while k < len(fill):
        out.append(fill[k]); k += 1
    return out

class K1:
    def __init__(self, cfg):
        self.cfg = cfg
        self.p = Prog()
        self.nstamp = 0

    def emit(self, seq):
        for u in seq:
            if isinstance(u, (list, tuple)):
                self.emit(u)
            elif callable(u):
                u()
            else:
                if isinstance(u, Ins): self.p.raw(u)
                else: self.p.e(u)

    def dma(self, vaddr, srdn, soff, m0, tag, aux):
        u = []
        if isinstance(m0, int): u.append("s_mov_b32 m0, %d" % m0)
        else: u.append("s_add_u32 m0, s%d, %d" % m0 if m0[1] else "s_mov_b32 m0, s%d" % m0[0])
        if isinstance(soff, int): u.append("s_mov_b32 s%d, %d" % (sSoff, soff))
        else: u.append("s_add_u32 s%d, s%d, %d" % (sSoff, soff[0], soff[1]))
        u.append(Ins("buffer_load_dwordx4 v%d, %s, s%d offen %s lds" % (vaddr, srd(srdn), sSoff, aux), tag))
        return u

    def stamp(self):
        if not self.cfg.stamps: return []
        i = self.nstamp; self.nstamp += 1
        t = vT
        return ["s_memrealtime s[86:87]", "s_waitcnt lgkmcnt(0)",
                "v_mov_b32 v%d, s86" % self.vTs, "v_mov_b32 v%d, s%d" % (self.vTs + 1, s_tsoff),
                Ins("global_store_dword v%d, v%d, s[84:85] offset:%d" % (self.vTs + 1, self.vTs, 4 * i), 'stamp')]

    def kv_block(self, n):
        cfg = self.cfg
        slot = SLOT[n % 3]
        tag = "B%d" % n
        us = [lambda: self.p.group(tag)]
        if n < 8:
            for m in range(4):
                for kh in range(2):
                    us.append(self.dma(vK1 if kh else vK0, SRD_K, n * 32768 + m * 128, (s_kvb, slot + (m * 2 + kh) * 1024), tag, cfg.aux_kv))
        else:
            for m in range(8):
                us.append(self.dma(vV, SRD_V, (n - 8) * 32768 + m * 4096, (s_kvb, slot + m * 1024), tag, cfg.aux_kv))
        return us

    def build(self):
        cfg, p, e = self.cfg, self.p, self.p.e
        self.vTs = 62
        e("s_cmp_ge_u32 s2, 256")
        e("s_cbranch_scc1 L_k1_end")
        e("s_load_dwordx8 s[36:43], s[0:1], 0")
        e("s_load_dwordx2 s[44:45], s[0:1], 32")
        e("s_load_dwordx8 s[48:55], s[0:1], 40")
        e("s_load_dwordx2 s[56:57], s[0:1], 72")
        e("s_load_dwordx2 s[58:59], s[0:1], 96")
        e("v_lshrrev_b32 v60, 6, v0")
        e("v_and_b32 v0, 63, v0")
        e("v_readfirstlane_b32 s%d, v60" % s_w)
        e("s_and_b32 s4, s2, 7")
        e("s_lshr_b32 s6, s2, 3")
        e("s_lshr_b32 s%d, s6, 4" % s_br)
        e("s_lshr_b32 s%d, s6, 1" % s_b)
        e("s_and_b32 s%d, s%d, 7" % (s_b, s_b))
        e("s_and_b32 s%d, s6, 1" % s_hh)
        e("s_lshl_b32 s%d, s4, 1" % s_h)
        e("s_add_u32 s%d, s%d, s%d" % (s_h, s_h, s_hh))
        e("s_lshl_b32 s6, s%d, 3" % s_b); e("s_add_u32 s6, s6, s4")
        e("s_lshl_b32 s7, s%d, 4" % s_b); e("s_add_u32 s7, s7, s%d" % s_h)
        e("s_cmp_eq_u32 s%d, 0" % s_br)
        e("s_cselect_b32 s6, s6, s7")
        e("s_lshl_b32 s6, s6, 18")
        e("s_lshl_b32 s%d, s%d, 13" % (s_kvb, s_w))
        e("s_mul_i32 s%d, s%d, 12288" % (s_wrb, s_w)); e("s_add_u32 s%d, s%d, %d" % (s_wrb, s_wrb, R))
        e("s_lshl_b32 s%d, s%d, 10" % (s_w1k, s_w))
        e("s_mov_b32 s%d, 0x3db8aa3b" % s_c)
        t0, t1, t2, t3, t4 = vT[:5]
        l3, l7, l4, i15, g = vT[5:10]
        e("v_lshrrev_b32 v%d, 3, v0" % l3)
        e("v_and_b32 v%d, 7, v0" % l7)
        e("v_lshrrev_b32 v%d, 4, v0" % l4)
        e("v_and_b32 v%d, 15, v0" % i15)
        e("s_lshl_b32 s4, s%d, 4" % s_w)
        e("v_add_u32 v%d, s4, v%d" % (t0, l3)); e("v_lshlrev_b32 v%d, 9, v%d" % (t0, t0))
        e("v_xor_b32 v%d, v%d, v%d" % (t1, l7, l4)); e("v_lshlrev_b32 v%d, 4, v%d" % (t1, t1))
        e("v_add_u32 v%d, v%d, v%d" % (vK0, t0, t1))
        e("v_xor_b32 v%d, 64, v%d" % (vK1, vK0)); e("v_add_u32 v%d, 4096, v%d" % (vK1, vK1))
        e("s_waitcnt lgkmcnt(0)")
        e("s_cmp_eq_u32 s%d, 0" % s_br)
        for (dst, a, b) in ((SRD_X, 36, 48), (SRD_K, 38, 50), (SRD_V, 40, 52), (SRD_W, 42, 54), (SRD_O, 44, 56)):
            e("s_cselect_b32 s%d, s%d, s%d" % (dst, a, b)); e("s_cselect_b32 s%d, s%d, s%d" % (dst + 1, a + 1, b + 1))
        e("s_add_u32 s%d, s%d, s6" % (SRD_K, SRD_K)); e("s_addc_u32 s%d, s%d, 0" % (SRD_K + 1, SRD_K + 1))
        e("s_mov_b32 s%d, 262144" % (SRD_K + 2)); e("s_mov_b32 s%d, 0x20000" % (SRD_K + 3))
        self.emit(self.kv_block(0)); self.emit(self.kv_block(1))
        e("s_add_u32 s%d, s%d, s6" % (SRD_V, SRD_V)); e("s_addc_u32 s%d, s%d, 0" % (SRD_V + 1, SRD_V + 1))
        e("s_mov_b32 s%d, 262144" % (SRD_V + 2)); e("s_mov_b32 s%d, 0x20000" % (SRD_V + 3))
        e("s_mul_i32 s4, s%d, %d" % (s_b, PART))
        e("s_add_u32 s%d, s%d, s4" % (SRD_X, SRD_X)); e("s_addc_u32 s%d, s%d, 0" % (SRD_X + 1, SRD_X + 1))
        e("s_mov_b32 s%d, %d" % (SRD_X + 2, PART)); e("s_mov_b32 s%d, 0x20000" % (SRD_X + 3))
        e("s_lshl_b32 s4, s%d, 9" % s_h)
        e("s_add_u32 s%d, s%d, s4" % (SRD_W, SRD_W)); e("s_addc_u32 s%d, s%d, 0" % (SRD_W + 1, SRD_W + 1))
        e("s_sub_u32 s%d, %d, s4" % (SRD_W + 2, 448 * 8192)); e("s_mov_b32 s%d, 0x20000" % (SRD_W + 3))
        e("s_mul_i32 s4, s%d, %d" % (s_h, 256 * 896))
        e("s_add_u32 s%d, s%d, s4" % (SRD_O, SRD_O)); e("s_addc_u32 s%d, s%d, 0" % (SRD_O + 1, SRD_O + 1))
        e("s_mov_b32 s%d, %d" % (SRD_O + 2, 256 * 896)); e("s_mov_b32 s%d, 0x20000" % (SRD_O + 3))
        e("s_lshl_b32 s4, s%d, 3" % s_br); e("s_add_u32 s4, s4, s%d" % s_b); e("s_lshl_b32 s4, s4, 4"); e("s_add_u32 s4, s4, s%d" % s_h)
        e("s_mul_i32 s4, s4, %d" % PART)
        e("s_add_u32 s%d, s58, s4" % SRD_P); e("s_addc_u32 s%d, s59, 0" % (SRD_P + 1))
        e("s_mov_b32 s%d, %d" % (SRD_P + 2, PART)); e("s_mov_b32 s%d, 0x20000" % (SRD_P + 3))
        if cfg.stamps:
            e("s_mov_b32 s84, s58"); e("s_mov_b32 s85, s59")
            e("s_lshl_b32 s%d, s2, 2" % s_tsoff); e("s_add_u32 s%d, s%d, s%d" % (s_tsoff, s_tsoff, s_w))
            e("s_lshl_b32 s%d, s%d, 8" % (s_tsoff, s_tsoff)); e("s_add_u32 s%d, s%d, %d" % (s_tsoff, s_tsoff, TS_OFF))
        self.emit(self.stamp())
        if cfg.rot:
            e("s_mul_i32 s4, s%d, 3" % s_hh); e("s_add_u32 s4, s4, s%d" % s_b)
            e("s_cmp_ge_u32 s4, 7"); e("s_cselect_b32 s6, 7, 0"); e("s_sub_u32 s4, s4, s6")
        else:
            e("s_mov_b32 s4, 0")
        e("s_add_u32 s%d, s4, 1" % s_cc1); e("s_cmp_eq_u32 s%d, 7" % s_cc1); e("s_cselect_b32 s%d, 0, s%d" % (s_cc1, s_cc1))
        e("s_add_u32 s%d, s%d, 1" % (s_cc2, s_cc1)); e("s_cmp_eq_u32 s%d, 7" % s_cc2); e("s_cselect_b32 s%d, 0, s%d" % (s_cc2, s_cc2))
        e("v_lshrrev_b32 v%d, 4, v0" % t0); e("v_and_b32 v%d, 1, v%d" % (t0, t0)); e("v_lshlrev_b32 v%d, 2, v%d" % (t0, t0))
        e("v_xor_b32 v%d, v%d, v%d" % (t0, l7, t0)); e("v_lshlrev_b32 v%d, 4, v%d" % (t0, t0))
        e("s_lshl_b32 s6, s%d, 7" % s_w)
        e("v_add_u32 v%d, s6, v%d" % (t0, t0))
        e("v_lshlrev_b32 v%d, 13, v%d" % (t1, l3)); e("v_add_u32 v%d, v%d, v%d" % (vW, t0, t1))
        e("v_lshlrev_b32 v%d, 9, v%d" % (t1, l3)); e("v_add_u32 v%d, v%d, v%d" % (vV, t0, t1))
        e("s_lshl_b32 s6, s%d, 3" % s_w); e("v_add_u32 v%d, s6, v%d" % (t2, l3)); e("v_mul_u32_u24 v%d, 896, v%d" % (t2, t2))
        e("s_and_b32 s7, s%d, 1" % s_w); e("s_lshl_b32 s7, s7, 2")
        e("v_add_u32 v%d, s7, v%d" % (t3, l4)); e("v_xor_b32 v%d, v%d, v%d" % (t3, l7, t3)); e("v_lshlrev_b32 v%d, 4, v%d" % (t3, t3))
        e("v_add_u32 v%d, v%d, v%d" % (vX, t2, t3))
        e("s_lshl_b32 s%d, s4, 7" % sXoff)
        e("s_lshl_b32 s%d, s4, 19" % sWoff)
        def xdma(slot_sgpr_or_int):
            us = [lambda: p.group("X")]
            for i in range(3):
                m0 = None
                if isinstance(slot_sgpr_or_int, int): m0 = (s_w1k, slot_sgpr_or_int + i * 4096)
                else: m0 = (slot_sgpr_or_int[0], i * 4096)
                us.append(self.dma(vX, SRD_X, (sXoff, i * 32 * 896), m0, "X", cfg.aux_x))
            return us
        def wdma(st, slot_sgpr):
            us = [lambda: p.group("W")]
            for m in range(4):
                us.append(self.dma(vW, SRD_W, (sWoff, (32 * st + 8 * m) * 8192), (slot_sgpr, m * 1024), "W", cfg.aux_w))
            return us
        e("s_mov_b32 s%d, s%d" % (sWA, s_wrb)); e("s_add_u32 s%d, s%d, 4096" % (sWB, s_wrb)); e("s_add_u32 s%d, s%d, 8192" % (sWC, s_wrb))
        e("s_add_u32 s%d, s%d, %d" % (sXc, s_w1k, XS[0])); e("s_add_u32 s%d, s%d, %d" % (sXn, s_w1k, XS[1])); e("s_add_u32 s%d, s%d, %d" % (sXnn, s_w1k, XS[2]))
        self.emit(xdma((sXc,)))
        self.emit(wdma(0, sWA)); self.emit(wdma(1, sWB))
        e("s_lshl_b32 s%d, s%d, 7" % (sXoff, s_cc1))
        self.emit(xdma((sXn,)))
        e("v_and_b32 v%d, 1, v%d" % (t3, l4)); e("v_lshlrev_b32 v%d, 1, v%d" % (t3, t3)); e("v_add_u32 v%d, s7, v%d" % (t3, t3))
        e("v_xor_b32 v%d, v%d, v%d" % (t3, l7, t3)); e("v_lshlrev_b32 v%d, 4, v%d" % (t3, t3)); e("v_add_u32 v%d, v%d, v%d" % (vWo, t2, t3))
        e("v_lshrrev_b32 v%d, 3, v%d" % (t0, i15)); e("v_lshlrev_b32 v%d, 10, v%d" % (t0, t0))
        e("v_and_b32 v%d, 7, v%d" % (t1, i15)); e("v_lshlrev_b32 v%d, 7, v%d" % (t1, t1)); e("v_add_u32 v%d, v%d, v%d" % (t0, t0, t1))
        e("v_lshrrev_b32 v%d, 1, v%d" % (t1, i15)); e("v_xor_b32 v%d, v%d, v%d" % (t1, l4, t1)); e("v_lshlrev_b32 v%d, 4, v%d" % (t1, t1))
        e("v_add_u32 v%d, v%d, v%d" % (t0, t0, t1)); e("v_add_u32 v%d, s%d, v%d" % (vKr0, s_kvb, t0)); e("v_xor_b32 v%d, 64, v%d" % (vKr1, vKr0))
        e("v_lshrrev_b32 v%d, 5, v0" % t0); e("v_lshlrev_b32 v%d, 3, v%d" % (t0, t0)); e("v_lshrrev_b32 v%d, 2, v%d" % (t1, i15))
        e("v_add_u32 v%d, v%d, v%d" % (t0, t0, t1)); e("v_lshlrev_b32 v%d, 7, v%d" % (t0, t0))
        e("v_and_b32 v%d, 1, v%d" % (t1, l4)); e("v_lshlrev_b32 v%d, 1, v%d" % (t1, t1))
        e("v_and_b32 v%d, 3, v%d" % (t4, i15)); e("v_lshrrev_b32 v%d, 1, v%d" % (t4, t4)); e("v_add_u32 v%d, v%d, v%d" % (t1, t1, t4))
        e("v_lshrrev_b32 v%d, 3, v%d" % (t4, i15)); e("v_lshlrev_b32 v%d, 2, v%d" % (t4, t4)); e("v_xor_b32 v%d, v%d, v%d" % (t1, t1, t4))
        e("v_lshlrev_b32 v%d, 4, v%d" % (t1, t1)); e("v_add_u32 v%d, v%d, v%d" % (t0, t0, t1))
        e("v_and_b32 v%d, 1, v%d" % (t1, i15)); e("v_lshlrev_b32 v%d, 3, v%d" % (t1, t1)); e("v_add_u32 v%d, v%d, v%d" % (t0, t0, t1))
        e("v_add_u32 v%d, s%d, v%d" % (vVr0, s_kvb, t0)); e("v_xor_b32 v%d, 64, v%d" % (vVr1, vVr0))
        vWb0, vWb1 = vT[10], vT[11]
        e("v_mov_b32 v%d, v%d" % (vWb0, t0)); e("v_xor_b32 v%d, 64, v%d" % (vWb1, t0))
        e("v_and_b32 v%d, 31, v0" % t0); e("v_lshrrev_b32 v%d, 1, v%d" % (t1, t0)); e("v_and_b32 v%d, 7, v%d" % (t1, t1))
        e("v_lshrrev_b32 v%d, 5, v0" % t4); e("v_xor_b32 v%d, v%d, v%d" % (t1, t1, t4)); e("v_lshlrev_b32 v%d, 4, v%d" % (t1, t1))
        e("v_lshlrev_b32 v%d, 7, v%d" % (t0, t0)); e("v_add_u32 v%d, v%d, v%d" % (vXr[0], t0, t1))
        for j in range(1, 4): e("v_xor_b32 v%d, %d, v%d" % (vXr[j], 32 * j, vXr[0]))
        e("v_xor_b32 v%d, v%d, v%d" % (t1, l4, i15)); e("v_lshlrev_b32 v%d, 4, v%d" % (t1, t1)); e("v_lshlrev_b32 v%d, 9, v%d" % (t0, i15))
        e("v_add_u32 v%d, v%d, v%d" % (t0, t0, t1)); e("v_add_u32 v%d, %d, v%d" % (vQr[0], R, t0))
        for j in range(1, 4): e("v_xor_b32 v%d, %d, v%d" % (vQr[j], 64 * j, vQr[0]))
        e("s_lshl_b32 s6, s%d, 1" % s_w)
        e("v_lshrrev_b32 v%d, 1, v%d" % (t0, l4)); e("v_add_u32 v%d, s6, v%d" % (t0, t0)); e("v_lshrrev_b32 v%d, 1, v%d" % (t1, i15))
        e("v_xor_b32 v%d, v%d, v%d" % (t0, t0, t1)); e("v_lshlrev_b32 v%d, 4, v%d" % (t0, t0))
        e("v_lshlrev_b32 v%d, 7, v%d" % (t1, i15)); e("v_add_u32 v%d, v%d, v%d" % (t0, t0, t1))
        e("v_and_b32 v%d, 1, v%d" % (t1, l4)); e("v_lshlrev_b32 v%d, 3, v%d" % (t1, t1)); e("v_add_u32 v%d, v%d, v%d" % (t0, t0, t1))
        e("v_add_u32 v%d, %d, v%d" % (vPw, R, t0))
        e("s_lshl_b32 s6, s%d, 3" % s_w)
        e("v_xor_b32 v%d, s6, v%d" % (t0, i15)); e("v_lshlrev_b32 v%d, 4, v%d" % (t0, t0))
        e("v_and_b32 v%d, 31, v0" % t1); e("v_lshlrev_b32 v%d, 9, v%d" % (t1, t1)); e("v_add_u32 v%d, v%d, v%d" % (t0, t0, t1))
        e("v_lshrrev_b32 v%d, 5, v0" % t1); e("v_lshlrev_b32 v%d, 3, v%d" % (t1, t1)); e("v_add_u32 v%d, v%d, v%d" % (t0, t0, t1))
        e("v_add_u32 v%d, %d, v%d" % (vQw, R, t0))
        e("v_lshlrev_b32 v%d, 3, v%d" % (t0, l4)); e("v_lshrrev_b32 v%d, 2, v%d" % (t1, i15)); e("v_add_u32 v%d, v%d, v%d" % (t0, t0, t1)); e("v_lshlrev_b32 v%d, 7, v%d" % (t0, t0))
        e("s_lshl_b32 s6, s%d, 1" % s_w)
        e("v_and_b32 v%d, 3, v%d" % (t1, i15)); e("v_lshrrev_b32 v%d, 1, v%d" % (t1, t1)); e("v_add_u32 v%d, s6, v%d" % (t1, t1))
        e("v_lshrrev_b32 v%d, 3, v%d" % (t4, i15)); e("v_and_b32 v%d, 1, v%d" % (t3, l4)); e("v_lshlrev_b32 v%d, 1, v%d" % (t3, t3)); e("v_or_b32 v%d, v%d, v%d" % (t4, t4, t3))
        e("v_lshlrev_b32 v%d, 1, v%d" % (t4, t4)); e("v_xor_b32 v%d, v%d, v%d" % (t1, t1, t4)); e("v_lshlrev_b32 v%d, 4, v%d" % (t1, t1)); e("v_add_u32 v%d, v%d, v%d" % (t0, t0, t1))
        e("v_and_b32 v%d, 1, v%d" % (t1, i15)); e("v_lshlrev_b32 v%d, 3, v%d" % (t1, t1)); e("v_add_u32 v%d, v%d, v%d" % (vWor, t0, t1))
        e("v_lshlrev_b32 v%d, 4, v%d" % (t0, i15)); e("v_add_u32 v%d, %d, v%d" % (vStR, ST, t0))
        e("s_lshl_b32 s6, s%d, 2" % s_w); e("v_add_u32 v%d, s6, v%d" % (vStW, vStR))
        e("v_lshlrev_b32 v%d, 4, v0" % vStO)
        for r in range(96): e("v_mov_b32 v%d, 0" % (vS + r))

        def qacc(dt, qt): return vS + (dt * 3 + qt) * 16
        FA = lambda buf, dt: buf * 20 + dt * 4
        FB = lambda buf, qt: buf * 20 + 8 + qt * 4
        def q_reads(buf, ks, ks4):
            r = []
            for dt in range(2):
                va = vA0 if dt == 0 else vA1
                for jj in range(2):
                    r.append("ds_read_b64_tr_b16 %s, v%d offset:%d" % (ar(FA(buf, dt) + 2 * jj, 2), va, (16 * ks + 4 * jj) * 128))
            for qt in range(3):
                r.append("ds_read_b128 %s, v%d offset:%d" % (ar(FB(buf, qt)), vXa[ks4], qt * 4096))
            return r
        def q_mfmas(buf):
            return ["v_mfma_f32_32x32x16_bf16 %s, %s, %s, %s" % (vr(qacc(dt, qt), 16), ar(FA(buf, dt)), ar(FB(buf, qt)), vr(qacc(dt, qt), 16))
                    for qt in range(3) for dt in range(2)]
        def set_wa(slot):
            return ["v_add_u32 v%d, s%d, v%d" % (vA0, slot, vWb0), "v_add_u32 v%d, s%d, v%d" % (vA1, slot, vWb1)]
        def set_xa(j, slot):
            return ["v_add_u32 v%d, s%d, v%d" % (vXa[j], sT1, vXr[j])]
        p.wait_vm("X", 1); p.wait_vm("W", 1)
        e("s_barrier")
        self.emit(self.stamp())
        e("s_sub_u32 s%d, s%d, s%d" % (sT1, sXc, s_w1k))
        self.emit(set_wa(sWA)); self.emit([set_xa(j, None) for j in range(4)])
        self.emit(q_reads(0, 0, 0))
        def q_body(c, in_loop):
            hasW = in_loop or c < 6
            hasX = in_loop or c < 5
            last = (not in_loop) and c == 6
            if hasW:
                e("s_lshl_b32 s%d, s%d, 19" % (sWoff, s_cc1))
            if hasX:
                e("s_lshl_b32 s%d, s%d, 7" % (sXoff, s_cc2))
            self.emit(q_reads(1, 1, 1))
            self.emit(weave(q_mfmas(0), wdma(0, sWC) if hasW else []))
            p.wait_vm("W", 1 if hasW else 0)
            self.emit(set_wa(sWB))
            self.emit(q_reads(0, 0, 2))
            self.emit(weave(q_mfmas(1), xdma((sXnn,)) if hasX else []))
            self.emit(q_reads(1, 1, 3))
            self.emit(weave(q_mfmas(0), wdma(1, sWA) if hasW else []))
            if not last:
                p.wait_vm("W", 1)
                p.wait_vm("X", 1 if hasX else 0)
                e("s_waitcnt lgkmcnt(0)")
                e("s_barrier")
                self.emit(set_wa(sWC))
                e("s_sub_u32 s%d, s%d, s%d" % (sT1, sXn, s_w1k))
                self.emit([set_xa(j, None) for j in range(4)])
                self.emit(q_reads(0, 0, 0))
            self.emit(q_mfmas(1))
            if not last:
                e("s_mov_b32 s%d, s%d" % (sT0, sWA)); e("s_mov_b32 s%d, s%d" % (sWA, sWC)); e("s_mov_b32 s%d, s%d" % (sWC, sWB)); e("s_mov_b32 s%d, s%d" % (sWB, sT0))
                e("s_mov_b32 s%d, s%d" % (sT0, sXc)); e("s_mov_b32 s%d, s%d" % (sXc, sXn)); e("s_mov_b32 s%d, s%d" % (sXn, sXnn)); e("s_mov_b32 s%d, s%d" % (sXnn, sT0))
                e("s_mov_b32 s%d, s%d" % (s_cc1, s_cc2))
                e("s_add_u32 s%d, s%d, 1" % (s_cc2, s_cc2)); e("s_cmp_eq_u32 s%d, 7" % s_cc2); e("s_cselect_b32 s%d, 0, s%d" % (s_cc2, s_cc2))
        e("s_mov_b32 s%d, 5" % s_cnt)
        p.loop_begin("L_qloop", 5)
        q_body(None, True)
        e("s_sub_u32 s%d, s%d, 1" % (s_cnt, s_cnt)); e("s_cmp_lg_u32 s%d, 0" % s_cnt); e("s_cbranch_scc1 L_qloop")
        p.loop_end()
        q_body(5, False)
        q_body(6, False)
        self.emit(self.stamp())
        e("s_waitcnt lgkmcnt(0)")
        e("s_barrier")
        blk2 = self.kv_block(2)
        def exch_write(src_of, is_acc):
            seq = []
            for dt in range(2):
                for rg in range(4):
                    va = vT[12 + ((dt * 4 + rg) & 1)]
                    seq.append("v_xor_b32 v%d, %d, v%d" % (va, (4 * dt + rg) * 16, vQw))
                    for qt in range(3):
                        b = src_of(dt, qt) + rg * 4
                        ta = vT[14 + 2 * ((dt * 12 + rg * 3 + qt) % 3)]
                        if is_acc:
                            tmp = vT[0:4]
                            unit = ["v_accvgpr_read_b32 v%d, a%d" % (tmp[k], b + k) for k in range(4)]
                            unit += ["v_cvt_pk_bf16_f32 v%d, v%d, v%d" % (ta, tmp[0], tmp[1]), "v_cvt_pk_bf16_f32 v%d, v%d, v%d" % (ta + 1, tmp[2], tmp[3])]
                        else:
                            unit = ["v_cvt_pk_bf16_f32 v%d, v%d, v%d" % (ta, b, b + 1), "v_cvt_pk_bf16_f32 v%d, v%d, v%d" % (ta + 1, b + 2, b + 3)]
                        unit.append("ds_write_b64 v%d, %s offset:%d" % (va, vr(ta, 2), qt * 16384))
                        seq.append(unit)
            return seq
        self.emit(weave(exch_write(qacc, False), blk2))
        e("s_waitcnt lgkmcnt(0)")
        e("s_barrier")
        self.emit(self.stamp())
        QF = lambda t, s: (s * 6 + t) * 4
        KF = lambda i, s: 192 + (i & 1) * 32 + s * 4
        def k_read(i, s):
            slot = SLOT[i % 3]
            base = (vKr1 if s & 1 else vKr0)
            off = slot + (s >> 1) * 2048
            if off >= 65536:
                base = (vA1 if s & 1 else vA0); off -= 65536
            return "ds_read_b128 %s, v%d offset:%d" % (ar(KF(i, s)), base, off)
        def q_read(t, s):
            return "ds_read_b128 %s, v%d offset:%d" % (ar(QF(t, s)), vQr[s & 3], t * 8192 + (s >> 2) * 256)
        def qk_mfma(i, t, s):
            c = "0" if s == 0 else vr(S(i, t))
            return "v_mfma_f32_16x16x32_bf16 %s, %s, %s, %s" % (vr(S(i, t)), ar(KF(i, s)), ar(QF(t, s)), c)
        def max_ops(i):
            r = []
            for t in range(6):
                b = S(i, t)
                if i == 0:
                    r.append("v_max3_f32 v%d, v%d, v%d, v%d" % (vM[t], b, b + 1, b + 2))
                    r.append("v_max_f32 v%d, v%d, v%d" % (vM[t], vM[t], b + 3))
                else:
                    r.append("v_max3_f32 v%d, v%d, v%d, v%d" % (vM[t], vM[t], b, b + 1))
                    r.append("v_max3_f32 v%d, v%d, v%d, v%d" % (vM[t], vM[t], b + 2, b + 3))
            return r
        e("v_add_u32 v%d, 0x10000, v%d" % (vA0, vKr0)); e("v_add_u32 v%d, 0x10000, v%d" % (vA1, vKr1))
        for i in range(8):
            p.wait_vm("B%d" % i)
            nxt = self.kv_block(i + 2) if i >= 1 else []
            fill = list(nxt)
            if i >= 1: fill = weave(fill, max_ops(i - 1)) if fill else max_ops(i - 1)
            if i == 0:
                self.emit([k_read(0, 0)] + [q_read(t, 0) for t in range(6)])
                for s in range(8):
                    if s < 7: self.emit([k_read(0, s + 1)] + [q_read(t, s + 1) for t in range(6)])
                    self.emit([qk_mfma(0, t, s) for t in range(6)])
            else:
                self.emit([k_read(i, s) for s in range(8)])
                mf = [qk_mfma(i, t, s) for s in range(8) for t in range(6)]
                self.emit(weave(mf, fill, 6, 46))
        self.emit(self.stamp())
        blk10 = self.kv_block(10)
        self.emit(max_ops(7))
        seq = []
        for t in range(6):
            a, b = vT[0 + 2 * (t & 1)], vT[1 + 2 * (t & 1)]
            seq += ["v_mov_b32 v%d, v%d" % (a, vM[t]), "v_permlane32_swap_b32 v%d, v%d" % (a, vM[t]), "v_max_f32 v%d, v%d, v%d" % (vM[t], vM[t], a),
                    "v_mov_b32 v%d, v%d" % (a, vM[t]), "v_permlane16_swap_b32 v%d, v%d" % (a, vM[t]), "v_max_f32 v%d, v%d, v%d" % (vM[t], vM[t], a),
                    "ds_write_b32 v%d, v%d offset:%d" % (vStW, vM[t], t * 256)]
        self.emit(seq)
        e("s_waitcnt lgkmcnt(0)")
        e("s_barrier")
        for t in range(6):
            e("ds_read_b128 %s, v%d offset:%d" % (vr(vT[4 * (t % 3)], 4) if False else vr(44 + 4 * (t % 4), 4), vStR, t * 256))
            b = 44 + 4 * (t % 4)
            if t >= 0:
                e("v_max3_f32 v%d, v%d, v%d, v%d" % (vM[t], b, b + 1, b + 2)); e("v_max_f32 v%d, v%d, v%d" % (vM[t], vM[t], b + 3))
                e("v_mul_f32 v%d, s%d, v%d" % (vM[t], s_c, vM[t]))
        for j in range(4): e("v_add_u32 v%d, %d, v%d" % (vXr[j], R, vXr[j]))
        def exp_ops(i):
            us = []
            for t in range(6):
                b = S(i, t)
                tm = [vT[0], vT[1], vT[2], vT[3]] if t % 2 == 0 else [vT[4], vT[5], vT[6], vT[7]]
                pk = vT[8 + 2 * (t % 2)]
                for k in range(4): us.append("v_fma_f32 v%d, v%d, s%d, -v%d" % (tm[k], b + k, s_c, vM[t]))
                for k in range(4): us.append("v_exp_f32 v%d, v%d" % (tm[k], tm[k]))
                if i == 0:
                    us.append("v_add_f32 v%d, v%d, v%d" % (vL[t], tm[0], tm[1]))
                else:
                    us.append("v_add_f32 v%d, v%d, v%d" % (vL[t], vL[t], tm[0])); us.append("v_add_f32 v%d, v%d, v%d" % (vL[t], vL[t], tm[1]))
                us.append("v_cvt_pk_bf16_f32 v%d, v%d, v%d" % (pk, tm[0], tm[1]))
                us.append("v_add_f32 v%d, v%d, v%d" % (vL[t], vL[t], tm[2]))
                us.append("v_cvt_pk_bf16_f32 v%d, v%d, v%d" % (pk + 1, tm[2], tm[3]))
                us.append("v_add_f32 v%d, v%d, v%d" % (vL[t], vL[t], tm[3]))
                us.append("ds_write_b64 v%d, %s offset:%d" % (vPw, vr(pk, 2), (i & 1) * 12288 + t * 2048))
            return us
        self.emit(weave(exp_ops(0), blk10))
        self.emit(self.stamp())
        OA = lambda dt, qt: (dt * 3 + qt) * 16
        VF = lambda buf, dt: 96 + buf * 20 + dt * 4
        PF = lambda buf, qt: 96 + buf * 20 + 8 + qt * 4
        e("v_add_u32 v%d, 0x10000, v%d" % (vA0, vVr0)); e("v_add_u32 v%d, 0x10000, v%d" % (vA1, vVr1))
        def v_reads(i, u, buf):
            slot = SLOT[(8 + i) % 3]
            r = []
            for dt in range(2):
                for jj in range(2):
                    off = slot + (16 * u + 4 * jj) * 128
                    base = vVr1 if dt else vVr0
                    if off >= 65536:
                        base = vA1 if dt else vA0; off -= 65536
                    r.append("ds_read_b64_tr_b16 %s, v%d offset:%d" % (ar(VF(buf, dt) + 2 * jj, 2), base, off))
            for qt in range(3):
                r.append("ds_read_b128 %s, v%d offset:%d" % (ar(PF(buf, qt)), vXr[u], (i & 1) * 12288 + qt * 4096))
            return r
        def pv_mfmas(i, u, buf):
            r = []
            for qt in range(3):
                for dt in range(2):
                    c = "0" if (i == 0 and u == 0) else ar(OA(dt, qt), 16)
                    r.append("v_mfma_f32_32x32x16_bf16 %s, %s, %s, %s" % (ar(OA(dt, qt), 16), ar(VF(buf, dt)), ar(PF(buf, qt)), c))
            return r
        def wo_block(ngsrc, slot):
            us = [lambda: p.group("WO")]
            for i in range(8):
                m0 = (s_w1k, slot + i * 4096) if isinstance(slot, int) else (slot[0], i * 4096)
                us.append(self.dma(vWo, SRD_O, (ngsrc, i * 32 * 896), m0, "WO", cfg.aux_wo))
            return us
        if cfg.rot:
            e("s_cmp_eq_u32 s%d, 7" % s_b); e("s_cselect_b32 s%d, 0, s%d" % (s_ng, s_b))
        else:
            e("s_mov_b32 s%d, 0" % s_ng)
        def inc7(dst, src):
            return ["s_add_u32 s%d, s%d, 1" % (dst, src), "s_cmp_eq_u32 s%d, 7" % dst, "s_cselect_b32 s%d, 0, s%d" % (dst, dst)]
        for i in range(8):
            e("s_waitcnt lgkmcnt(0)")
            e("s_barrier")
            p.wait_vm("B%d" % (8 + i))
            fill = []
            if i + 1 < 8: fill = exp_ops(i + 1)
            dm = []
            if 1 <= i <= 5: dm = self.kv_block(8 + i + 2)
            if i == 6:
                dm = ["s_lshl_b32 s%d, s%d, 7" % (s_wooff, s_ng)] + wo_block(s_wooff, SLOT[1])
            if i == 7:
                dm = inc7(s_ng2, s_ng) + ["s_lshl_b32 s%d, s%d, 7" % (s_wooff, s_ng2)] + wo_block(s_wooff, SLOT[2])
            if i == 6:
                red = []
                for t in range(6):
                    a = vT[12 + (t & 1)]
                    red += ["v_mov_b32 v%d, v%d" % (a, vL[t]), "v_permlane32_swap_b32 v%d, v%d" % (a, vL[t]), "v_add_f32 v%d, v%d, v%d" % (vL[t], vL[t], a),
                            "v_mov_b32 v%d, v%d" % (a, vL[t]), "v_permlane16_swap_b32 v%d, v%d" % (a, vL[t]), "v_add_f32 v%d, v%d, v%d" % (vL[t], vL[t], a),
                            "ds_write_b32 v%d, v%d offset:%d" % (vStW, vL[t], 2048 + t * 256)]
                fill = fill + red
            if i == 7:
                for t in range(6):
                    b = 44 + 4 * (t % 4)
                    fill += ["ds_read_b128 %s, v%d offset:%d" % (vr(b, 4), vStR, 2048 + t * 256),
                             ["v_add_f32 v%d, v%d, v%d" % (b, b, b + 1), "v_add_f32 v%d, v%d, v%d" % (b + 2, b + 2, b + 3),
                              "v_add_f32 v%d, v%d, v%d" % (b, b, b + 2), "v_rcp_f32 v%d, v%d" % (vM[t], b)]]
            allfill = weave(fill, dm) if fill else dm
            self.emit(v_reads(i, 0, 0))
            mf = []
            for u in range(4):
                if u < 3: mf.append(v_reads(i, u + 1, (u + 1) & 1))
                mf += pv_mfmas(i, u, u & 1)
            self.emit(weave(mf, allfill, 1, len(mf) - 1))
        self.emit(self.stamp())
        e("s_waitcnt lgkmcnt(0)")
        e("s_barrier")
        self.emit(exch_write(OA, True))
        p.wait_vm("WO", 1)
        e("s_waitcnt lgkmcnt(0)")
        e("s_barrier")
        self.emit(self.stamp())
        OF = QF
        WF = lambda s: 192 + s * 4
        ACC = lambda t: vS + t * 4
        def wo_reads(s, base):
            return ["ds_read_b64_tr_b16 %s, v%d offset:%d" % (ar(WF(s) + 2 * jj, 2), base, (32 * s + 4 * jj) * 128) for jj in range(2)]
        e("v_add_u32 v%d, %d, v%d" % (vA0, SLOT[1], vWor))
        for s in range(8):
            self.emit(wo_reads(s, vA0))
            self.emit([q_read(t, s) for t in range(6)])
        e("s_mov_b32 s%d, %d" % (s_slotN, SLOT[2]))
        e("s_add_u32 s%d, s%d, %d" % (s_slotD, s_w1k, SLOT[0]))
        e("s_mov_b32 s%d, %d" % (s_slotR, SLOT[1]))
        e("s_mov_b32 s%d, 0x40000000" % s_stprev)
        e("s_mov_b32 s%d, 0" % s_cnt)
        def epi(t):
            b = ACC(t)
            pk = vT[12 + 2 * (t & 1)] if False else (vT[8] + 4 * ((t >> 1) & 1) + 2 * (t & 1))
            u = ["v_mul_f32 v%d, v%d, v%d" % (b + k, vM[t], b + k) for k in range(4)]
            u += ["v_cvt_pk_bf16_f32 v%d, v%d, v%d" % (pk, b, b + 1), "v_cvt_pk_bf16_f32 v%d, v%d, v%d" % (pk + 1, b + 2, b + 3)]
            return u
        def st(pair, sbase):
            pk = vT[8] + 4 * (pair & 1)
            return ["s_add_u32 s%d, s%d, %d" % (sSoff, sbase, pair * 1024),
                    Ins("buffer_store_dwordx4 %s, v%d, %s, s%d offen %s" % (vr(pk, 4), vStO, srd(SRD_P), sSoff, cfg.aux_st), "ST")]
        def tile(t):
            return ["v_mfma_f32_16x16x32_bf16 %s, %s, %s, %s" % (vr(ACC(t)), ar(WF(s)), ar(OF(t, s)), "0" if s == 0 else vr(ACC(t))) for s in range(8)]
        p.loop_begin("L_oloop", 7)
        e("s_lshl_b32 s%d, s%d, 2" % (s_stoff, s_ng)); e("s_add_u32 s%d, s%d, s%d" % (s_stoff, s_stoff, s_w)); e("s_mul_i32 s%d, s%d, 3072" % (s_stoff, s_stoff))
        self.emit(inc7(sT1, s_ng2))
        e("s_lshl_b32 s%d, s%d, 7" % (s_wooff, sT1)); e("s_cmp_ge_u32 s%d, 5" % s_cnt); e("s_cselect_b32 s%d, 0x40000000, s%d" % (s_wooff, s_wooff))
        dmas = wo_block(s_wooff, (s_slotD,))
        self.emit(dmas[0:1])
        d = dmas[1:]
        self.emit(weave(tile(0), epi(4) + d[0:2], 0, 8))
        self.emit(weave(tile(1), epi(5) + [st(2, s_stprev)] + d[2:4], 0, 8))
        self.emit(weave(tile(2), epi(0) + d[4:6], 0, 8))
        self.emit(weave(tile(3), epi(1) + [st(0, s_stoff)] + d[6:8], 0, 8))
        self.emit(weave(tile(4), epi(2), 0, 8))
        p.wait_vm("WO", 1)
        e("s_barrier")
        e("v_add_u32 v%d, s%d, v%d" % (vA0, s_slotN, vWor))
        t5 = tile(5)
        seq = []
        ep3 = epi(3) + [st(1, s_stoff)]
        for s in range(8):
            seq.append(t5[s])
            seq.append(wo_reads(s, vA0))
            if s < len(ep3): seq.append(ep3[s])
        self.emit(seq)
        e("s_mov_b32 s%d, s%d" % (s_stprev, s_stoff))
        e("s_mov_b32 s%d, s%d" % (s_ng, s_ng2)); e("s_mov_b32 s%d, s%d" % (s_ng2, sT1))
        e("s_sub_u32 s%d, s%d, s%d" % (sT0, s_slotD, s_w1k))
        e("s_add_u32 s%d, s%d, s%d" % (s_slotD, s_slotR, s_w1k))
        e("s_mov_b32 s%d, s%d" % (s_slotR, s_slotN)); e("s_mov_b32 s%d, s%d" % (s_slotN, sT0))
        e("s_add_u32 s%d, s%d, 1" % (s_cnt, s_cnt)); e("s_cmp_lt_u32 s%d, 7" % s_cnt); e("s_cbranch_scc1 L_oloop")
        p.loop_end()
        self.emit(epi(4)); self.emit(epi(5)); self.emit(st(2, s_stprev))
        if cfg.stamps:
            self.emit(self.stamp())
            e("s_waitcnt vmcnt(0)")
            self.emit(self.stamp())
        e("L_k1_end:")
        e("s_endpgm")
        p.resolve()
        return p.text()

def k2_text(cfg):
    p = Prog(); e = p.e
    NU = 1344
    waves = 4
    e("s_lshl_b32 s3, s2, 2")
    e("v_lshrrev_b32 v1, 6, v0"); e("v_and_b32 v0, 63, v0"); e("v_readfirstlane_b32 s4, v1")
    e("s_load_dwordx2 s[8:9], s[0:1], 96")
    e("s_load_dwordx2 s[12:13], s[0:1], 80")
    e("s_add_u32 s3, s3, s4")
    e("s_cmp_ge_u32 s3, %d" % NU); e("s_cbranch_scc1 L_k2_end")
    e("s_mul_hi_u32 s5, s3, %d" % ((1 << 32) // 84 + 1)); e("s_mul_i32 s6, s5, 84"); e("s_sub_u32 s6, s3, s6")
    e("s_mul_hi_u32 s7, s6, %d" % ((1 << 32) // 12 + 1)); e("s_mul_i32 s14, s7, 12"); e("s_sub_u32 s14, s6, s14")
    e("s_mul_hi_u32 s15, s14, %d" % ((1 << 32) // 3 + 1)); e("s_mul_i32 s16, s15, 3"); e("s_sub_u32 s16, s14, s16")
    e("s_waitcnt lgkmcnt(0)")
    e("s_mul_i32 s17, s5, %d" % (PART * 16))
    e("s_add_u32 s8, s8, s17"); e("s_addc_u32 s9, s9, 0"); e("s_mov_b32 s10, %d" % (PART * 16)); e("s_mov_b32 s11, 0x20000")
    e("s_lshl_b32 s18, s6, 10")
    e("v_lshlrev_b32 v2, 4, v0")
    for h in range(16):
        e("s_add_u32 s19, s18, %d" % (h * PART))
        e("buffer_load_dwordx4 v[%d:%d], v2, s[8:11], s19 offen %s" % (16 + 4 * h, 19 + 4 * h, cfg.aux_k2))
    e("s_and_b32 s20, s5, 7"); e("s_lshr_b32 s21, s5, 3")
    e("s_mul_i32 s20, s20, %d" % (96 * 1792)); e("s_mul_i32 s21, s21, 896"); e("s_add_u32 s20, s20, s21")
    e("s_lshl_b32 s21, s7, 7"); e("s_add_u32 s20, s20, s21"); e("s_lshl_b32 s21, s15, 5"); e("s_add_u32 s20, s20, s21")
    e("s_mul_i32 s21, s16, %d" % (32 * 1792)); e("s_add_u32 s20, s20, s21")
    e("s_mov_b32 s14, %d" % (8 * 96 * 1792)); e("s_mov_b32 s15, 0x20000")
    e("v_and_b32 v3, 15, v0"); e("v_mul_u32_u24 v3, 1792, v3"); e("v_lshrrev_b32 v4, 4, v0"); e("v_lshlrev_b32 v4, 3, v4"); e("v_add_u32 v3, v3, v4")
    acc = list(range(4, 12))
    for h in range(16):
        b = 16 + 4 * h
        for k in range(4):
            if h == 0:
                e("v_lshlrev_b32 v%d, 16, v%d" % (acc[2 * k], b + k)); e("v_and_b32 v%d, 0xffff0000, v%d" % (acc[2 * k + 1], b + k))
            else:
                e("v_lshlrev_b32 v12, 16, v%d" % (b + k)); e("v_and_b32 v13, 0xffff0000, v%d" % (b + k))
                e("v_add_f32 v%d, v%d, v12" % (acc[2 * k], acc[2 * k])); e("v_add_f32 v%d, v%d, v13" % (acc[2 * k + 1], acc[2 * k + 1]))
    for k in range(4): e("v_cvt_pk_bf16_f32 v%d, v%d, v%d" % (12 + k, acc[2 * k], acc[2 * k + 1]))
    e("buffer_store_dwordx2 v[12:13], v3, s[12:15], s20 offen")
    e("s_add_u32 s20, s20, %d" % (16 * 1792))
    e("buffer_store_dwordx2 v[14:15], v3, s[12:15], s20 offen")
    e("L_k2_end:")
    e("s_endpgm")
    p.resolve()
    return p.text()

def desc(name, vg, acc, sg=102):
    return """.amdhsa_kernel %s
  .amdhsa_next_free_vgpr %d
  .amdhsa_next_free_sgpr %d
  .amdhsa_accum_offset %d
  .amdhsa_group_segment_fixed_size 0
  .amdhsa_kernarg_size 104
  .amdhsa_user_sgpr_count 2
  .amdhsa_user_sgpr_kernarg_segment_ptr 1
  .amdhsa_system_sgpr_workgroup_id_x 1
  .amdhsa_float_denorm_mode_32 3
.end_amdhsa_kernel
""" % (name, vg, sg, acc)

HEAD = open("concat_heads__gqa_block_cached__mha_block_cached__near_ridge.s.ref").read().split("; Override launch geometry")[0] \
    if __import__("os").path.exists("concat_heads__gqa_block_cached__mha_block_cached__near_ridge.s.ref") else ""

def generate(cfg):
    k1 = K1(cfg).build()
    k2 = k2_text(cfg)
    out = HEAD
    out += "; @launch kernel=attn_main_kernel grid=(256,1,1) block=(256,1,1) lds=163840\n"
    out += "; @launch kernel=head_reduce_kernel grid=(%d,1,1) block=(256,1,1) lds=0\n" % cfg.k2_wgs
    for i in range(cfg.extra_empty):
        out += "; @launch kernel=noop_kernel grid=(1,1,1) block=(64,1,1) lds=0\n"
    out += '.amdgcn_target "amdgcn-amd-amdhsa--gfx950"\n.text\n'
    ks = [("attn_main_kernel", k1), ("head_reduce_kernel", k2)]
    if cfg.extra_empty: ks.append(("noop_kernel", "s_endpgm"))
    for name, body in ks:
        out += ".globl %s\n.p2align 8\n.type %s,@function\n%s:\n%s\n" % (name, name, name, body)
    out += '.section .rodata,"a"\n.p2align 6\n' + desc("attn_main_kernel", 512, 256) + ".p2align 6\n" + desc("head_reduce_kernel", 80, 80, 32)
    if cfg.extra_empty: out += ".p2align 6\n" + desc("noop_kernel", 8, 8, 16)
    return out

if __name__ == "__main__":
    kw = {}
    for a in sys.argv[2:]:
        k, v = a.split("=", 1)
        kw[k] = eval(v)
    txt = generate(Cfg(**kw))
    open(sys.argv[1], "w").write(txt)
    print("wrote", sys.argv[1], len(txt), "bytes,", txt.count("\n"), "lines")
```

```python
import re

REG_RE = re.compile(r'(?<![\w.])([vas])\[(\d+):(\d+)\]|(?<![\w.])([vas])(\d+)(?![\w\[])')

def regs_of(op):
    out = []
    for m in REG_RE.finditer(op):
        if m.group(1):
            out += [(m.group(1), i) for i in range(int(m.group(2)), int(m.group(3)) + 1)]
        else:
            out.append((m.group(4), int(m.group(5))))
    if re.search(r'\bvcc\b', op): out.append(('x', 'vcc'))
    if re.search(r'\bm0\b', op): out.append(('x', 'm0'))
    if re.search(r'\bexec\b', op): out.append(('x', 'exec'))
    return out

TRANS = ('v_exp_f32', 'v_log_f32', 'v_rcp_f32', 'v_rsq_f32', 'v_sqrt_f32', 'v_sin_f32', 'v_cos_f32')

class Ins:
    __slots__ = ('text', 'mn', 'kind', 'defs', 'uses', 'tag', 'pre_nop', 'pre_lgkm', 'pre_vm', 'meta', 'passes')
    def __init__(self, text, tag=None, meta=None):
        self.text = text
        self.tag = tag
        self.meta = meta
        self.pre_nop = 0
        self.pre_lgkm = None
        self.pre_vm = None
        self.passes = 0
        t = text.split(';')[0].strip()
        parts = t.split(None, 1)
        self.mn = mn = parts[0] if parts else ''
        ops = [o.strip() for o in parts[1].split(',')] if len(parts) > 1 else []
        self.defs, self.uses = set(), set()
        k = 'other'
        if mn.endswith(':'):
            k = 'label'
        elif mn.startswith('v_mfma'):
            k = 'mfma'
            self.defs = set(regs_of(ops[0]))
            for o in ops[1:]: self.uses |= set(regs_of(o))
            self.passes = 8 if '32x32' in mn else 4
            self.meta = dict(self.meta or {}, A=set(regs_of(ops[1])), B=set(regs_of(ops[2])), C=set(regs_of(ops[3])))
        elif mn.startswith('ds_read'):
            k = 'ds_read'
            self.defs = set(regs_of(ops[0]))
            for o in ops[1:]: self.uses |= set(regs_of(o))
        elif mn.startswith('ds_write'):
            k = 'ds_write'
            for o in ops: self.uses |= set(regs_of(o))
        elif mn.startswith('buffer_load') or mn.startswith('global_load'):
            if re.search(r'\blds\b', t):
                k = 'dma'
                for o in ops: self.uses |= set(regs_of(o))
                self.uses.add(('x', 'm0'))
            else:
                k = 'vload'
                self.defs = set(regs_of(ops[0]))
                for o in ops[1:]: self.uses |= set(regs_of(o))
        elif mn.startswith('buffer_store') or mn.startswith('global_store') or mn.startswith('buffer_atomic') or mn.startswith('global_atomic'):
            k = 'vstore'
            for o in ops: self.uses |= set(regs_of(o))
            if mn.startswith('buffer_store'): self.meta = dict(self.meta or {}, data=set(regs_of(ops[0])))
            elif mn.startswith('global_store'): self.meta = dict(self.meta or {}, data=set(regs_of(ops[1])))
        elif mn.startswith('s_load') or mn.startswith('s_memtime') or mn.startswith('s_memrealtime'):
            k = 'smem'
            self.defs = set(regs_of(ops[0]))
            for o in ops[1:]: self.uses |= set(regs_of(o))
        elif mn in ('s_waitcnt', 's_nop', 's_barrier', 's_endpgm', 's_setprio', 's_sleep'):
            k = mn
        elif mn.startswith('s_cbranch') or mn == 's_branch':
            k = 'branch'
        elif mn.startswith('s_cmp'):
            k = 'salu'
            for o in ops: self.uses |= set(regs_of(o))
        elif mn.startswith('s_'):
            k = 'salu'
            self.defs = set(regs_of(ops[0]))
            for o in ops[1:]: self.uses |= set(regs_of(o))
            if 'saveexec' in mn: self.defs.add(('x', 'exec'))
        elif mn.startswith('v_'):
            k = 'valu'
            if mn.startswith('v_cmp'):
                self.defs = set(regs_of(ops[0]))
                for o in ops[1:]: self.uses |= set(regs_of(o))
            elif mn.startswith('v_permlane') and 'swap' in mn:
                self.defs = set(regs_of(ops[0])) | set(regs_of(ops[1]))
                self.uses = set(self.defs)
            else:
                self.defs = set(regs_of(ops[0]))
                for o in ops[1:]: self.uses |= set(regs_of(o))
                if mn.startswith('v_fmac') or mn.startswith('v_dot2c'): self.uses |= self.defs
                if mn.startswith('v_add_co') or mn.startswith('v_addc_co') or mn.startswith('v_sub_co'):
                    self.defs |= set(regs_of(ops[1]))
                if mn.startswith('v_cndmask') and len(ops) == 3: self.uses.add(('x', 'vcc'))
        self.kind = k

class Marker:
    def __init__(self, what, name=None, back=0):
        self.what, self.name, self.back = what, name, back
        self.n = None
        self.kind = 'marker'

class Loop:
    def __init__(self, label, trips):
        self.label, self.trips, self.body = label, trips, []
        self.kind = 'loop'

class Prog:
    def __init__(self):
        self.items = []
        self.stack = [self.items]
    def e(self, text, tag=None):
        for line in text.split('\n'):
            line = line.strip()
            if not line or line.startswith(';'):
                continue
            self.stack[-1].append(Ins(line, tag))
    def raw(self, ins):
        self.stack[-1].append(ins)
    def group(self, name):
        self.stack[-1].append(Marker('group', name))
    def wait_vm(self, name, back=0):
        self.stack[-1].append(Marker('waitvm', name, back))
    def wait_vm_all(self):
        self.e("s_waitcnt vmcnt(0)")
    def loop_begin(self, label, trips):
        l = Loop(label, trips)
        self.stack[-1].append(l)
        self.stack.append(l.body)
        return l
    def loop_end(self):
        self.stack.pop()

    def trace(self, items=None):
        out = []
        for it in (self.items if items is None else items):
            if it.kind == 'loop':
                for _ in range(it.trips):
                    out += self.trace(it.body)
            else:
                out.append(it)
        return out

    def resolve(self):
        tr = self.trace()
        changed = True
        rounds = 0
        while changed:
            changed = False
            rounds += 1
            assert rounds < 20
            changed |= self._pass_waits(tr)
            changed |= self._pass_hazards(tr)

    def _pass_waits(self, tr):
        changed = False
        lg = []
        vm = []
        inst = {}
        def apply_lg(n):
            del lg[:max(0, len(lg) - n)]
        def apply_vm(n):
            del vm[:max(0, len(vm) - n)]
        for it in tr:
            if it.kind == 'marker':
                if it.what == 'group':
                    inst[it.name] = inst.get(it.name, 0) + 1
                elif it.what == 'waitvm':
                    target = inst.get(it.name, 0) - it.back
                    idx = -1
                    for i, (o, g, n) in enumerate(vm):
                        if g == it.name and n <= target: idx = i
                    need = 63 if idx < 0 else min(63, len(vm) - 1 - idx)
                    if it.n is None or need < it.n:
                        it.n = need; changed = True
                    if it.n < 63: apply_vm(it.n)
                continue
            if it.kind == 'label' or it.kind == 'loop': continue
            if it.kind == 's_waitcnt':
                m = re.search(r'lgkmcnt\((\d+)\)', it.text)
                if m: apply_lg(int(m.group(1)))
                m = re.search(r'vmcnt\((\d+)\)', it.text)
                if m: apply_vm(int(m.group(1)))
                continue
            touched = it.defs | it.uses
            need = None
            for i, o in enumerate(lg):
                if o.kind in ('ds_read', 'smem') and (o.defs & touched):
                    n = 0 if o.kind == 'smem' or any(x.kind == 'smem' for x in lg) else len(lg) - 1 - i
                    need = n if need is None else min(need, n)
            if need is not None:
                need = min(need, 15)
                if it.pre_lgkm is None or need < it.pre_lgkm:
                    it.pre_lgkm = need; changed = True
            if it.pre_lgkm is not None: apply_lg(it.pre_lgkm)
            need = None
            for i, (o, g, n) in enumerate(vm):
                if o.kind == 'vload' and (o.defs & touched):
                    k = len(vm) - 1 - i
                    need = k if need is None else min(need, k)
            if need is not None:
                need = min(need, 63)
                if it.pre_vm is None or need < it.pre_vm:
                    it.pre_vm = need; changed = True
            if it.pre_vm is not None: apply_vm(it.pre_vm)
            if it.kind in ('ds_read', 'ds_write', 'smem'):
                lg.append(it)
            if it.kind in ('dma', 'vload', 'vstore') and it.tag != 'nocount':
                vm.append((it, it.tag, inst.get(it.tag, 0)))
                assert len(vm) <= 63, "more than 63 outstanding vmem ops at: " + it.text
        return changed

    def _pass_hazards(self, tr):
        changed = False
        hist = []
        slot = 0
        last = {}
        mfma_w = {}
        mfma_c = {}
        valu_w = {}
        trans_w = {}
        valu_sw = {}
        m0_w = -100
        store_data = {}
        exec_w = -100
        dot_w = {}
        for it in tr:
            if it.kind in ('marker', 'label', 'loop'): continue
            req = 0
            def need(producer_slot, ws):
                nonlocal req
                req = max(req, producer_slot + 1 + ws)
            k = it.kind
            if k == 'mfma':
                for r in it.uses:
                    if r in valu_w: need(valu_w[r], 2)
                AB = it.meta['A'] | it.meta['B']
                for r in AB:
                    if r in mfma_w:
                        s, p, d = mfma_w[r]; need(s, {4: 8, 8: 12}[p])
                C = it.meta['C']
                for r in C:
                    if r in mfma_w:
                        s, p, d = mfma_w[r]
                        if d == frozenset(C) and p == it.passes: pass
                        else: need(s, {4: 6, 8: 10}[p])
                for r in it.defs:
                    if r in mfma_w:
                        s, p, d = mfma_w[r]
                        if not (d == frozenset(it.defs) and p == it.passes): need(s, {4: 8, 8: 12}[p])
                if exec_w > -100: need(exec_w, 4)
            elif k in ('valu', 'ds_read', 'ds_write', 'dma', 'vload', 'vstore'):
                for r in (it.uses | it.defs):
                    if r in mfma_w:
                        s, p, d = mfma_w[r]; need(s, {4: 8, 8: 12}[p])
                if k == 'valu' or k in ('ds_read', 'vload'):
                    for r in it.defs:
                        if r in mfma_c and k == 'valu':
                            s, p = mfma_c[r]; need(s, {4: 3, 8: 7}[p])
                        if r in store_data: need(store_data[r], 2 if k == 'valu' else 1)
                if k in ('valu', 'ds_write', 'vstore'):
                    isdot = it.mn.startswith('v_dot2c')
                    for r in (it.uses | it.defs):
                        if r in dot_w and not (isdot and r in it.defs): need(dot_w[r], 3)
                if k == 'valu':
                    if it.mn not in TRANS:
                        for r in it.uses:
                            if r in trans_w: need(trans_w[r], 1)
                    else:
                        for r in it.uses:
                            if r in trans_w: need(trans_w[r], 1)
                    for r in it.uses:
                        if r in valu_sw:
                            need(valu_sw[r], 4 if it.mn.startswith(('v_readlane', 'v_writelane')) else 2)
                    if it.mn.startswith(('v_readfirstlane', 'v_readlane')):
                        for r in it.uses:
                            if r in valu_w: need(valu_w[r], 1)
                    if it.mn.startswith('v_permlane') or 'dpp' in it.text or 'row_' in it.text or 'quad_perm' in it.text:
                        for r in it.uses:
                            if r in valu_w: need(valu_w[r], 2)
                if k in ('dma', 'vload', 'vstore'):
                    for r in it.uses:
                        if r in valu_sw: need(valu_sw[r], 5)
                    if k == 'dma': need(m0_w, 1)
                if k in ('ds_write', 'vstore', 'ds_read', 'dma', 'vload'):
                    for r in it.uses:
                        if r in trans_w: need(trans_w[r], 1)
            elif k == 'salu':
                for r in it.uses:
                    if r in valu_sw: need(valu_sw[r], 4)
            pre = (1 if it.pre_lgkm is not None or it.pre_vm is not None else 0)
            if it.pre_lgkm is not None and it.pre_vm is not None: pre = 1
            have = slot + pre + it.pre_nop
            if req > have:
                it.pre_nop += req - have; changed = True
                have = req
            slot = have
            if k == 'mfma':
                for r in it.defs:
                    mfma_w[r] = (slot, it.passes, frozenset(it.defs)); valu_w.pop(r, None); trans_w.pop(r, None)
                for r in it.meta['C']: mfma_c[r] = (slot, it.passes)
            elif k == 'valu':
                for r in it.defs:
                    if r[0] == 's' or r == ('x', 'vcc'): valu_sw[r] = slot
                    elif r == ('x', 'exec'): exec_w = slot
                    else:
                        valu_w[r] = slot; mfma_w.pop(r, None)
                        if it.mn.startswith('v_dot2c'): dot_w[r] = slot
                        else: dot_w.pop(r, None)
                        if it.mn in TRANS: trans_w[r] = slot
                        else: trans_w.pop(r, None)
            elif k in ('ds_read', 'vload'):
                for r in it.defs:
                    mfma_w.pop(r, None); valu_w.pop(r, None); trans_w.pop(r, None)
            elif k == 'salu':
                for r in it.defs:
                    valu_sw.pop(r, None)
                    if r == ('x', 'm0'): m0_w = slot
            elif k == 'vstore' and it.meta and 'data' in it.meta and ('x4' in it.mn or 'x3' in it.mn):
                for r in it.meta['data']: store_data[r] = slot
            if k == 's_nop':
                n = int(it.text.split()[1]); slot += n + 1
            else:
                slot += 1
        return changed

    def text(self, items=None, out=None):
        top = out is None
        if top: out = []
        for it in (self.items if items is None else items):
            if it.kind == 'loop':
                out.append(it.label + ':')
                self.text(it.body, out)
            elif it.kind == 'marker':
                if it.what == 'waitvm' and it.n is not None and it.n < 63:
                    out.append('s_waitcnt vmcnt(%d)' % it.n)
            else:
                w = []
                if it.pre_vm is not None: w.append('vmcnt(%d)' % it.pre_vm)
                if it.pre_lgkm is not None: w.append('lgkmcnt(%d)' % it.pre_lgkm)
                if w: out.append('s_waitcnt ' + ' '.join(w))
                n = it.pre_nop
                while n > 0:
                    c = min(n, 16); out.append('s_nop %d' % (c - 1)); n -= c
                out.append(it.text)
        if top: return '\n'.join(out)
```

```python
import sys, os
from asmgen import Prog, Ins

KNAME = "concat_heads__gqa_block_cached__mha_block_cached__near_ridge_kernel"

class Cfg:
    aux_kv = "nt"
    aux_w = ""
    aux_x = ""
    aux_wo = ""
    aux_st = "sc1"
    aux_rd = "sc1"
    stamps = False
    dbg = False
    dbg_wg = 128
    rot = True
    fuse = True
    fine = False
    early_dma = True
    def __init__(self, **kw):
        for k, v in kw.items():
            assert hasattr(Cfg, k), k
            setattr(self, k, v)

SLOT = [0, 32768, 65536]
WB = 65536
XB = 114688
R = 98304
ST = 159744
PART = 86016
TS_OFF = 64 << 20
FLAG_OFF = 32 << 20

vK0, vK1, vV, vW, vX = 1, 2, 3, 4, 5
vKr0, vKr1 = 6, 7
vVr0, vVr1 = 8, 9
vXr = [10, 11, 12, 13]
vQr = [14, 15, 16, 17]
vPw = 18
vQw = 19
vWor = 20
vStW, vStR = 21, 22
vStO = 23
vM = [24, 25, 26, 27, 28, 29]
vL = [30, 31, 32, 33, 34, 35]
vWoD = list(range(160, 168))
vA0, vA1 = 38, 39
vNonce = 40
vT = list(range(44, 64))
vS = 64

def S(i, t): return vS + (i * 6 + t) * 4

s_w = 3
sT0, sSoff, sT1, sT2 = 4, 5, 6, 7
SRD_X, SRD_W, SRD_K, SRD_V, SRD_O, SRD_P = 8, 12, 16, 20, 24, 28
s_c = 32
s_kvb = 33
s_wrb = 34
s_w1k = 35
sCW = list(range(36, 43))
sCX = list(range(44, 51))
s_ws = 58
s_cnt = 60
s_ng, s_ng2, s_slotR, s_slotN, s_slotD, s_stoff, s_stprev, s_wooff = 71, 72, 73, 74, 75, 76, 77, 78
s_b, s_hh, s_h, s_br = 79, 80, 81, 82
s_G = 83
s_tsoff = 88
s_nonce = 94
SRD_G, SRD_OUT = 64, 68
SRD_OUT = 52
s_dbgp = 96
s_outp = 98

def srd(n): return "s[%d:%d]" % (n, n + 3)
def vr(n, c=4): return "v[%d:%d]" % (n, n + c - 1)
def ar(n, c=4): return "a[%d:%d]" % (n, n + c - 1)

def weave(main, fill, lo=0, hi=None):
    if hi is None: hi = len(main)
    out = []
    n = hi - lo
    k = 0
    for i, m in enumerate(main):
        out.append(m)
        if lo <= i < hi:
            tgt = min(len(fill), -(-(len(fill) * (i - lo + 1)) // n))
            while k < tgt:
                out.append(fill[k]); k += 1
    while k < len(fill):
        out.append(fill[k]); k += 1
    return out

def merge(a, b):
    if not a: return list(b)
    if not b: return list(a)
    return weave(a, b) if len(a) >= len(b) else weave(b, a)

class K1:
    def __init__(self, cfg):
        self.cfg = cfg
        self.p = Prog()
        self.nstamp = 0
        self.vTs = 62

    def emit(self, seq):
        for u in seq:
            if isinstance(u, (list, tuple)): self.emit(u)
            elif callable(u): u()
            elif isinstance(u, Ins): self.p.raw(u)
            else: self.p.e(u)

    def dma(self, vaddr, srdn, soff, m0, tag, aux, imm=0):
        u = []
        if m0 is not None:
            if isinstance(m0, int): u.append("s_mov_b32 m0, %d" % m0)
            else: u.append("s_add_u32 m0, s%d, %d" % m0 if m0[1] else "s_mov_b32 m0, s%d" % m0[0])
        if isinstance(soff, int):
            u.append("s_mov_b32 s%d, %d" % (sSoff, soff)); sreg = sSoff
        elif soff[1] is None:
            sreg = soff[0]
            if m0 is not None: u.append("s_nop 0")
        else:
            u.append("s_add_u32 s%d, s%d, %d" % (sSoff, soff[0], soff[1])); sreg = sSoff
        u.append(Ins("buffer_load_dwordx4 v%d, %s, s%d offen %s%s lds" % (vaddr, srd(srdn), sreg, ("offset:%d " % imm) if imm else "", aux), tag))
        return u

    def stamp(self):
        cfg = self.cfg
        if cfg.dbg:
            i = self.nstamp; self.nstamp += 1
            lab = "L_st%d" % i
            return ["s_cmp_lg_u32 s89, 0", "s_cbranch_scc1 %s" % lab,
                    "s_memrealtime s[86:87]", "s_waitcnt lgkmcnt(0)",
                    "v_mov_b32 v%d, s86" % self.vTs, "v_mov_b32 v%d, %d" % (self.vTs + 1, 4 * (i + 1)),
                    Ins("global_store_dword v%d, v%d, s[100:101]" % (self.vTs + 1, self.vTs), 'nocount'), lab + ":"]
        if not cfg.stamps: return []
        i = self.nstamp; self.nstamp += 1
        return ["s_memrealtime s[86:87]", "s_memtime s[92:93]", "s_waitcnt lgkmcnt(0)",
                "v_mov_b32 v%d, s86" % self.vTs, "v_mov_b32 v%d, s%d" % (self.vTs + 1, s_tsoff),
                Ins("global_store_dword v%d, v%d, s[84:85] offset:%d" % (self.vTs + 1, self.vTs, 4 * i), 'nocount'),
                "v_mov_b32 v%d, s92" % self.vTs,
                Ins("global_store_dword v%d, v%d, s[84:85] offset:%d" % (self.vTs + 1, self.vTs, 128 + 4 * i), 'nocount')]

    @staticmethod
    def kv_slot(n):
        if n < 2: return SLOT[n]
        if n < 8: return SLOT[(n - 2) % 3]
        return SLOT[(n - 8) % 3]
    def kv_block(self, n):
        cfg = self.cfg
        slot = self.kv_slot(n)
        tag = "B%d" % n
        us = [lambda: self.p.group(tag)]
        if n < 8:
            for m in range(4):
                for kh in range(2):
                    us.append(self.dma(vK1 if kh else vK0, SRD_K, n * 32768 + m * 128, (s_kvb, slot + (m * 2 + kh) * 1024), tag, cfg.aux_kv))
        else:
            for m in range(8):
                us.append(self.dma(vV, SRD_V, (n - 8) * 32768 + m * 4096, (s_kvb, slot + m * 1024), tag, cfg.aux_kv))
        return us

    def build(self):
        cfg, p, e = self.cfg, self.p, self.p.e
        e("s_cmp_ge_u32 s2, 256")
        e("s_cbranch_scc1 L_k1_end")
        e("s_load_dwordx8 s[36:43], s[0:1], 0")
        e("s_load_dwordx2 s[44:45], s[0:1], 32")
        e("s_load_dwordx8 s[48:55], s[0:1], 40")
        e("s_load_dwordx2 s[56:57], s[0:1], 72")
        e("s_load_dwordx2 s[58:59], s[0:1], 96")
        e("s_load_dwordx4 s[96:99], s[0:1], 80")
        e("v_lshrrev_b32 v60, 6, v0")
        e("v_and_b32 v0, 63, v0")
        e("v_readfirstlane_b32 s%d, v60" % s_w)
        e("s_and_b32 s4, s2, 7")
        e("s_lshr_b32 s6, s2, 3")
        e("s_lshr_b32 s%d, s6, 4" % s_br)
        e("s_lshr_b32 s%d, s6, 1" % s_b)
        e("s_and_b32 s%d, s%d, 7" % (s_b, s_b))
        e("s_and_b32 s%d, s6, 1" % s_hh)
        e("s_lshl_b32 s%d, s4, 1" % s_h)
        e("s_add_u32 s%d, s%d, s%d" % (s_h, s_h, s_hh))
        e("s_lshl_b32 s6, s%d, 3" % s_b); e("s_add_u32 s6, s6, s4")
        e("s_lshl_b32 s7, s%d, 4" % s_b); e("s_add_u32 s7, s7, s%d" % s_h)
        e("s_cmp_eq_u32 s%d, 0" % s_br)
        e("s_cselect_b32 s6, s6, s7")
        e("s_lshl_b32 s61, s6, 18")
        e("s_lshl_b32 s%d, s%d, 13" % (s_kvb, s_w))
        e("s_mul_i32 s%d, s%d, 12288" % (s_wrb, s_w)); e("s_add_u32 s%d, s%d, %d" % (s_wrb, s_wrb, WB))
        e("s_lshl_b32 s%d, s%d, 10" % (s_w1k, s_w))
        e("s_mov_b32 s%d, 0x3db8aa3b" % s_c)
        e("s_lshl_b32 s%d, s%d, 3" % (s_G, s_br)); e("s_add_u32 s%d, s%d, s%d" % (s_G, s_G, s_b))
        if cfg.rot:
            e("s_mul_i32 s62, s%d, 3" % s_hh); e("s_add_u32 s62, s62, s%d" % s_b)
            e("s_cmp_ge_u32 s62, 7"); e("s_cselect_b32 s6, 7, 0"); e("s_sub_u32 s62, s62, s6")
        else:
            e("s_mov_b32 s62, 0")
        t0, t1, t2, t3, t4 = vT[:5]
        l3, l7, l4, i15 = vT[5:9]
        e("v_lshrrev_b32 v%d, 3, v0" % l3)
        e("v_and_b32 v%d, 7, v0" % l7)
        e("v_lshrrev_b32 v%d, 4, v0" % l4)
        e("v_and_b32 v%d, 15, v0" % i15)
        e("v_and_b32 v%d, 1, v%d" % (t0, l4)); e("v_lshlrev_b32 v%d, 2, v%d" % (t0, t0))
        e("v_xor_b32 v%d, v%d, v%d" % (t0, l7, t0)); e("v_lshlrev_b32 v%d, 4, v%d" % (t0, t0))
        e("s_lshl_b32 s6, s%d, 7" % s_w)
        e("v_add_u32 v%d, s6, v%d" % (t0, t0))
        e("v_lshlrev_b32 v%d, 13, v%d" % (t1, l3)); e("v_add_u32 v%d, v%d, v%d" % (vW, t0, t1))
        e("v_lshlrev_b32 v%d, 9, v%d" % (t1, l3)); e("v_add_u32 v%d, v%d, v%d" % (vV, t0, t1))
        e("s_lshl_b32 s6, s%d, 3" % s_w); e("v_add_u32 v%d, s6, v%d" % (t2, l3)); e("v_mul_u32_u24 v%d, 896, v%d" % (t2, t2))
        e("s_and_b32 s7, s%d, 1" % s_w); e("s_lshl_b32 s7, s7, 2")
        e("v_add_u32 v%d, s7, v%d" % (t3, l4)); e("v_xor_b32 v%d, v%d, v%d" % (t3, l7, t3)); e("v_lshlrev_b32 v%d, 4, v%d" % (t3, t3))
        e("v_add_u32 v%d, v%d, v%d" % (vX, t2, t3))
        e("s_waitcnt lgkmcnt(0)")
        if cfg.stamps:
            e("s_mov_b32 s84, s58"); e("s_mov_b32 s85, s59")
            e("s_lshl_b32 s%d, s2, 2" % s_tsoff); e("s_add_u32 s%d, s%d, s%d" % (s_tsoff, s_tsoff, s_w))
            e("s_lshl_b32 s%d, s%d, 8" % (s_tsoff, s_tsoff)); e("s_add_u32 s%d, s%d, %d" % (s_tsoff, s_tsoff, TS_OFF))
        if cfg.dbg:
            e("s_sub_u32 s89, s2, %d" % cfg.dbg_wg); e("s_or_b32 s89, s89, s%d" % s_w)
            e("s_mov_b32 s100, s98"); e("s_mov_b32 s101, s99")
        self.emit(self.stamp())
        e("s_cmp_eq_u32 s%d, 0" % s_br)
        for (dst, a, b) in ((SRD_X, 36, 48), (SRD_K, 38, 50), (SRD_V, 40, 52), (SRD_W, 42, 54), (SRD_O, 44, 56)):
            e("s_cselect_b32 s%d, s%d, s%d" % (dst, a, b)); e("s_cselect_b32 s%d, s%d, s%d" % (dst + 1, a + 1, b + 1))
        e("s_mul_i32 s4, s%d, %d" % (s_b, PART))
        e("s_add_u32 s%d, s%d, s4" % (SRD_X, SRD_X)); e("s_addc_u32 s%d, s%d, 0" % (SRD_X + 1, SRD_X + 1))
        e("s_mov_b32 s%d, %d" % (SRD_X + 2, PART)); e("s_mov_b32 s%d, 0x20000" % (SRD_X + 3))
        e("s_lshl_b32 s4, s%d, 9" % s_h)
        e("s_add_u32 s%d, s%d, s4" % (SRD_W, SRD_W)); e("s_addc_u32 s%d, s%d, 0" % (SRD_W + 1, SRD_W + 1))
        e("s_sub_u32 s%d, %d, s4" % (SRD_W + 2, 448 * 8192)); e("s_mov_b32 s%d, 0x20000" % (SRD_W + 3))
        for c in range(7):
            if c == 0: e("s_mov_b32 s63, s62")
            else:
                e("s_add_u32 s63, s63, 1"); e("s_cmp_eq_u32 s63, 7"); e("s_cselect_b32 s63, 0, s63")
            e("s_lshl_b32 s%d, s63, 7" % sCX[c]); e("s_lshl_b32 s%d, s63, 19" % sCW[c])
            if c == 0:
                pass
        def xdma(c):
            us = [lambda: p.group("X%d" % c)]
            for i in range(3):
                us.append(self.dma(vX, SRD_X, (sCX[c], i * 32 * 896), (s_w1k, XB + (c % 3) * 12288 + i * 4096), "X%d" % c, cfg.aux_x))
            return us
        def wdma(n):
            us = [lambda: p.group("W%d" % n)]
            for m in range(2):
                us.append(self.dma(vW, SRD_W, (sCW[n >> 2], ((n & 3) * 16 + 8 * m) * 8192), (s_wrb, (n % 6) * 2048 + m * 1024), "W%d" % n, cfg.aux_w))
            return us
        self.emit(xdma(0)); self.emit(wdma(0)); self.emit(wdma(1))
        e("s_add_u32 s%d, s%d, s61" % (SRD_K, SRD_K)); e("s_addc_u32 s%d, s%d, 0" % (SRD_K + 1, SRD_K + 1))
        e("s_mov_b32 s%d, 262144" % (SRD_K + 2)); e("s_mov_b32 s%d, 0x20000" % (SRD_K + 3))
        e("s_add_u32 s%d, s%d, s61" % (SRD_V, SRD_V)); e("s_addc_u32 s%d, s%d, 0" % (SRD_V + 1, SRD_V + 1))
        e("s_mov_b32 s%d, 262144" % (SRD_V + 2)); e("s_mov_b32 s%d, 0x20000" % (SRD_V + 3))
        e("s_mul_i32 s4, s%d, %d" % (s_h, 256 * 896))
        e("s_add_u32 s%d, s%d, s4" % (SRD_O, SRD_O)); e("s_addc_u32 s%d, s%d, 0" % (SRD_O + 1, SRD_O + 1))
        e("s_mov_b32 s%d, %d" % (SRD_O + 2, 256 * 896)); e("s_mov_b32 s%d, 0x20000" % (SRD_O + 3))
        e("s_lshl_b32 s4, s%d, 4" % s_G); e("s_add_u32 s4, s4, s%d" % s_h); e("s_mul_i32 s4, s4, %d" % PART)
        e("s_add_u32 s%d, s58, s4" % SRD_P); e("s_addc_u32 s%d, s59, 0" % (SRD_P + 1))
        e("s_mov_b32 s%d, %d" % (SRD_P + 2, PART)); e("s_mov_b32 s%d, 0x20000" % (SRD_P + 3))
        e("s_mov_b32 s%d, s96" % SRD_OUT); e("s_mov_b32 s%d, s97" % (SRD_OUT + 1))
        e("s_mov_b32 s%d, %d" % (SRD_OUT + 2, 8 * 96 * 1792)); e("s_mov_b32 s%d, 0x20000" % (SRD_OUT + 3))
        e("s_mov_b32 s%d, s98" % s_dbgp); e("s_mov_b32 s%d, s99" % (s_dbgp + 1))
        if cfg.fuse:
            e("s_or_b32 s4, s2, s%d" % s_w); e("s_cmp_lg_u32 s4, 0"); e("s_cbranch_scc1 L_nononce")
            e("s_memrealtime s[90:91]"); e("s_waitcnt lgkmcnt(0)"); e("s_or_b32 s90, s90, 1")
            e("v_mov_b32 v%d, s90" % t0); e("v_mov_b32 v%d, 0" % t1)
            p.raw(Ins("global_store_dword v%d, v%d, s[%d:%d] sc1" % (t1, t0, s_dbgp, s_dbgp + 1), 'nocount'))
            e("L_nononce:")
        e("s_lshl_b32 s4, s%d, 4" % s_w)
        e("v_add_u32 v%d, s4, v%d" % (t0, l3)); e("v_lshlrev_b32 v%d, 9, v%d" % (t0, t0))
        e("v_xor_b32 v%d, v%d, v%d" % (t1, l7, l4)); e("v_lshlrev_b32 v%d, 4, v%d" % (t1, t1))
        e("v_add_u32 v%d, v%d, v%d" % (vK0, t0, t1))
        e("v_xor_b32 v%d, 64, v%d" % (vK1, vK0)); e("v_add_u32 v%d, 4096, v%d" % (vK1, vK1))
        e("v_lshrrev_b32 v%d, 3, v%d" % (t0, i15)); e("v_lshlrev_b32 v%d, 10, v%d" % (t0, t0))
        e("v_and_b32 v%d, 7, v%d" % (t1, i15)); e("v_lshlrev_b32 v%d, 7, v%d" % (t1, t1)); e("v_add_u32 v%d, v%d, v%d" % (t0, t0, t1))
        e("v_lshrrev_b32 v%d, 1, v%d" % (t1, i15)); e("v_xor_b32 v%d, v%d, v%d" % (t1, l4, t1)); e("v_lshlrev_b32 v%d, 4, v%d" % (t1, t1))
        e("v_add_u32 v%d, v%d, v%d" % (t0, t0, t1)); e("v_add_u32 v%d, s%d, v%d" % (vKr0, s_kvb, t0)); e("v_xor_b32 v%d, 64, v%d" % (vKr1, vKr0))
        e("v_lshrrev_b32 v%d, 5, v0" % t0); e("v_lshlrev_b32 v%d, 3, v%d" % (t0, t0)); e("v_lshrrev_b32 v%d, 2, v%d" % (t1, i15))
        e("v_add_u32 v%d, v%d, v%d" % (t0, t0, t1)); e("v_lshlrev_b32 v%d, 7, v%d" % (t0, t0))
        e("v_and_b32 v%d, 1, v%d" % (t1, l4)); e("v_lshlrev_b32 v%d, 1, v%d" % (t1, t1))
        e("v_and_b32 v%d, 3, v%d" % (t4, i15)); e("v_lshrrev_b32 v%d, 1, v%d" % (t4, t4)); e("v_add_u32 v%d, v%d, v%d" % (t1, t1, t4))
        e("v_lshrrev_b32 v%d, 3, v%d" % (t4, i15)); e("v_lshlrev_b32 v%d, 2, v%d" % (t4, t4)); e("v_xor_b32 v%d, v%d, v%d" % (t1, t1, t4))
        e("v_lshlrev_b32 v%d, 4, v%d" % (t1, t1)); e("v_add_u32 v%d, v%d, v%d" % (t0, t0, t1))
        e("v_and_b32 v%d, 1, v%d" % (t1, i15)); e("v_lshlrev_b32 v%d, 3, v%d" % (t1, t1)); e("v_add_u32 v%d, v%d, v%d" % (t0, t0, t1))
        e("v_add_u32 v%d, s%d, v%d" % (vVr0, s_kvb, t0)); e("v_xor_b32 v%d, 64, v%d" % (vVr1, vVr0))
        e("v_add_u32 v%d, s%d, v%d" % (vA0, s_wrb, t0)); e("v_xor_b32 v%d, 64, v%d" % (vA1, vA0))
        e("v_and_b32 v%d, 31, v0" % t0); e("v_lshrrev_b32 v%d, 1, v%d" % (t1, t0)); e("v_and_b32 v%d, 7, v%d" % (t1, t1))
        e("v_lshrrev_b32 v%d, 5, v0" % t4); e("v_xor_b32 v%d, v%d, v%d" % (t1, t1, t4)); e("v_lshlrev_b32 v%d, 4, v%d" % (t1, t1))
        e("v_lshlrev_b32 v%d, 7, v%d" % (t0, t0)); e("v_add_u32 v%d, v%d, v%d" % (t0, t0, t1)); e("v_add_u32 v%d, %d, v%d" % (vXr[0], XB, t0))
        for j in range(1, 4): e("v_xor_b32 v%d, %d, v%d" % (vXr[j], 32 * j, vXr[0]))
        e("v_xor_b32 v%d, v%d, v%d" % (t1, l4, i15)); e("v_lshlrev_b32 v%d, 4, v%d" % (t1, t1)); e("v_lshlrev_b32 v%d, 9, v%d" % (t0, i15))
        e("v_add_u32 v%d, v%d, v%d" % (t0, t0, t1)); e("v_add_u32 v%d, %d, v%d" % (vQr[0], R, t0))
        for j in range(1, 4): e("v_xor_b32 v%d, %d, v%d" % (vQr[j], 64 * j, vQr[0]))
        e("s_lshl_b32 s6, s%d, 1" % s_w)
        e("v_lshrrev_b32 v%d, 1, v%d" % (t0, l4)); e("v_add_u32 v%d, s6, v%d" % (t0, t0)); e("v_lshrrev_b32 v%d, 1, v%d" % (t1, i15))
        e("v_xor_b32 v%d, v%d, v%d" % (t0, t0, t1)); e("v_lshlrev_b32 v%d, 4, v%d" % (t0, t0))
        e("v_lshlrev_b32 v%d, 7, v%d" % (t1, i15)); e("v_add_u32 v%d, v%d, v%d" % (t0, t0, t1))
        e("v_and_b32 v%d, 1, v%d" % (t1, l4)); e("v_lshlrev_b32 v%d, 3, v%d" % (t1, t1)); e("v_add_u32 v%d, v%d, v%d" % (t0, t0, t1))
        e("v_add_u32 v%d, %d, v%d" % (vPw, R, t0))
        e("s_lshl_b32 s6, s%d, 3" % s_w)
        e("v_xor_b32 v%d, s6, v%d" % (t0, i15)); e("v_lshlrev_b32 v%d, 4, v%d" % (t0, t0))
        e("v_and_b32 v%d, 31, v0" % t1); e("v_lshlrev_b32 v%d, 9, v%d" % (t1, t1)); e("v_add_u32 v%d, v%d, v%d" % (t0, t0, t1))
        e("v_lshrrev_b32 v%d, 5, v0" % t1); e("v_lshlrev_b32 v%d, 3, v%d" % (t1, t1)); e("v_add_u32 v%d, v%d, v%d" % (t0, t0, t1))
        e("v_add_u32 v%d, %d, v%d" % (vQw, R, t0))
        e("v_lshlrev_b32 v%d, 3, v%d" % (t0, l4)); e("v_lshrrev_b32 v%d, 2, v%d" % (t1, i15)); e("v_add_u32 v%d, v%d, v%d" % (t0, t0, t1)); e("v_lshlrev_b32 v%d, 7, v%d" % (t0, t0))
        e("s_lshl_b32 s6, s%d, 1" % s_w)
        e("v_and_b32 v%d, 3, v%d" % (t1, i15)); e("v_lshrrev_b32 v%d, 1, v%d" % (t1, t1)); e("v_add_u32 v%d, s6, v%d" % (t1, t1))
        e("v_lshrrev_b32 v%d, 3, v%d" % (t4, i15)); e("v_and_b32 v%d, 1, v%d" % (t3, l4)); e("v_lshlrev_b32 v%d, 1, v%d" % (t3, t3)); e("v_or_b32 v%d, v%d, v%d" % (t4, t4, t3))
        e("v_lshlrev_b32 v%d, 1, v%d" % (t4, t4)); e("v_xor_b32 v%d, v%d, v%d" % (t1, t1, t4)); e("v_lshlrev_b32 v%d, 4, v%d" % (t1, t1)); e("v_add_u32 v%d, v%d, v%d" % (t0, t0, t1))
        e("v_and_b32 v%d, 1, v%d" % (t1, i15)); e("v_lshlrev_b32 v%d, 3, v%d" % (t1, t1)); e("v_add_u32 v%d, v%d, v%d" % (vWor, t0, t1))
        e("v_lshlrev_b32 v%d, 4, v%d" % (t0, i15)); e("v_add_u32 v%d, %d, v%d" % (vStR, ST, t0))
        e("s_lshl_b32 s6, s%d, 2" % s_w); e("v_add_u32 v%d, s6, v%d" % (vStW, vStR))
        e("v_lshlrev_b32 v%d, 4, v0" % vStO)

        def qacc(dt, qt): return vS + (dt * 3 + qt) * 16
        FA = lambda buf, dt: buf * 20 + dt * 4
        FB = lambda buf, qt: buf * 20 + 8 + qt * 4
        def q_reads(n):
            buf = n & 3; sl = (n % 6) * 2048; xs = ((n >> 2) % 3) * 12288
            rd = []
            for dt in range(2):
                va = vA0 if dt == 0 else vA1
                for jj in range(2):
                    rd.append("ds_read_b64_tr_b16 %s, v%d offset:%d" % (ar(FA(buf, dt) + 2 * jj, 2), va, sl + jj * 512))
            for qt in range(3):
                rd.append("ds_read_b128 %s, v%d offset:%d" % (ar(FB(buf, qt)), vXr[n & 3], xs + qt * 4096))
            return [rd[0], rd[1], rd[4], rd[2], rd[3], rd[5], rd[6]]
        def q_mfmas(n):
            buf = n & 3
            return ["v_mfma_f32_32x32x16_bf16 %s, %s, %s, %s" % (vr(qacc(dt, qt), 16), ar(FA(buf, dt)), ar(FB(buf, qt)), "0" if n == 0 else vr(qacc(dt, qt), 16))
                    for qt in range(3) for dt in range(2)]
        KF = lambda i, s: 192 + (i & 1) * 32 + s * 4
        def k_read(i, s):
            slot = self.kv_slot(i)
            base = (vKr1 if s & 1 else vKr0)
            off = slot + (s >> 1) * 2048
            if off >= 65536:
                base = (vT[11] if s & 1 else vT[10]); off -= 65536
            return "ds_read_b128 %s, v%d offset:%d" % (ar(KF(i, s)), base, off)
        self.emit(wdma(2)); self.emit(wdma(3)); self.emit(xdma(1)); self.emit(wdma(4)); self.emit(wdma(5))
        p.wait_vm("X0"); p.wait_vm("W1")
        e("s_barrier")
        self.emit(self.stamp())
        self.emit(q_reads(0)); self.emit(q_reads(1))
        kb01 = self.kv_block(0) + self.kv_block(1)
        kb23 = self.kv_block(2) + self.kv_block(3)
        kfr = [k_read(0, s) for s in range(8)] + [k_read(1, s) for s in range(8)]
        for n in range(28):
            pre = []
            rd = []
            if n + 2 < 28:
                p.wait_vm("W%d" % (n + 2))
                if (n + 2) % 4 == 0:
                    p.wait_vm("X%d" % ((n + 2) >> 2))
                    e("s_waitcnt lgkmcnt(0)")
                    e("s_barrier")
                rd = q_reads(n + 2)
            dm = []
            if n + 6 < 28: dm += wdma(n + 6)
            if n == 1: dm += xdma(2)
            if (n + 2) % 4 == 0 and ((n + 2) >> 2) + 2 <= 6: dm += xdma(((n + 2) >> 2) + 2)
            if n < 8: dm += kb01[(18 * n) // 8:(18 * (n + 1)) // 8]
            if 14 <= n < 18:
                if n == 14: rd = rd + [lambda: p.wait_vm("B0")]
                if n == 16: rd = rd + [lambda: p.wait_vm("B1")]
                rd = rd + kfr[(n - 14) * 4:(n - 13) * 4]
            if 18 <= n < 26: dm += kb23[(18 * (n - 18)) // 8:(18 * (n - 17)) // 8]
            mf = q_mfmas(n)
            seq = []
            nr = len(rd)
            rpos = [min(3, (4 * k) // max(nr, 1)) for k in range(nr)]
            dpos = [2 + (4 * k) // max(len(dm), 1) for k in range(len(dm))]
            for i, m in enumerate(mf):
                seq.append(m)
                seq += [rd[k] for k in range(nr) if rpos[k] == i]
                seq += [dm[k] for k in range(len(dm)) if min(dpos[k], 5) == i]
            self.emit(seq)
        self.emit(self.stamp())
        e("s_waitcnt lgkmcnt(0)")
        e("s_barrier")
        blk4 = self.kv_block(4)
        def exch_write(src_of):
            seq = []
            for dt in range(2):
                for rg in range(4):
                    va = vT[12 + ((dt * 4 + rg) & 1)]
                    seq.append("v_xor_b32 v%d, %d, v%d" % (va, (4 * dt + rg) * 16, vQw))
                    for qt in range(3):
                        b = src_of(dt, qt) + rg * 4
                        ta = vT[14 + 2 * qt]
                        seq.append(["v_cvt_pk_bf16_f32 v%d, v%d, v%d" % (ta, b, b + 1), "v_cvt_pk_bf16_f32 v%d, v%d, v%d" % (ta + 1, b + 2, b + 3),
                                    "ds_write_b64 v%d, %s offset:%d" % (va, vr(ta, 2), qt * 16384)])
            return seq
        self.emit(weave(exch_write(qacc), blk4))
        e("v_add_u32 v%d, 0x10000, v%d" % (vT[10], vKr0)); e("v_add_u32 v%d, 0x10000, v%d" % (vT[11], vKr1))
        e("s_waitcnt lgkmcnt(0)")
        e("s_barrier")
        self.emit(self.stamp())
        QF = lambda t, s: (s * 6 + t) * 4
        def q_read(t, s):
            return "ds_read_b128 %s, v%d offset:%d" % (ar(QF(t, s)), vQr[s & 3], t * 8192 + (s >> 2) * 256)
        def qk_mfma(i, t, s):
            c = "0" if s == 0 else vr(S(i, t))
            return "v_mfma_f32_16x16x32_bf16 %s, %s, %s, %s" % (vr(S(i, t)), ar(KF(i, s)), ar(QF(t, s)), c)
        def max_ops(i):
            r = []
            for t in range(6):
                b = S(i, t)
                if i == 0:
                    r.append("v_max3_f32 v%d, v%d, v%d, v%d" % (vM[t], b, b + 1, b + 2))
                    r.append("v_max_f32 v%d, v%d, v%d" % (vM[t], vM[t], b + 3))
                else:
                    r.append("v_max3_f32 v%d, v%d, v%d, v%d" % (vM[t], vM[t], b, b + 1))
                    r.append("v_max3_f32 v%d, v%d, v%d, v%d" % (vM[t], vM[t], b + 2, b + 3))
            return r
        for i in range(8):
            if i == 0:
                self.emit([q_read(t, 0) for t in range(6)])
                for s in range(8):
                    nx = [q_read(t, s + 1) for t in range(6)] if s < 7 else []
                    self.emit(weave([qk_mfma(0, t, s) for t in range(6)], nx))
                continue
            if i >= 2:
                p.wait_vm("B%d" % i)
                self.emit([k_read(i, s) for s in range(8)])
            mf = [qk_mfma(i, t, s) for s in range(8) for t in range(6)]
            dm = self.kv_block(i + 3) if i >= 2 else []
            lo = 12 if i >= 2 else 0
            mx = max_ops(i - 1)
            if i >= 2:
                first = mf[:6]
                rest = mf[6:]
                self.emit(first)
                e("s_waitcnt lgkmcnt(0)")
                self.emit(weave(rest, merge(dm, mx), 0, 40))
            else:
                self.emit(weave(mf, mx, 8, 46))
            if cfg.fine and i < 7: self.emit(self.stamp())
        self.emit(self.stamp())
        self.emit(max_ops(7))
        seq = []
        for t in range(6):
            a = vT[0 + (t & 1)]
            seq += ["v_mov_b32 v%d, v%d" % (a, vM[t]), "v_permlane32_swap_b32 v%d, v%d" % (a, vM[t]), "v_max_f32 v%d, v%d, v%d" % (vM[t], vM[t], a),
                    "v_mov_b32 v%d, v%d" % (a, vM[t]), "v_permlane16_swap_b32 v%d, v%d" % (a, vM[t]), "v_max_f32 v%d, v%d, v%d" % (vM[t], vM[t], a),
                    "ds_write_b32 v%d, v%d offset:%d" % (vStW, vM[t], t * 256)]
        chains = [seq[7 * t:7 * t + 7] for t in range(6)]
        chains = []
        for t in range(6):
            a = vT[t]
            chains.append(["v_mov_b32 v%d, v%d" % (a, vM[t]), "v_permlane32_swap_b32 v%d, v%d" % (a, vM[t]), "v_max_f32 v%d, v%d, v%d" % (vM[t], vM[t], a),
                           "v_mov_b32 v%d, v%d" % (a, vM[t]), "v_permlane16_swap_b32 v%d, v%d" % (a, vM[t]), "v_max_f32 v%d, v%d, v%d" % (vM[t], vM[t], a),
                           "ds_write_b32 v%d, v%d offset:%d" % (vStW, vM[t], t * 256)])
        for k in range(7):
            for t in range(6): e(chains[t][k])
        e("s_waitcnt lgkmcnt(0)")
        e("s_barrier")
        for t in range(6): e("ds_read_b128 %s, v%d offset:%d" % (vr(vS + 0 if False else 40 + 4 * t, 4), vStR, t * 256))
        for t in range(6):
            b = 40 + 4 * t
            e("v_max3_f32 v%d, v%d, v%d, v%d" % (vM[t], b, b + 1, b + 2)); e("v_max_f32 v%d, v%d, v%d" % (vM[t], vM[t], b + 3))
        for t in range(6): e("v_mul_f32 v%d, s%d, v%d" % (vM[t], s_c, vM[t]))
        for j in range(4): e("v_add_u32 v%d, %d, v%d" % (vXr[j], (R - XB) & 0xffffffff, vXr[j]))
        def exp_ops(i):
            us = []
            for t in range(6):
                b = S(i, t)
                tm = [vT[0], vT[1], vT[2], vT[3]] if t % 2 == 0 else [vT[4], vT[5], vT[6], vT[7]]
                pk = vT[8 + 2 * (t % 2)] if False else (vT[12] + 2 * (t % 2))
                for k in range(4): us.append("v_fma_f32 v%d, v%d, s%d, -v%d" % (tm[k], b + k, s_c, vM[t]))
                for k in range(4): us.append("v_exp_f32 v%d, v%d" % (tm[k], tm[k]))
                if i == 0:
                    us.append("v_add_f32 v%d, v%d, v%d" % (vL[t], tm[0], tm[1]))
                else:
                    us.append("v_add_f32 v%d, v%d, v%d" % (vL[t], vL[t], tm[0])); us.append("v_add_f32 v%d, v%d, v%d" % (vL[t], vL[t], tm[1]))
                us.append("v_cvt_pk_bf16_f32 v%d, v%d, v%d" % (pk, tm[0], tm[1]))
                us.append("v_add_f32 v%d, v%d, v%d" % (vL[t], vL[t], tm[2]))
                us.append("v_cvt_pk_bf16_f32 v%d, v%d, v%d" % (pk + 1, tm[2], tm[3]))
                us.append("v_add_f32 v%d, v%d, v%d" % (vL[t], vL[t], tm[3]))
                us.append("ds_write_b64 v%d, %s offset:%d" % (vPw, vr(pk, 2), (i & 1) * 12288 + t * 2048))
            return us
        self.emit(exp_ops(0))
        self.emit(self.stamp())
        OAa = lambda dt, qt: (dt * 3 + qt) * 16
        OAv = lambda dt, qt: vS + (dt * 3 + qt) * 16
        VF = lambda buf, dt: 96 + buf * 20 + dt * 4
        PF = lambda buf, qt: 96 + buf * 20 + 8 + qt * 4
        e("v_add_u32 v%d, 0x10000, v%d" % (vA0, vVr0)); e("v_add_u32 v%d, 0x10000, v%d" % (vA1, vVr1))
        def v_reads(i, u, buf):
            slot = self.kv_slot(8 + i)
            rd = []
            for dt in range(2):
                for jj in range(2):
                    off = slot + (16 * u + 4 * jj) * 128
                    base = vVr1 if dt else vVr0
                    if off >= 65536:
                        base = vA1 if dt else vA0; off -= 65536
                    rd.append("ds_read_b64_tr_b16 %s, v%d offset:%d" % (ar(VF(buf, dt) + 2 * jj, 2), base, off))
            for qt in range(3):
                rd.append("ds_read_b128 %s, v%d offset:%d" % (ar(PF(buf, qt)), vXr[u], (i & 1) * 12288 + qt * 4096))
            return [rd[0], rd[1], rd[4], rd[2], rd[3], rd[5], rd[6]]
        def pv_mfmas(i, u, buf):
            out = []
            for qt in range(3):
                for dt in range(2):
                    d = ar(OAa(dt, qt), 16) if i < 4 else vr(OAv(dt, qt), 16)
                    c = "0" if (i == 0 and u == 0) else d
                    out.append("v_mfma_f32_32x32x16_bf16 %s, %s, %s, %s" % (d, ar(VF(buf, dt)), ar(PF(buf, qt)), c))
            return out
        wo_slot = lambda k: SLOT[(k + 2) % 3]
        def wo_block(sreg, slot):
            us = [lambda: p.group("WO")]
            for i in range(8):
                m0 = None
                if i % 4 == 0:
                    m0 = (s_kvb, slot + i * 1024) if isinstance(slot, int) else (slot[0], i * 1024)
                us.append(self.dma(vWoD[i], SRD_O, (sreg, None), m0, "WO", cfg.aux_wo, imm=(i & 3) * 1024))
            return us
        if cfg.rot:
            e("s_cmp_eq_u32 s%d, 7" % s_b); e("s_cselect_b32 s%d, 0, s%d" % (s_ng, s_b))
        else:
            e("s_mov_b32 s%d, 0" % s_ng)
        def inc7(dst, src):
            return ["s_add_u32 s%d, s%d, 1" % (dst, src), "s_cmp_eq_u32 s%d, 7" % dst, "s_cselect_b32 s%d, 0, s%d" % (dst, dst)]
        for i in range(8):
            e("s_waitcnt lgkmcnt(0)")
            e("s_barrier")
            p.wait_vm("B%d" % (8 + i))
            fill = []
            if i + 1 < 8: fill = exp_ops(i + 1)
            dm = []
            if 1 <= i <= 5: dm = self.kv_block(8 + i + 2)
            if i == 6:
                red = []
                chains = []
                for t in range(6):
                    a = vT[14 + (t % 6)] if False else vT[8 + (t & 3)]
                    chains.append(["v_mov_b32 v%d, v%d" % (a, vL[t]), "v_permlane32_swap_b32 v%d, v%d" % (a, vL[t]), "v_add_f32 v%d, v%d, v%d" % (vL[t], vL[t], a),
                                   "v_mov_b32 v%d, v%d" % (a, vL[t]), "v_permlane16_swap_b32 v%d, v%d" % (a, vL[t]), "v_add_f32 v%d, v%d, v%d" % (vL[t], vL[t], a),
                                   "ds_write_b32 v%d, v%d offset:%d" % (vStW, vL[t], 2048 + t * 256)])
                for t in range(6): red += chains[t]
                fill = fill + red
            if i == 5:
                pre = []
                a0, a1, a2 = 168, 169, 170
                pre += ["v_lshrrev_b32 v%d, 3, v0" % a0, "s_lshl_b32 s6, s%d, 6" % s_w, "v_add_u32 v%d, s6, v%d" % (a0, a0), "v_mul_u32_u24 v%d, 896, v%d" % (a0, a0)]
                pre += ["v_lshrrev_b32 v%d, 4, v0" % a1, "v_and_b32 v%d, 1, v%d" % (a1, a1), "v_lshlrev_b32 v%d, 1, v%d" % (a1, a1), "v_and_b32 v%d, 7, v0" % a2, "v_xor_b32 v%d, v%d, v%d" % (a1, a1, a2),
                        "v_lshlrev_b32 v%d, 4, v%d" % (a1, a1)]
                pre += ["v_add_u32 v%d, v%d, v%d" % (a2, a0, a1), "v_xor_b32 v%d, 64, v%d" % (a1, a1), "v_add_u32 v%d, v%d, v%d" % (a1, a0, a1)]
                for k in range(8):
                    pre.append("v_add_u32 v%d, %d, v%d" % (vWoD[k], k * 7168 - (k & 3) * 1024, a1 if k & 1 else a2))
                fill = fill + pre
            if i == 6:
                dm = ["s_lshl_b32 s%d, s%d, 7" % (s_wooff, s_ng)] + wo_block(s_wooff, wo_slot(0))
            if i == 7:
                for t in range(6):
                    b = 44 + 4 * (t % 4)
                    fill += ["ds_read_b128 %s, v%d offset:%d" % (vr(b, 4), vStR, 2048 + t * 256),
                             ["v_add_f32 v%d, v%d, v%d" % (b, b, b + 1), "v_add_f32 v%d, v%d, v%d" % (b + 2, b + 2, b + 3),
                              "v_add_f32 v%d, v%d, v%d" % (b, b, b + 2), "v_rcp_f32 v%d, v%d" % (vM[t], b)]]
                dm = inc7(s_ng2, s_ng) + ["s_lshl_b32 s%d, s%d, 7" % (s_wooff, s_ng2)] + wo_block(s_wooff, wo_slot(1))
                if cfg.fuse:
                    dm += [["v_mov_b32 v%d, 0" % vT[19], lambda: p.group("NC"),
                            Ins("global_load_dword v%d, v%d, s[%d:%d] sc1" % (vNonce, vT[19], s_dbgp, s_dbgp + 1), "NC")]]
            if cfg.early_dma:
                self.emit(v_reads(i, 0, 0))
                self.emit(dm); dm = []
            if i == 4:
                self.emit(["v_accvgpr_read_b32 v%d, a%d" % (vS + r, r) for r in range(96)])
            allfill = merge(fill, dm)
            if not cfg.early_dma: self.emit(v_reads(i, 0, 0))
            mf = []
            for u in range(4):
                m = pv_mfmas(i, u, u & 1)
                if u < 3:
                    rd = v_reads(i, u + 1, (u + 1) & 1)
                    mf += weave(m, rd, 0, 4)
                else: mf += m
            self.emit(weave(mf, allfill, 1, len(mf) - 1))
            if cfg.fine and i < 7: self.emit(self.stamp())
        self.emit(self.stamp())
        e("s_waitcnt lgkmcnt(0)")
        e("s_barrier")
        self.emit(exch_write(OAv))
        p.wait_vm("WO", 1)
        e("s_waitcnt lgkmcnt(0)")
        e("s_barrier")
        self.emit(self.stamp())
        OF = QF
        WF = lambda s: 192 + s * 4
        ACC = lambda t: vS + t * 4
        def wo_reads(s, base):
            return ["ds_read_b64_tr_b16 %s, v%d offset:%d" % (ar(WF(s) + 2 * jj, 2), base, (32 * s + 4 * jj) * 128) for jj in range(2)]
        def epi(t):
            b = ACC(t)
            pk = vT[8] + 4 * ((t >> 1) & 1) + 2 * (t & 1)
            u = ["v_mul_f32 v%d, v%d, v%d" % (b + k, vM[t], b + k) for k in range(4)]
            u += ["v_cvt_pk_bf16_f32 v%d, v%d, v%d" % (pk, b, b + 1), "v_cvt_pk_bf16_f32 v%d, v%d, v%d" % (pk + 1, b + 2, b + 3)]
            return u
        def st(pair, sbase):
            pk = vT[8] + 4 * (pair & 1)
            return [Ins("buffer_store_dwordx4 %s, v%d, %s, s%d offen offset:%d %s" % (vr(pk, 4), vStO, srd(SRD_P), sbase, pair * 1024, cfg.aux_st), "ST")]
        def tile(t):
            return ["v_mfma_f32_16x16x32_bf16 %s, %s, %s, %s" % (vr(ACC(t)), ar(WF(s)), ar(OF(t, s)), "0" if s == 0 else vr(ACC(t))) for s in range(8)]
        e("s_mov_b32 s%d, %d" % (s_slotN, wo_slot(1)))
        e("s_add_u32 s%d, s%d, %d" % (s_slotD, s_kvb, wo_slot(2)))
        e("s_mov_b32 s%d, %d" % (s_slotR, wo_slot(0)))
        e("v_add_u32 v%d, %d, v%d" % (vA0, wo_slot(0), vWor))
        def body(first):
            e("s_lshl_b32 s%d, s%d, 2" % (s_stoff, s_ng)); e("s_add_u32 s%d, s%d, s%d" % (s_stoff, s_stoff, s_w)); e("s_mul_i32 s%d, s%d, 3072" % (s_stoff, s_stoff))
            self.emit(inc7(sT1, s_ng2))
            e("s_lshl_b32 s%d, s%d, 7" % (s_wooff, sT1))
            if not first:
                e("s_cmp_ge_u32 s%d, 5" % s_cnt); e("s_cselect_b32 s%d, 0x40000000, s%d" % (s_wooff, s_wooff))
            dmas = wo_block(s_wooff, (s_slotD,))
            self.emit(dmas[0:1])
            d = dmas[1:]
            if first:
                self.emit([x for s in range(8) for x in (wo_reads(s, vA0) + [q_read(0, s)])])
                for t in range(5):
                    extra = [q_read(t + 1, s) for s in range(8)]
                    more = []
                    if t == 2: more = epi(0)
                    if t == 3: more = epi(1) + st(0, s_stoff)
                    if t == 4: more = epi(2)
                    more = more + d[2 * t:2 * t + 2] if t < 4 else more
                    self.emit(weave(tile(t), merge(extra, more), 0, 8))
            else:
                self.emit(weave(tile(0), epi(4) + d[0:2], 0, 8))
                self.emit(weave(tile(1), epi(5) + st(2, s_stprev) + d[2:4], 0, 8))
                self.emit(weave(tile(2), epi(0) + d[4:6], 0, 8))
                self.emit(weave(tile(3), epi(1) + st(0, s_stoff) + d[6:8], 0, 8))
                self.emit(weave(tile(4), epi(2), 0, 8))
            p.wait_vm("WO", 1)
            e("s_barrier")
            e("v_add_u32 v%d, s%d, v%d" % (vA0, s_slotN, vWor))
            t5 = tile(5)
            seq = []
            ep3 = epi(3) + st(1, s_stoff)
            for s in range(8):
                seq.append(t5[s])
                seq.append(wo_reads(s, vA0))
                if s < len(ep3): seq.append(ep3[s])
            self.emit(seq)
            e("s_mov_b32 s%d, s%d" % (s_stprev, s_stoff))
            e("s_mov_b32 s%d, s%d" % (s_ng, s_ng2)); e("s_mov_b32 s%d, s%d" % (s_ng2, sT1))
            e("s_sub_u32 s%d, s%d, s%d" % (sT0, s_slotD, s_kvb))
            e("s_add_u32 s%d, s%d, s%d" % (s_slotD, s_slotR, s_kvb))
            e("s_mov_b32 s%d, s%d" % (s_slotR, s_slotN)); e("s_mov_b32 s%d, s%d" % (s_slotN, sT0))
        body(True)
        e("s_waitcnt lgkmcnt(0)")
        e("s_mov_b32 s%d, 1" % s_cnt)
        p.loop_begin("L_oloop", 6)
        body(False)
        e("s_add_u32 s%d, s%d, 1" % (s_cnt, s_cnt)); e("s_cmp_lt_u32 s%d, 7" % s_cnt); e("s_cbranch_scc1 L_oloop")
        p.loop_end()
        self.emit(epi(4)); self.emit(epi(5)); self.emit(st(2, s_stprev))
        self.emit(self.stamp())
        if cfg.fuse:
            self.reduce_tail()
        elif cfg.stamps or cfg.dbg:
            e("s_waitcnt vmcnt(0)")
            self.emit(self.stamp())
        e("L_k1_end:")
        e("s_endpgm")
        p.resolve()
        return p.text()

    def reduce_tail(self):
        cfg, p, e = self.cfg, self.p, self.p.e
        sU, sV, sQ = 61, 62, 63
        SG = 64
        e("s_mul_i32 s4, s%d, %d" % (s_G, PART * 16))
        e("s_add_u32 s%d, s58, s4" % SG); e("s_addc_u32 s%d, s59, 0" % (SG + 1)); e("s_mov_b32 s%d, %d" % (SG + 2, PART * 16)); e("s_mov_b32 s%d, 0x20000" % (SG + 3))
        e("s_lshl_b32 s4, s%d, 7" % s_G); e("s_add_u32 s4, s4, %d" % FLAG_OFF)
        e("s_add_u32 s68, s58, s4"); e("s_addc_u32 s69, s59, 0")
        e("s_mul_i32 s70, s%d, %d" % (s_b, 96 * 1792)); e("s_mul_i32 s4, s%d, 896" % s_br); e("s_add_u32 s70, s70, s4")
        e("v_and_b32 v41, 15, v0"); e("v_mul_u32_u24 v41, 1792, v41"); e("v_lshrrev_b32 v42, 4, v0"); e("v_lshlrev_b32 v42, 3, v42"); e("v_add_u32 v41, v41, v42")
        uo, ul = [72, 73], [74, 75]
        for k in range(2):
            e("s_add_u32 s4, s%d, %d" % (s_w, 4 * k)); e("s_lshl_b32 s4, s4, 4"); e("s_add_u32 s4, s4, s%d" % s_h)
            e("s_lshl_b32 s%d, s4, 10" % ul[k])
            e("s_mul_hi_u32 s5, s4, %d" % ((1 << 32) // 12 + 1)); e("s_mul_i32 s6, s5, 12"); e("s_sub_u32 s6, s4, s6")
            e("s_mul_hi_u32 s7, s6, %d" % ((1 << 32) // 3 + 1)); e("s_mul_i32 s76, s7, 3"); e("s_sub_u32 s76, s6, s76")
            e("s_lshl_b32 s5, s5, 7"); e("s_lshl_b32 s7, s7, 5"); e("s_mul_i32 s76, s76, %d" % (32 * 1792))
            e("s_add_u32 s5, s5, s7"); e("s_add_u32 s5, s5, s76"); e("s_add_u32 s%d, s5, s70" % uo[k])
            e("s_cmp_ge_u32 s4, 84")
            e("s_cselect_b32 s%d, 0x40000000, s%d" % (ul[k], ul[k])); e("s_cselect_b32 s%d, 0x40000000, s%d" % (uo[k], uo[k]))
        e("v_readfirstlane_b32 s%d, v%d" % (s_nonce, vNonce))
        e("s_cmp_lg_u32 s%d, 0" % s_nonce); e("s_cbranch_scc1 L_havenonce")
        e("L_pollnonce:")
        e("v_mov_b32 v44, 0")
        p.raw(Ins("global_load_dword v%d, v44, s[%d:%d] sc1" % (vNonce, s_dbgp, s_dbgp + 1), "nocount"))
        e("s_waitcnt vmcnt(0)")
        e("v_readfirstlane_b32 s%d, v%d" % (s_nonce, vNonce))
        e("s_cmp_eq_u32 s%d, 0" % s_nonce); e("s_cbranch_scc1 L_pollnonce")
        e("L_havenonce:")
        e("s_waitcnt vmcnt(0)")
        e("s_barrier")
        self.emit(self.stamp())
        e("s_cmp_lg_u32 s%d, 0" % s_w); e("s_cbranch_scc1 L_nopoll")
        e("v_mov_b32 v44, s%d" % s_nonce); e("s_lshl_b32 s4, s%d, 2" % s_h); e("v_mov_b32 v45, s4")
        e("s_mov_b64 s[90:91], exec"); e("s_mov_b64 exec, 1")
        p.raw(Ins("global_store_dword v45, v44, s[68:69] sc1", "nocount"))
        e("s_mov_b64 exec, 0xffff")
        e("v_lshlrev_b32 v45, 2, v0")
        e("L_poll:")
        p.raw(Ins("global_load_dword v46, v45, s[68:69] sc1", "nocount"))
        e("s_waitcnt vmcnt(0)")
        e("v_cmp_ne_u32 vcc, s%d, v46" % s_nonce)
        e("s_nop 4")
        e("s_cbranch_vccz L_polldone")
        e("s_sleep 2")
        e("s_branch L_poll")
        e("L_polldone:")
        e("s_mov_b64 exec, s[90:91]")
        e("L_nopoll:")
        e("s_barrier")
        self.emit(self.stamp())
        for k in range(2):
            for h in range(16):
                e("s_add_u32 s5, s%d, %d" % (ul[k], h * PART))
                b = 64 + 64 * k + 4 * h
                p.raw(Ins("buffer_load_dwordx4 %s, v%d, %s, s5 offen %s" % (vr(b, 4), vStO, srd(SG), cfg.aux_rd), "RD"))
        e("s_mov_b32 s6, 0x3f80"); e("s_mov_b32 s7, 0x3f800000")
        for k in range(2):
            acc = list(range(44, 52))
            for a in acc: e("v_mov_b32 v%d, 0" % a)
            for h in range(16):
                b = 64 + 64 * k + 4 * h
                for q in range(4):
                    e("v_dot2c_f32_bf16 v%d, s6, v%d" % (acc[2 * q], b + q)); e("v_dot2c_f32_bf16 v%d, s7, v%d" % (acc[2 * q + 1], b + q))
            for q in range(4): e("v_cvt_pk_bf16_f32 v%d, v%d, v%d" % (52 + q, acc[2 * q], acc[2 * q + 1]))
            e("buffer_store_dwordx2 v[52:53], v41, %s, s%d offen" % (srd(SRD_OUT), uo[k]))
            e("s_add_u32 s5, s%d, %d" % (uo[k], 16 * 1792))
            e("buffer_store_dwordx2 v[54:55], v41, %s, s5 offen" % srd(SRD_OUT))
        if cfg.stamps or cfg.dbg:
            e("s_waitcnt vmcnt(0)")
            self.emit(self.stamp())

def desc(name, vg, acc, sg=102):
    return """.amdhsa_kernel %s
  .amdhsa_next_free_vgpr %d
  .amdhsa_next_free_sgpr %d
  .amdhsa_accum_offset %d
  .amdhsa_group_segment_fixed_size 0
  .amdhsa_kernarg_size 104
  .amdhsa_user_sgpr_count 2
  .amdhsa_user_sgpr_kernarg_segment_ptr 1
  .amdhsa_system_sgpr_workgroup_id_x 1
  .amdhsa_float_denorm_mode_32 3
.end_amdhsa_kernel
""" % (name, vg, sg, acc)

REF = "concat_heads__gqa_block_cached__mha_block_cached__near_ridge.s.ref"
HEAD = open(REF).read().split("; Override launch geometry")[0] if os.path.exists(REF) else ""

def generate(cfg):
    k1 = K1(cfg).build()
    out = HEAD
    out += "; @launch grid=(256,1,1) block=(256,1,1) lds=163840\n"
    out += '.amdgcn_target "amdgcn-amd-amdhsa--gfx950"\n.text\n'
    out += ".globl %s\n.p2align 8\n.type %s,@function\n%s:\n%s\n" % (KNAME, KNAME, KNAME, k1)
    out += '.section .rodata,"a"\n.p2align 6\n' + desc(KNAME, 512, 256)
    return out

if __name__ == "__main__":
    kw = {}
    for a in sys.argv[2:]:
        k, v = a.split("=", 1)
        kw[k] = eval(v)
    txt = generate(Cfg(**kw))
    open(sys.argv[1], "w").write(txt)
    print("wrote", sys.argv[1], len(txt), "bytes,", txt.count("\n"), "lines")
```

```python
import re

REG_RE = re.compile(r'(?<![\w.])([vas])\[(\d+):(\d+)\]|(?<![\w.])([vas])(\d+)(?![\w\[])')

def regs_of(op):
    out = []
    for m in REG_RE.finditer(op):
        if m.group(1):
            out += [(m.group(1), i) for i in range(int(m.group(2)), int(m.group(3)) + 1)]
        else:
            out.append((m.group(4), int(m.group(5))))
    if re.search(r'\bvcc\b', op): out.append(('x', 'vcc'))
    if re.search(r'\bm0\b', op): out.append(('x', 'm0'))
    if re.search(r'\bexec\b', op): out.append(('x', 'exec'))
    return out

TRANS = ('v_exp_f32', 'v_log_f32', 'v_rcp_f32', 'v_rsq_f32', 'v_sqrt_f32', 'v_sin_f32', 'v_cos_f32')

class Ins:
    __slots__ = ('text', 'mn', 'kind', 'defs', 'uses', 'tag', 'pre_nop', 'pre_lgkm', 'pre_vm', 'meta', 'passes')
    def __init__(self, text, tag=None, meta=None):
        self.text = text
        self.tag = tag
        self.meta = meta
        self.pre_nop = 0
        self.pre_lgkm = None
        self.pre_vm = None
        self.passes = 0
        t = text.split(';')[0].strip()
        parts = t.split(None, 1)
        self.mn = mn = parts[0] if parts else ''
        ops = [o.strip() for o in parts[1].split(',')] if len(parts) > 1 else []
        self.defs, self.uses = set(), set()
        k = 'other'
        if mn.endswith(':'):
            k = 'label'
        elif mn.startswith('v_mfma'):
            k = 'mfma'
            self.defs = set(regs_of(ops[0]))
            for o in ops[1:]: self.uses |= set(regs_of(o))
            self.passes = 8 if '32x32' in mn else 4
            self.meta = dict(self.meta or {}, A=set(regs_of(ops[1])), B=set(regs_of(ops[2])), C=set(regs_of(ops[3])))
        elif mn.startswith('ds_read'):
            k = 'ds_read'
            self.defs = set(regs_of(ops[0]))
            for o in ops[1:]: self.uses |= set(regs_of(o))
        elif mn.startswith('ds_write'):
            k = 'ds_write'
            for o in ops: self.uses |= set(regs_of(o))
        elif mn.startswith('buffer_load') or mn.startswith('global_load'):
            if re.search(r'\blds\b', t):
                k = 'dma'
                for o in ops: self.uses |= set(regs_of(o))
                self.uses.add(('x', 'm0'))
            else:
                k = 'vload'
                self.defs = set(regs_of(ops[0]))
                for o in ops[1:]: self.uses |= set(regs_of(o))
        elif mn.startswith('buffer_store') or mn.startswith('global_store') or mn.startswith('buffer_atomic') or mn.startswith('global_atomic'):
            k = 'vstore'
            for o in ops: self.uses |= set(regs_of(o))
            if mn.startswith('buffer_store'): self.meta = dict(self.meta or {}, data=set(regs_of(ops[0])))
            elif mn.startswith('global_store'): self.meta = dict(self.meta or {}, data=set(regs_of(ops[1])))
        elif mn.startswith('s_load') or mn.startswith('s_memtime') or mn.startswith('s_memrealtime'):
            k = 'smem'
            self.defs = set(regs_of(ops[0]))
            for o in ops[1:]: self.uses |= set(regs_of(o))
        elif mn in ('s_waitcnt', 's_nop', 's_barrier', 's_endpgm', 's_setprio', 's_sleep'):
            k = mn
        elif mn.startswith('s_cbranch') or mn == 's_branch':
            k = 'branch'
        elif mn.startswith('s_cmp'):
            k = 'salu'
            for o in ops: self.uses |= set(regs_of(o))
        elif mn.startswith('s_'):
            k = 'salu'
            self.defs = set(regs_of(ops[0]))
            for o in ops[1:]: self.uses |= set(regs_of(o))
            if 'saveexec' in mn: self.defs.add(('x', 'exec'))
        elif mn.startswith('v_'):
            k = 'valu'
            if mn.startswith('v_cmp'):
                self.defs = set(regs_of(ops[0]))
                for o in ops[1:]: self.uses |= set(regs_of(o))
            elif mn.startswith('v_permlane') and 'swap' in mn:
                self.defs = set(regs_of(ops[0])) | set(regs_of(ops[1]))
                self.uses = set(self.defs)
            else:
                self.defs = set(regs_of(ops[0]))
                for o in ops[1:]: self.uses |= set(regs_of(o))
                if mn.startswith('v_fmac') or mn.startswith('v_dot2c'): self.uses |= self.defs
                if mn.startswith('v_add_co') or mn.startswith('v_addc_co') or mn.startswith('v_sub_co'):
                    self.defs |= set(regs_of(ops[1]))
                if mn.startswith('v_cndmask') and len(ops) == 3: self.uses.add(('x', 'vcc'))
        self.kind = k

class Marker:
    def __init__(self, what, name=None, back=0):
        self.what, self.name, self.back = what, name, back
        self.n = None
        self.kind = 'marker'

class Loop:
    def __init__(self, label, trips):
        self.label, self.trips, self.body = label, trips, []
        self.kind = 'loop'

class Prog:
    def __init__(self):
        self.items = []
        self.stack = [self.items]
    def e(self, text, tag=None):
        for line in text.split('\n'):
            line = line.strip()
            if not line or line.startswith(';'):
                continue
            self.stack[-1].append(Ins(line, tag))
    def raw(self, ins):
        self.stack[-1].append(ins)
    def group(self, name):
        self.stack[-1].append(Marker('group', name))
    def wait_vm(self, name, back=0):
        self.stack[-1].append(Marker('waitvm', name, back))
    def wait_vm_all(self):
        self.e("s_waitcnt vmcnt(0)")
    def loop_begin(self, label, trips):
        l = Loop(label, trips)
        self.stack[-1].append(l)
        self.stack.append(l.body)
        return l
    def loop_end(self):
        self.stack.pop()

    def trace(self, items=None):
        out = []
        for it in (self.items if items is None else items):
            if it.kind == 'loop':
                for _ in range(it.trips):
                    out += self.trace(it.body)
            else:
                out.append(it)
        return out

    def resolve(self):
        tr = self.trace()
        changed = True
        rounds = 0
        while changed:
            changed = False
            rounds += 1
            assert rounds < 20
            changed |= self._pass_waits(tr)
            changed |= self._pass_hazards(tr)

    def _pass_waits(self, tr):
        changed = False
        lg = []
        vm = []
        inst = {}
        def apply_lg(n):
            del lg[:max(0, len(lg) - n)]
        def apply_vm(n):
            if n == 0:
                del vm[:]; return
            keep = []; cnt = 0
            for ent in reversed(vm):
                if ent[0].kind == 'vstore': keep.append(ent)
                elif cnt < n: keep.append(ent); cnt += 1
            keep.reverse()
            st = [e_ for e_ in keep if e_[0].kind == 'vstore']
            drop = set(id(x) for x in st[:max(0, len(st) - n)])
            vm[:] = [e_ for e_ in keep if id(e_) not in drop]
        for it in tr:
            if it.kind == 'marker':
                if it.what == 'group':
                    inst[it.name] = inst.get(it.name, 0) + 1
                elif it.what == 'waitvm':
                    target = inst.get(it.name, 0) - it.back
                    idx = -1
                    for i, (o, g, n) in enumerate(vm):
                        if g == it.name and n <= target: idx = i
                    need = 63 if idx < 0 else min(63, sum(1 for (o2, g2, n2) in vm[idx + 1:] if o2.kind != 'vstore'))
                    if idx >= 0: assert vm[idx][0].kind != 'vstore', "counted wait on stores is not safe"
                    if it.n is None or need < it.n:
                        it.n = need; changed = True
                    if it.n < 63: apply_vm(it.n)
                continue
            if it.kind == 'label' or it.kind == 'loop': continue
            if it.kind == 's_waitcnt':
                if it.tag == 'nocredit': continue
                m = re.search(r'lgkmcnt\((\d+)\)', it.text)
                if m: apply_lg(int(m.group(1)))
                m = re.search(r'vmcnt\((\d+)\)', it.text)
                if m: apply_vm(int(m.group(1)))
                continue
            touched = it.defs | it.uses
            need = None
            for i, o in enumerate(lg):
                if o.kind in ('ds_read', 'smem') and (o.defs & touched):
                    n = 0 if o.kind == 'smem' or any(x.kind == 'smem' for x in lg) else len(lg) - 1 - i
                    need = n if need is None else min(need, n)
            if need is not None:
                need = min(need, 15)
                if it.pre_lgkm is None or need < it.pre_lgkm:
                    it.pre_lgkm = need; changed = True
            if it.pre_lgkm is not None: apply_lg(it.pre_lgkm)
            need = None
            for i, (o, g, n) in enumerate(vm):
                if o.kind == 'vload' and (o.defs & touched):
                    k = sum(1 for (o2, g2, n2) in vm[i + 1:] if o2.kind != 'vstore')
                    need = k if need is None else min(need, k)
            if need is not None:
                need = min(need, 63)
                if it.pre_vm is None or need < it.pre_vm:
                    it.pre_vm = need; changed = True
            if it.pre_vm is not None: apply_vm(it.pre_vm)
            if it.kind in ('ds_read', 'ds_write', 'smem') and it.tag != 'nocount':
                lg.append(it)
            if it.kind in ('dma', 'vload', 'vstore') and it.tag != 'nocount':
                vm.append((it, it.tag, inst.get(it.tag, 0)))
                assert len(vm) <= 63, "more than 63 outstanding vmem ops at: " + it.text
        return changed

    def _pass_hazards(self, tr):
        changed = False
        hist = []
        slot = 0
        last = {}
        mfma_w = {}
        mfma_c = {}
        valu_w = {}
        trans_w = {}
        valu_sw = {}
        m0_w = -100
        store_data = {}
        exec_w = -100
        dot_w = {}
        for it in tr:
            if it.kind in ('marker', 'label', 'loop'): continue
            req = 0
            def need(producer_slot, ws):
                nonlocal req
                req = max(req, producer_slot + 1 + ws)
            k = it.kind
            if k == 'mfma':
                for r in it.uses:
                    if r in valu_w: need(valu_w[r], 2)
                AB = it.meta['A'] | it.meta['B']
                for r in AB:
                    if r in mfma_w:
                        s, p, d = mfma_w[r]; need(s, {4: 8, 8: 12}[p])
                C = it.meta['C']
                for r in C:
                    if r in mfma_w:
                        s, p, d = mfma_w[r]
                        if d == frozenset(C) and p == it.passes: pass
                        else: need(s, {4: 6, 8: 10}[p])
                for r in it.defs:
                    if r in mfma_w:
                        s, p, d = mfma_w[r]
                        if not (d == frozenset(it.defs) and p == it.passes): need(s, {4: 8, 8: 12}[p])
                if exec_w > -100: need(exec_w, 4)
            elif k in ('valu', 'ds_read', 'ds_write', 'dma', 'vload', 'vstore'):
                for r in (it.uses | it.defs):
                    if r in mfma_w:
                        s, p, d = mfma_w[r]; need(s, {4: 8, 8: 12}[p])
                if k == 'valu' or k in ('ds_read', 'vload'):
                    for r in it.defs:
                        if r in mfma_c and k == 'valu':
                            s, p = mfma_c[r]; need(s, {4: 3, 8: 7}[p])
                        if r in store_data: need(store_data[r], 2 if k == 'valu' else 1)
                if k in ('valu', 'ds_write', 'vstore'):
                    isdot = it.mn.startswith('v_dot2c')
                    for r in (it.uses | it.defs):
                        if r in dot_w and not (isdot and r in it.defs): need(dot_w[r], 3)
                if k == 'valu':
                    if it.mn not in TRANS:
                        for r in it.uses:
                            if r in trans_w: need(trans_w[r], 1)
                    else:
                        for r in it.uses:
                            if r in trans_w: need(trans_w[r], 1)
                    for r in it.uses:
                        if r in valu_sw:
                            need(valu_sw[r], 4 if it.mn.startswith(('v_readlane', 'v_writelane')) else 2)
                    if it.mn.startswith(('v_readfirstlane', 'v_readlane')):
                        for r in it.uses:
                            if r in valu_w: need(valu_w[r], 1)
                    if it.mn.startswith('v_permlane') or 'dpp' in it.text or 'row_' in it.text or 'quad_perm' in it.text:
                        for r in it.uses:
                            if r in valu_w: need(valu_w[r], 2)
                if k in ('dma', 'vload', 'vstore'):
                    for r in it.uses:
                        if r in valu_sw: need(valu_sw[r], 5)
                    if k == 'dma': need(m0_w, 1)
                if k in ('ds_write', 'vstore', 'ds_read', 'dma', 'vload'):
                    for r in it.uses:
                        if r in trans_w: need(trans_w[r], 1)
            elif k == 'salu':
                for r in it.uses:
                    if r in valu_sw: need(valu_sw[r], 4)
            pre = (1 if it.pre_lgkm is not None or it.pre_vm is not None else 0)
            if it.pre_lgkm is not None and it.pre_vm is not None: pre = 1
            have = slot + pre + it.pre_nop
            if req > have:
                it.pre_nop += req - have; changed = True
                have = req
            slot = have
            if k == 'mfma':
                for r in it.defs:
                    mfma_w[r] = (slot, it.passes, frozenset(it.defs)); valu_w.pop(r, None); trans_w.pop(r, None)
                for r in it.meta['C']: mfma_c[r] = (slot, it.passes)
            elif k == 'valu':
                for r in it.defs:
                    if r[0] == 's' or r == ('x', 'vcc'): valu_sw[r] = slot
                    elif r == ('x', 'exec'): exec_w = slot
                    else:
                        valu_w[r] = slot; mfma_w.pop(r, None)
                        if it.mn.startswith('v_dot2c'): dot_w[r] = slot
                        else: dot_w.pop(r, None)
                        if it.mn in TRANS: trans_w[r] = slot
                        else: trans_w.pop(r, None)
            elif k in ('ds_read', 'vload'):
                for r in it.defs:
                    mfma_w.pop(r, None); valu_w.pop(r, None); trans_w.pop(r, None)
            elif k == 'salu':
                for r in it.defs:
                    valu_sw.pop(r, None)
                    if r == ('x', 'm0'): m0_w = slot
            elif k == 'vstore' and it.meta and 'data' in it.meta and ('x4' in it.mn or 'x3' in it.mn):
                for r in it.meta['data']: store_data[r] = slot
            if k == 's_nop':
                n = int(it.text.split()[1]); slot += n + 1
            else:
                slot += 1
        return changed

    def text(self, items=None, out=None):
        top = out is None
        if top: out = []
        for it in (self.items if items is None else items):
            if it.kind == 'loop':
                out.append(it.label + ':')
                self.text(it.body, out)
            elif it.kind == 'marker':
                if it.what == 'waitvm' and it.n is not None and it.n < 63:
                    out.append('s_waitcnt vmcnt(%d)' % it.n)
            else:
                w = []
                if it.pre_vm is not None: w.append('vmcnt(%d)' % it.pre_vm)
                if it.pre_lgkm is not None: w.append('lgkmcnt(%d)' % it.pre_lgkm)
                if w: out.append('s_waitcnt ' + ' '.join(w))
                n = it.pre_nop
                while n > 0:
                    c = min(n, 16); out.append('s_nop %d' % (c - 1)); n -= c
                out.append(it.text)
        if top: return '\n'.join(out)
```

```python
import sys, os
from asmgen import Prog, Ins

KNAME = "concat_heads__gqa_block_cached__mha_block_cached__near_ridge_kernel"

class Cfg:
    aux_kv = "nt"
    aux_w = ""
    aux_x = ""
    aux_wo = ""
    aux_st = "sc1"
    aux_rd = "sc1"
    stamps = False
    dbg = False
    dbg_wg = 128
    rot = True
    fuse = True
    fine = False
    early_dma = True
    krow = True
    code_pf = False
    code_bytes = 32768
    f1_drain = True
    exp_kpre = 4
    kstart = 22
    tlbwarm = True
    exp_nowx = False
    def __init__(self, **kw):
        for k, v in kw.items():
            assert hasattr(Cfg, k), k
            setattr(self, k, v)

SLOT = [0, 32768, 65536]
WB = 65536
XB = 114688
R = 98304
ST = 159744
PART = 86016
TS_OFF = 64 << 20
FLAG_OFF = 32 << 20

vK0, vK1, vV, vW, vX = 1, 2, 3, 4, 5
vVD = [3, 41, 42, 43]
vKr0, vKr1 = 6, 7
vVr0, vVr1 = 8, 9
vXr = [10, 11, 12, 13]
vQr = [14, 15, 16, 17]
vPw = 18
vQw = 19
vWor = 20
vStW, vStR = 21, 22
vStO = 23
vM = [24, 25, 26, 27, 28, 29]
vL = [30, 31, 32, 33, 34, 35]
vWoD = list(range(160, 168))
vA0, vA1 = 38, 39
vNonce = 40
vKT = 6
vT = list(range(44, 64))
vS = 64

def S(i, t): return vS + (i * 6 + t) * 4

s_w = 3
sT0, sSoff, sT1, sT2 = 4, 5, 6, 7
SRD_X, SRD_W, SRD_K, SRD_V, SRD_O, SRD_P = 8, 12, 16, 20, 24, 28
s_c = 32
s_kvb = 33
s_wrb = 34
s_w1k = 35
sCW = list(range(36, 43))
sCX = list(range(44, 51))
sWO = list(range(36, 43))
sST = list(range(44, 51))
s_ws = 58
s_cnt = 60
s_ng, s_ng2, s_slotR, s_slotN, s_slotD, s_stoff, s_stprev, s_wooff = 71, 72, 73, 74, 75, 76, 77, 78
s_b, s_hh, s_h, s_br = 79, 80, 81, 82
s_G = 83
s_tsoff = 88
s_nonce = 94
s_ones = 95
SRD_G, SRD_OUT = 64, 68
SRD_OUT = 52
s_dbgp = 96
s_outp = 98

def srd(n): return "s[%d:%d]" % (n, n + 3)
def vr(n, c=4): return "v[%d:%d]" % (n, n + c - 1)
def ar(n, c=4): return "a[%d:%d]" % (n, n + c - 1)

def weave(main, fill, lo=0, hi=None):
    if hi is None: hi = len(main)
    out = []
    n = hi - lo
    k = 0
    for i, m in enumerate(main):
        out.append(m)
        if lo <= i < hi:
            tgt = min(len(fill), -(-(len(fill) * (i - lo + 1)) // n))
            while k < tgt:
                out.append(fill[k]); k += 1
    while k < len(fill):
        out.append(fill[k]); k += 1
    return out

def merge(a, b):
    if not a: return list(b)
    if not b: return list(a)
    return weave(a, b) if len(a) >= len(b) else weave(b, a)

class K1:
    def __init__(self, cfg):
        self.cfg = cfg
        self.p = Prog()
        self.nstamp = 0
        self.vTs = 62

    def emit(self, seq):
        for u in seq:
            if isinstance(u, (list, tuple)): self.emit(u)
            elif callable(u): u()
            elif isinstance(u, Ins): self.p.raw(u)
            else: self.p.e(u)

    def dma(self, vaddr, srdn, soff, m0, tag, aux, imm=0):
        u = []
        if m0 is not None:
            if isinstance(m0, int): u.append("s_mov_b32 m0, %d" % m0)
            else: u.append("s_add_u32 m0, s%d, %d" % m0 if m0[1] else "s_mov_b32 m0, s%d" % m0[0])
        if isinstance(soff, int):
            u.append("s_mov_b32 s%d, %d" % (sSoff, soff)); sreg = sSoff
        elif soff[1] is None:
            sreg = soff[0]
            if m0 is not None: u.append("s_nop 0")
        else:
            u.append("s_add_u32 s%d, s%d, %d" % (sSoff, soff[0], soff[1])); sreg = sSoff
        u.append(Ins("buffer_load_dwordx4 v%d, %s, s%d offen %s%s lds" % (vaddr, srd(srdn), sreg, ("offset:%d " % imm) if imm else "", aux), tag))
        return u

    def stamp(self):
        cfg = self.cfg
        if cfg.dbg:
            i = self.nstamp; self.nstamp += 1
            lab = "L_st%d" % i
            return ["s_cmp_lg_u32 s89, 0", "s_cbranch_scc1 %s" % lab,
                    Ins("s_memrealtime s[86:87]", "nocount"), Ins("s_waitcnt lgkmcnt(0)", "nocredit"),
                    "v_mov_b32 v%d, s86" % self.vTs, "v_mov_b32 v%d, %d" % (self.vTs + 1, 4 * (i + 1)),
                    Ins("global_store_dword v%d, v%d, s[100:101]" % (self.vTs + 1, self.vTs), 'nocount'), lab + ":"]
        if not cfg.stamps: return []
        i = self.nstamp; self.nstamp += 1
        return ["s_memrealtime s[86:87]", "s_memtime s[92:93]", "s_waitcnt lgkmcnt(0)",
                "v_mov_b32 v%d, s86" % self.vTs, "v_mov_b32 v%d, s%d" % (self.vTs + 1, s_tsoff),
                Ins("global_store_dword v%d, v%d, s[84:85] offset:%d" % (self.vTs + 1, self.vTs, 4 * i), 'nocount'),
                "v_mov_b32 v%d, s92" % self.vTs,
                Ins("global_store_dword v%d, v%d, s[84:85] offset:%d" % (self.vTs + 1, self.vTs, 128 + 4 * i), 'nocount')]

    @staticmethod
    def kv_slot(n):
        return SLOT[n % 3]
    def kv_block(self, n):
        cfg = self.cfg
        slot = self.kv_slot(n)
        tag = "B%d" % n
        us = [lambda: self.p.group(tag)]
        if n < 8 and cfg.krow:
            for m in range(8):
                tmp = vK1 if m & 1 else vKT
                u = ["v_xor_b32 v%d, %d, v%d" % (tmp, 32 * m, vK0)]
                if m % 4 == 0:
                    u += self.dma(tmp, SRD_K, n * 32768 + m * 1024, (s_kvb, slot + m * 1024), tag, cfg.aux_kv)
                else:
                    u += self.dma(tmp, SRD_K, (sSoff, None), None, tag, cfg.aux_kv, imm=(m % 4) * 1024)
                us.append(u)
        elif n < 8:
            for m in range(4):
                for kh in range(2):
                    us.append(self.dma(vK1 if kh else vK0, SRD_K, n * 32768 + m * 128, (s_kvb, slot + (m * 2 + kh) * 1024), tag, cfg.aux_kv))
        else:
            for m in range(8):
                if m % 4 == 0:
                    us.append(self.dma(vVD[0], SRD_V, (n - 8) * 32768 + m * 4096, (s_kvb, slot + m * 1024), tag, cfg.aux_kv))
                else:
                    us.append(self.dma(vVD[m % 4], SRD_V, (sSoff, None), None, tag, cfg.aux_kv, imm=(m % 4) * 1024))
        return us

    def build(self):
        cfg, p, e = self.cfg, self.p, self.p.e
        e("s_cmp_ge_u32 s2, 256")
        e("s_cbranch_scc1 L_k1_end")
        e("s_load_dwordx8 s[36:43], s[0:1], 0")
        e("s_load_dwordx2 s[44:45], s[0:1], 32")
        e("s_load_dwordx8 s[48:55], s[0:1], 40")
        e("s_load_dwordx2 s[56:57], s[0:1], 72")
        e("s_load_dwordx2 s[58:59], s[0:1], 96")
        e("s_load_dwordx4 s[96:99], s[0:1], 80")
        e("v_lshrrev_b32 v60, 6, v0")
        e("v_and_b32 v0, 63, v0")
        e("v_readfirstlane_b32 s%d, v60" % s_w)
        e("s_and_b32 s4, s2, 7")
        e("s_lshr_b32 s6, s2, 3")
        e("s_lshr_b32 s%d, s6, 4" % s_br)
        e("s_lshr_b32 s%d, s6, 1" % s_b)
        e("s_and_b32 s%d, s%d, 7" % (s_b, s_b))
        e("s_and_b32 s%d, s6, 1" % s_hh)
        e("s_lshl_b32 s%d, s4, 1" % s_h)
        e("s_add_u32 s%d, s%d, s%d" % (s_h, s_h, s_hh))
        e("s_lshl_b32 s6, s%d, 3" % s_b); e("s_add_u32 s6, s6, s4")
        e("s_lshl_b32 s7, s%d, 4" % s_b); e("s_add_u32 s7, s7, s%d" % s_h)
        e("s_cmp_eq_u32 s%d, 0" % s_br)
        e("s_cselect_b32 s6, s6, s7")
        e("s_lshl_b32 s61, s6, 18")
        e("s_lshl_b32 s%d, s%d, 13" % (s_kvb, s_w))
        e("s_mul_i32 s%d, s%d, 12288" % (s_wrb, s_w)); e("s_add_u32 s%d, s%d, %d" % (s_wrb, s_wrb, WB))
        e("s_lshl_b32 s%d, s%d, 10" % (s_w1k, s_w))
        e("s_mov_b32 s%d, 0x3db8aa3b" % s_c)
        e("s_lshl_b32 s%d, s%d, 3" % (s_G, s_br)); e("s_add_u32 s%d, s%d, s%d" % (s_G, s_G, s_b))
        if cfg.rot:
            e("s_mul_i32 s62, s%d, 3" % s_hh); e("s_add_u32 s62, s62, s%d" % s_b)
            e("s_cmp_ge_u32 s62, 7"); e("s_cselect_b32 s6, 7, 0"); e("s_sub_u32 s62, s62, s6")
        else:
            e("s_mov_b32 s62, 0")
        t0, t1, t2, t3, t4 = vT[:5]
        l3, l7, l4, i15 = vT[5:9]
        e("v_lshrrev_b32 v%d, 3, v0" % l3)
        e("v_and_b32 v%d, 7, v0" % l7)
        e("v_lshrrev_b32 v%d, 4, v0" % l4)
        e("v_and_b32 v%d, 15, v0" % i15)
        e("v_and_b32 v%d, 1, v%d" % (t0, l4)); e("v_lshlrev_b32 v%d, 2, v%d" % (t0, t0))
        e("v_xor_b32 v%d, v%d, v%d" % (t0, l7, t0)); e("v_lshlrev_b32 v%d, 4, v%d" % (t0, t0))
        e("s_lshl_b32 s6, s%d, 7" % s_w)
        e("v_add_u32 v%d, s6, v%d" % (t0, t0))
        e("v_lshlrev_b32 v%d, 13, v%d" % (t1, l3)); e("v_add_u32 v%d, v%d, v%d" % (vW, t0, t1))
        e("v_lshlrev_b32 v%d, 9, v%d" % (t1, l3)); e("v_add_u32 v%d, v%d, v%d" % (vV, t0, t1))
        e("s_lshl_b32 s6, s%d, 3" % s_w); e("v_add_u32 v%d, s6, v%d" % (t2, l3)); e("v_mul_u32_u24 v%d, 896, v%d" % (t2, t2))
        e("s_and_b32 s7, s%d, 1" % s_w); e("s_lshl_b32 s7, s7, 2")
        e("v_add_u32 v%d, s7, v%d" % (t3, l4)); e("v_xor_b32 v%d, v%d, v%d" % (t3, l7, t3)); e("v_lshlrev_b32 v%d, 4, v%d" % (t3, t3))
        e("v_add_u32 v%d, v%d, v%d" % (vX, t2, t3))
        e("s_waitcnt lgkmcnt(0)")
        if cfg.stamps:
            e("s_mov_b32 s84, s58"); e("s_mov_b32 s85, s59")
            e("s_lshl_b32 s%d, s2, 2" % s_tsoff); e("s_add_u32 s%d, s%d, s%d" % (s_tsoff, s_tsoff, s_w))
            e("s_lshl_b32 s%d, s%d, 8" % (s_tsoff, s_tsoff)); e("s_add_u32 s%d, s%d, %d" % (s_tsoff, s_tsoff, TS_OFF))
        if cfg.dbg:
            e("s_sub_u32 s89, s2, %d" % cfg.dbg_wg); e("s_or_b32 s89, s89, s%d" % s_w)
            e("s_mov_b32 s100, s98"); e("s_mov_b32 s101, s99")
        self.emit(self.stamp())
        e("s_cmp_eq_u32 s%d, 0" % s_br)
        for (dst, a, b) in ((SRD_X, 36, 48), (SRD_K, 38, 50), (SRD_V, 40, 52), (SRD_W, 42, 54), (SRD_O, 44, 56)):
            e("s_cselect_b32 s%d, s%d, s%d" % (dst, a, b)); e("s_cselect_b32 s%d, s%d, s%d" % (dst + 1, a + 1, b + 1))
        e("s_mul_i32 s4, s%d, %d" % (s_b, PART))
        e("s_add_u32 s%d, s%d, s4" % (SRD_X, SRD_X)); e("s_addc_u32 s%d, s%d, 0" % (SRD_X + 1, SRD_X + 1))
        e("s_mov_b32 s%d, %d" % (SRD_X + 2, PART)); e("s_mov_b32 s%d, 0x20000" % (SRD_X + 3))
        e("s_lshl_b32 s4, s%d, 9" % s_h)
        e("s_add_u32 s%d, s%d, s4" % (SRD_W, SRD_W)); e("s_addc_u32 s%d, s%d, 0" % (SRD_W + 1, SRD_W + 1))
        e("s_sub_u32 s%d, %d, s4" % (SRD_W + 2, 448 * 8192)); e("s_mov_b32 s%d, 0x20000" % (SRD_W + 3))
        for c in range(7):
            if c == 0: e("s_mov_b32 s63, s62")
            else:
                e("s_add_u32 s63, s63, 1"); e("s_cmp_eq_u32 s63, 7"); e("s_cselect_b32 s63, 0, s63")
            e("s_lshl_b32 s%d, s63, 7" % sCX[c]); e("s_lshl_b32 s%d, s63, 19" % sCW[c])
            if c == 0:
                pass
        def xdma(c):
            us = [lambda: p.group("X%d" % c)]
            for i in range(3):
                us.append(self.dma(vX, SRD_X, (sCX[c], i * 32 * 896), (s_w1k, XB + (c % 3) * 12288 + i * 4096), "X%d" % c, cfg.aux_x))
            return us
        def wdma(n):
            us = [lambda: p.group("W%d" % n)]
            for m in range(2):
                us.append(self.dma(vW, SRD_W, (sCW[n >> 2], ((n & 3) * 16 + 8 * m) * 8192), (s_wrb, (n % 6) * 2048 + m * 1024), "W%d" % n, cfg.aux_w))
            return us
        self.emit(xdma(0)); self.emit(wdma(0)); self.emit(wdma(1))
        if cfg.code_pf:
            e("s_getpc_b64 s[90:91]")
            e("L_pcbase:")
            e("s_lshr_b32 s4, s2, 3"); e("s_lshl_b32 s4, s4, 11")
            e("v_lshlrev_b32 v%d, 7, v0" % t0); e("v_add_u32 v%d, s4, v%d" % (t0, t0))
            e("v_mov_b32 v%d, s91" % (t2 + 1))
            e("v_add_co_u32 v%d, vcc, s90, v%d" % (t2, t0)); e("v_addc_co_u32 v%d, vcc, 0, v%d, vcc" % (t2 + 1, t2 + 1))
            e("v_cmp_gt_u32 vcc, L_k1_end-L_pcbase, v%d" % t0)
            e("s_mov_b64 s[90:91], exec"); e("s_and_b64 exec, vcc, 0xffff")
            e("s_cbranch_execz L_nopf")
            p.raw(Ins("global_load_dword v43, v[%d:%d], off" % (t2, t2 + 1), "nocount"))
            e("L_nopf:")
            e("s_mov_b64 exec, s[90:91]")
        e("s_add_u32 s%d, s%d, s61" % (SRD_K, SRD_K)); e("s_addc_u32 s%d, s%d, 0" % (SRD_K + 1, SRD_K + 1))
        e("s_mov_b32 s%d, 262144" % (SRD_K + 2)); e("s_mov_b32 s%d, 0x20000" % (SRD_K + 3))
        e("s_add_u32 s%d, s%d, s61" % (SRD_V, SRD_V)); e("s_addc_u32 s%d, s%d, 0" % (SRD_V + 1, SRD_V + 1))
        e("s_mov_b32 s%d, 262144" % (SRD_V + 2)); e("s_mov_b32 s%d, 0x20000" % (SRD_V + 3))
        e("s_mul_i32 s4, s%d, %d" % (s_h, 256 * 896))
        e("s_add_u32 s%d, s%d, s4" % (SRD_O, SRD_O)); e("s_addc_u32 s%d, s%d, 0" % (SRD_O + 1, SRD_O + 1))
        e("s_mov_b32 s%d, %d" % (SRD_O + 2, 256 * 896)); e("s_mov_b32 s%d, 0x20000" % (SRD_O + 3))
        e("s_lshl_b32 s4, s%d, 4" % s_G); e("s_add_u32 s4, s4, s%d" % s_h); e("s_mul_i32 s4, s4, %d" % PART)
        e("s_add_u32 s%d, s58, s4" % SRD_P); e("s_addc_u32 s%d, s59, 0" % (SRD_P + 1))
        e("s_mov_b32 s%d, %d" % (SRD_P + 2, PART)); e("s_mov_b32 s%d, 0x20000" % (SRD_P + 3))
        e("s_mov_b32 s%d, s96" % SRD_OUT); e("s_mov_b32 s%d, s97" % (SRD_OUT + 1))
        e("s_mov_b32 s%d, %d" % (SRD_OUT + 2, 8 * 96 * 1792)); e("s_mov_b32 s%d, 0x20000" % (SRD_OUT + 3))
        e("s_mov_b32 s%d, s98" % s_dbgp); e("s_mov_b32 s%d, s99" % (s_dbgp + 1))
        if cfg.fuse:
            e("s_or_b32 s4, s2, s%d" % s_w); e("s_cmp_lg_u32 s4, 0"); e("s_cbranch_scc1 L_nononce")
            p.raw(Ins("s_memrealtime s[90:91]", "nocount")); p.raw(Ins("s_waitcnt lgkmcnt(0)", "nocredit")); e("s_or_b32 s90, s90, 1")
            e("v_mov_b32 v%d, s90" % t0); e("v_mov_b32 v%d, 0" % t1)
            p.raw(Ins("global_store_dword v%d, v%d, s[%d:%d] sc1" % (t1, t0, s_dbgp, s_dbgp + 1), 'nocount'))
            e("L_nononce:")
        if cfg.krow:
            e("v_lshrrev_b32 v%d, 5, v0" % t0); e("v_and_b32 v%d, 31, v0" % t1); e("v_xor_b32 v%d, v%d, v%d" % (t1, t1, t0))
            e("v_lshlrev_b32 v%d, 4, v%d" % (t1, t1)); e("v_lshlrev_b32 v%d, 9, v%d" % (t0, t0)); e("v_add_u32 v%d, v%d, v%d" % (t0, t0, t1))
            e("v_add_u32 v%d, s%d, v%d" % (vK0, s_kvb, t0))
        else:
            e("s_lshl_b32 s4, s%d, 4" % s_w)
            e("v_add_u32 v%d, s4, v%d" % (t0, l3)); e("v_lshlrev_b32 v%d, 9, v%d" % (t0, t0))
            e("v_xor_b32 v%d, v%d, v%d" % (t1, l7, l4)); e("v_lshlrev_b32 v%d, 4, v%d" % (t1, t1))
            e("v_add_u32 v%d, v%d, v%d" % (vK0, t0, t1))
            e("v_xor_b32 v%d, 64, v%d" % (vK1, vK0)); e("v_add_u32 v%d, 4096, v%d" % (vK1, vK1))
        if not cfg.krow:
            e("v_lshrrev_b32 v%d, 3, v%d" % (t0, i15)); e("v_lshlrev_b32 v%d, 10, v%d" % (t0, t0))
            e("v_and_b32 v%d, 7, v%d" % (t1, i15)); e("v_lshlrev_b32 v%d, 7, v%d" % (t1, t1)); e("v_add_u32 v%d, v%d, v%d" % (t0, t0, t1))
            e("v_lshrrev_b32 v%d, 1, v%d" % (t1, i15)); e("v_xor_b32 v%d, v%d, v%d" % (t1, l4, t1)); e("v_lshlrev_b32 v%d, 4, v%d" % (t1, t1))
            e("v_add_u32 v%d, v%d, v%d" % (t0, t0, t1)); e("v_add_u32 v%d, s%d, v%d" % (vKr0, s_kvb, t0)); e("v_xor_b32 v%d, 64, v%d" % (vKr1, vKr0))
        e("v_lshrrev_b32 v%d, 5, v0" % t0); e("v_lshlrev_b32 v%d, 3, v%d" % (t0, t0)); e("v_lshrrev_b32 v%d, 2, v%d" % (t1, i15))
        e("v_add_u32 v%d, v%d, v%d" % (t0, t0, t1)); e("v_lshlrev_b32 v%d, 7, v%d" % (t0, t0))
        e("v_and_b32 v%d, 1, v%d" % (t1, l4)); e("v_lshlrev_b32 v%d, 1, v%d" % (t1, t1))
        e("v_and_b32 v%d, 3, v%d" % (t4, i15)); e("v_lshrrev_b32 v%d, 1, v%d" % (t4, t4)); e("v_add_u32 v%d, v%d, v%d" % (t1, t1, t4))
        e("v_lshrrev_b32 v%d, 3, v%d" % (t4, i15)); e("v_lshlrev_b32 v%d, 2, v%d" % (t4, t4)); e("v_xor_b32 v%d, v%d, v%d" % (t1, t1, t4))
        e("v_lshlrev_b32 v%d, 4, v%d" % (t1, t1)); e("v_add_u32 v%d, v%d, v%d" % (t0, t0, t1))
        e("v_and_b32 v%d, 1, v%d" % (t1, i15)); e("v_lshlrev_b32 v%d, 3, v%d" % (t1, t1)); e("v_add_u32 v%d, v%d, v%d" % (t0, t0, t1))
        e("v_add_u32 v%d, s%d, v%d" % (vVr0, s_kvb, t0)); e("v_xor_b32 v%d, 64, v%d" % (vVr1, vVr0))
        e("v_add_u32 v%d, s%d, v%d" % (vA0, s_wrb, t0)); e("v_xor_b32 v%d, 64, v%d" % (vA1, vA0))
        e("v_and_b32 v%d, 31, v0" % t0); e("v_lshrrev_b32 v%d, 1, v%d" % (t1, t0)); e("v_and_b32 v%d, 7, v%d" % (t1, t1))
        e("v_lshrrev_b32 v%d, 5, v0" % t4); e("v_xor_b32 v%d, v%d, v%d" % (t1, t1, t4)); e("v_lshlrev_b32 v%d, 4, v%d" % (t1, t1))
        e("v_lshlrev_b32 v%d, 7, v%d" % (t0, t0)); e("v_add_u32 v%d, v%d, v%d" % (t0, t0, t1)); e("v_add_u32 v%d, %d, v%d" % (vXr[0], XB, t0))
        for j in range(1, 4): e("v_xor_b32 v%d, %d, v%d" % (vXr[j], 32 * j, vXr[0]))
        e("v_xor_b32 v%d, v%d, v%d" % (t1, l4, i15)); e("v_lshlrev_b32 v%d, 4, v%d" % (t1, t1)); e("v_lshlrev_b32 v%d, 9, v%d" % (t0, i15))
        e("v_add_u32 v%d, v%d, v%d" % (t0, t0, t1)); e("v_add_u32 v%d, %d, v%d" % (vQr[0], R, t0))
        for j in range(1, 4): e("v_xor_b32 v%d, %d, v%d" % (vQr[j], 64 * j, vQr[0]))
        e("s_lshl_b32 s6, s%d, 1" % s_w)
        e("v_lshrrev_b32 v%d, 1, v%d" % (t0, l4)); e("v_add_u32 v%d, s6, v%d" % (t0, t0)); e("v_lshrrev_b32 v%d, 1, v%d" % (t1, i15))
        e("v_xor_b32 v%d, v%d, v%d" % (t0, t0, t1)); e("v_lshlrev_b32 v%d, 4, v%d" % (t0, t0))
        e("v_lshlrev_b32 v%d, 7, v%d" % (t1, i15)); e("v_add_u32 v%d, v%d, v%d" % (t0, t0, t1))
        e("v_and_b32 v%d, 1, v%d" % (t1, l4)); e("v_lshlrev_b32 v%d, 3, v%d" % (t1, t1)); e("v_add_u32 v%d, v%d, v%d" % (t0, t0, t1))
        e("v_add_u32 v%d, %d, v%d" % (vPw, R, t0))
        e("s_lshl_b32 s6, s%d, 3" % s_w)
        e("v_xor_b32 v%d, s6, v%d" % (t0, i15)); e("v_lshlrev_b32 v%d, 4, v%d" % (t0, t0))
        e("v_and_b32 v%d, 31, v0" % t1); e("v_lshlrev_b32 v%d, 9, v%d" % (t1, t1)); e("v_add_u32 v%d, v%d, v%d" % (t0, t0, t1))
        e("v_lshrrev_b32 v%d, 5, v0" % t1); e("v_lshlrev_b32 v%d, 3, v%d" % (t1, t1)); e("v_add_u32 v%d, v%d, v%d" % (t0, t0, t1))
        e("v_add_u32 v%d, %d, v%d" % (vQw, R, t0))
        e("v_lshlrev_b32 v%d, 3, v%d" % (t0, l4)); e("v_lshrrev_b32 v%d, 2, v%d" % (t1, i15)); e("v_add_u32 v%d, v%d, v%d" % (t0, t0, t1)); e("v_lshlrev_b32 v%d, 7, v%d" % (t0, t0))
        e("s_lshl_b32 s6, s%d, 1" % s_w)
        e("v_and_b32 v%d, 3, v%d" % (t1, i15)); e("v_lshrrev_b32 v%d, 1, v%d" % (t1, t1)); e("v_add_u32 v%d, s6, v%d" % (t1, t1))
        e("v_lshrrev_b32 v%d, 3, v%d" % (t4, i15)); e("v_and_b32 v%d, 1, v%d" % (t3, l4)); e("v_lshlrev_b32 v%d, 1, v%d" % (t3, t3)); e("v_or_b32 v%d, v%d, v%d" % (t4, t4, t3))
        e("v_lshlrev_b32 v%d, 1, v%d" % (t4, t4)); e("v_xor_b32 v%d, v%d, v%d" % (t1, t1, t4)); e("v_lshlrev_b32 v%d, 4, v%d" % (t1, t1)); e("v_add_u32 v%d, v%d, v%d" % (t0, t0, t1))
        e("v_and_b32 v%d, 1, v%d" % (t1, i15)); e("v_lshlrev_b32 v%d, 3, v%d" % (t1, t1)); e("v_add_u32 v%d, v%d, v%d" % (vWor, t0, t1))
        e("v_lshlrev_b32 v%d, 4, v%d" % (t0, i15)); e("v_add_u32 v%d, %d, v%d" % (vStR, ST, t0))
        e("s_lshl_b32 s6, s%d, 2" % s_w); e("v_add_u32 v%d, s6, v%d" % (vStW, vStR))
        e("v_lshlrev_b32 v%d, 4, v0" % vStO)

        def qacc(dt, qt): return vS + (dt * 3 + qt) * 16
        FA = lambda buf, dt: buf * 20 + dt * 4
        FB = lambda buf, qt: buf * 20 + 8 + qt * 4
        def q_reads(n):
            buf = n & 3; sl = (n % 6) * 2048; xs = ((n >> 2) % 3) * 12288
            rd = []
            for dt in range(2):
                va = vA0 if dt == 0 else vA1
                for jj in range(2):
                    rd.append("ds_read_b64_tr_b16 %s, v%d offset:%d" % (ar(FA(buf, dt) + 2 * jj, 2), va, sl + jj * 512))
            for qt in range(3):
                rd.append("ds_read_b128 %s, v%d offset:%d" % (ar(FB(buf, qt)), vXr[n & 3], xs + qt * 4096))
            return [rd[0], rd[1], rd[4], rd[2], rd[3], rd[5], rd[6]]
        def q_mfmas(n):
            buf = n & 3
            return ["v_mfma_f32_32x32x16_bf16 %s, %s, %s, %s" % (vr(qacc(dt, qt), 16), ar(FA(buf, dt)), ar(FB(buf, qt)), "0" if n == 0 else vr(qacc(dt, qt), 16))
                    for qt in range(3) for dt in range(2)]
        def KFr(i, s): return ar(192 + (i & 1) * 32 + s * 4)
        vKa = [vT[8], vT[9], vT[10], vT[11]]
        def k_addr(i):
            if not cfg.krow: return []
            d = self.kv_slot(i) - R
            return ["s_add_u32 s4, s%d, %d" % (s_kvb, d & 0xffffffff)] + ["v_add_u32 v%d, s4, v%d" % (vKa[j], vQr[j]) for j in range(4)]
        def k_read(i, s):
            if cfg.krow:
                return "ds_read_b128 %s, v%d offset:%d" % (KFr(i, s), vKa[s & 3], (s >> 2) * 256)
            slot = self.kv_slot(i)
            base = (vKr1 if s & 1 else vKr0)
            off = slot + (s >> 1) * 2048
            if off >= 65536:
                base = (vT[11] if s & 1 else vT[10]); off -= 65536
            return "ds_read_b128 %s, v%d offset:%d" % (KFr(i, s), base, off)
        self.emit(wdma(2)); self.emit(wdma(3)); self.emit(xdma(1)); self.emit(wdma(4)); self.emit(wdma(5))
        p.wait_vm("X0"); p.wait_vm("W1")
        e("s_barrier")
        self.emit(self.stamp())
        self.emit(q_reads(0)); self.emit(q_reads(1))
        kb01 = self.kv_block(0) + self.kv_block(1)
        k0 = cfg.kstart
        for n in range(28):
            pre = []
            rd = []
            if n + 2 < 28:
                p.wait_vm("W%d" % (n + 2))
                if (n + 2) % 4 == 0:
                    p.wait_vm("X%d" % ((n + 2) >> 2))
                    e("s_waitcnt lgkmcnt(0)")
                    e("s_barrier")
                rd = q_reads(n + 2)
            dm = []
            if n + 6 < 28 and not cfg.exp_nowx: dm += wdma(n + 6)
            if n == 1 and not cfg.exp_nowx: dm += xdma(2)
            if (n + 2) % 4 == 0 and ((n + 2) >> 2) + 2 <= 6 and not cfg.exp_nowx: dm += xdma(((n + 2) >> 2) + 2)
            if k0 <= n < k0 + 6: dm += kb01[(18 * (n - k0)) // 6:(18 * (n - k0 + 1)) // 6]
            mf = q_mfmas(n)
            seq = []
            nr = len(rd)
            rpos = [min(3, (4 * k) // max(nr, 1)) for k in range(nr)]
            dpos = [2 + (4 * k) // max(len(dm), 1) for k in range(len(dm))]
            for i, m in enumerate(mf):
                seq.append(m)
                seq += [rd[k] for k in range(nr) if rpos[k] == i]
                seq += [dm[k] for k in range(len(dm)) if min(dpos[k], 5) == i]
            self.emit(seq)
        self.emit(self.stamp())
        e("s_waitcnt lgkmcnt(0)")
        e("s_barrier")
        blk4 = self.kv_block(2)
        def exch_write(src_of):
            seq = []
            for dt in range(2):
                for rg in range(4):
                    va = vT[12 + ((dt * 4 + rg) & 1)]
                    seq.append("v_xor_b32 v%d, %d, v%d" % (va, (4 * dt + rg) * 16, vQw))
                    for qt in range(3):
                        b = src_of(dt, qt) + rg * 4
                        ta = vT[14 + 2 * qt]
                        seq.append(["v_cvt_pk_bf16_f32 v%d, v%d, v%d" % (ta, b, b + 1), "v_cvt_pk_bf16_f32 v%d, v%d, v%d" % (ta + 1, b + 2, b + 3),
                                    "ds_write_b64 v%d, %s offset:%d" % (va, vr(ta, 2), qt * 16384)])
            return seq
        self.emit(weave(exch_write(qacc), blk4))
        if not cfg.krow:
            e("v_add_u32 v%d, 0x10000, v%d" % (vT[10], vKr0)); e("v_add_u32 v%d, 0x10000, v%d" % (vT[11], vKr1))
        e("s_waitcnt lgkmcnt(0)")
        e("s_barrier")
        self.emit(self.stamp())
        QF = lambda t, s: (s * 6 + t) * 4
        def q_read(t, s):
            return "ds_read_b128 %s, v%d offset:%d" % (ar(QF(t, s)), vQr[s & 3], t * 8192 + (s >> 2) * 256)
        def qk_mfma(i, t, s):
            c = "0" if s == 0 else vr(S(i, t))
            return "v_mfma_f32_16x16x32_bf16 %s, %s, %s, %s" % (vr(S(i, t)), KFr(i, s), ar(QF(t, s)), c)
        def max_ops(i):
            r = []
            for t in range(6):
                b = S(i, t)
                if i == 0:
                    r.append("v_max3_f32 v%d, v%d, v%d, v%d" % (vM[t], b, b + 1, b + 2))
                    r.append("v_max_f32 v%d, v%d, v%d" % (vM[t], vM[t], b + 3))
                else:
                    r.append("v_max3_f32 v%d, v%d, v%d, v%d" % (vM[t], vM[t], b, b + 1))
                    r.append("v_max3_f32 v%d, v%d, v%d, v%d" % (vM[t], vM[t], b + 2, b + 3))
            return r
        for j in range(1, 4): e("v_add_u32 v%d, %d, v%d" % (vVD[j], j * 3072, vV))
        for i in range(8):
            self.emit(k_addr(i))
            p.wait_vm("B%d" % i)
            rd = [k_read(i, s) for s in range(8)]
            dm = self.kv_block(i + 2) if i >= 1 else []
            mx = max_ops(i - 1) if i >= 1 else []
            if i == 0:
                self.emit([rd[0]] + [q_read(t, 0) for t in range(6)])
                for s in range(8):
                    nxq = ([rd[s + 1]] + [q_read(t, s + 1) for t in range(6)]) if s < 7 else []
                    self.emit(weave([qk_mfma(0, t, s) for t in range(6)], nxq))
            else:
                mf = [qk_mfma(i, t, s) for s in range(8) for t in range(6)]
                self.emit(rd)
                self.emit(weave(mf, merge(dm, mx), 2, 47))
            if cfg.fine and i < 7: self.emit(self.stamp())
        self.emit(self.stamp())
        e("v_add_u32 v%d, 0x10000, v%d" % (vA0, vVr0)); e("v_add_u32 v%d, 0x10000, v%d" % (vA1, vVr1))
        self.emit(max_ops(7))
        seq = []
        for t in range(6):
            a = vT[0 + (t & 1)]
            seq += ["v_mov_b32 v%d, v%d" % (a, vM[t]), "v_permlane32_swap_b32 v%d, v%d" % (a, vM[t]), "v_max_f32 v%d, v%d, v%d" % (vM[t], vM[t], a),
                    "v_mov_b32 v%d, v%d" % (a, vM[t]), "v_permlane16_swap_b32 v%d, v%d" % (a, vM[t]), "v_max_f32 v%d, v%d, v%d" % (vM[t], vM[t], a),
                    "ds_write_b32 v%d, v%d offset:%d" % (vStW, vM[t], t * 256)]
        chains = [seq[7 * t:7 * t + 7] for t in range(6)]
        chains = []
        for t in range(6):
            a = vT[t]
            chains.append(["v_mov_b32 v%d, v%d" % (a, vM[t]), "v_permlane32_swap_b32 v%d, v%d" % (a, vM[t]), "v_max_f32 v%d, v%d, v%d" % (vM[t], vM[t], a),
                           "v_mov_b32 v%d, v%d" % (a, vM[t]), "v_permlane16_swap_b32 v%d, v%d" % (a, vM[t]), "v_max_f32 v%d, v%d, v%d" % (vM[t], vM[t], a),
                           "ds_write_b32 v%d, v%d offset:%d" % (vStW, vM[t], t * 256)])
        for k in range(7):
            for t in range(6): e(chains[t][k])
        e("s_waitcnt lgkmcnt(0)")
        e("s_barrier")
        for t in range(5): e("ds_read_b128 %s, v%d offset:%d" % (vr(44 + 4 * t, 4), vStR, t * 256))
        for t in range(6):
            b = 44 + 4 * (t % 5)
            if t == 5: e("ds_read_b128 %s, v%d offset:%d" % (vr(b, 4), vStR, t * 256))
            e("v_max3_f32 v%d, v%d, v%d, v%d" % (vM[t], b, b + 1, b + 2)); e("v_max_f32 v%d, v%d, v%d" % (vM[t], vM[t], b + 3))
        for t in range(6): e("v_mul_f32 v%d, s%d, v%d" % (vM[t], s_c, vM[t]))
        for j in range(4): e("v_add_u32 v%d, %d, v%d" % (vXr[j], (R - XB) & 0xffffffff, vXr[j]))
        e("s_mov_b32 s%d, 0x3f803f80" % s_ones)
        for t in range(6): e("v_mov_b32 v%d, 0" % vL[t])
        def exp_ops(i):
            us = []
            for t in range(6):
                b = S(i, t)
                tm = [vT[0], vT[1], vT[2], vT[3]] if t % 2 == 0 else [vT[4], vT[5], vT[6], vT[7]]
                pk = vT[8 + 2 * (t % 2)] if False else (vT[12] + 2 * (t % 2))
                for k in range(4): us.append("v_fma_f32 v%d, v%d, s%d, -v%d" % (tm[k], b + k, s_c, vM[t]))
                for k in range(4): us.append("v_exp_f32 v%d, v%d" % (tm[k], tm[k]))
                us.append("v_cvt_pk_bf16_f32 v%d, v%d, v%d" % (pk, tm[0], tm[1]))
                us.append("v_cvt_pk_bf16_f32 v%d, v%d, v%d" % (pk + 1, tm[2], tm[3]))
                us.append("v_dot2c_f32_bf16 v%d, s%d, v%d" % (vL[t], s_ones, pk))
                us.append("v_dot2c_f32_bf16 v%d, s%d, v%d" % (vL[t], s_ones, pk + 1))
                us.append("ds_write_b64 v%d, %s offset:%d" % (vPw, vr(pk, 2), (i & 1) * 12288 + t * 2048))
            return us
        self.emit(weave(exp_ops(0), self.kv_block(10)))
        self.emit(self.stamp())
        OAa = lambda dt, qt: (dt * 3 + qt) * 16
        OAv = lambda dt, qt: vS + (dt * 3 + qt) * 16
        VF = lambda buf, dt: 96 + buf * 20 + dt * 4
        PF = lambda buf, qt: 96 + buf * 20 + 8 + qt * 4
        def v_reads(i, u, buf):
            slot = self.kv_slot(8 + i)
            rd = []
            for dt in range(2):
                for jj in range(2):
                    off = slot + (16 * u + 4 * jj) * 128
                    base = vVr1 if dt else vVr0
                    if off >= 65536:
                        base = vA1 if dt else vA0; off -= 65536
                    rd.append("ds_read_b64_tr_b16 %s, v%d offset:%d" % (ar(VF(buf, dt) + 2 * jj, 2), base, off))
            for qt in range(3):
                rd.append("ds_read_b128 %s, v%d offset:%d" % (ar(PF(buf, qt)), vXr[u], (i & 1) * 12288 + qt * 4096))
            return [rd[0], rd[1], rd[4], rd[2], rd[3], rd[5], rd[6]]
        def pv_mfmas(i, u, buf):
            out = []
            for qt in range(3):
                for dt in range(2):
                    d = ar(OAa(dt, qt), 16) if i < 4 else vr(OAv(dt, qt), 16)
                    c = "0" if (i == 0 and u == 0) else d
                    out.append("v_mfma_f32_32x32x16_bf16 %s, %s, %s, %s" % (d, ar(VF(buf, dt)), ar(PF(buf, qt)), c))
            return out
        wo_slot = lambda k: SLOT[(16 + k) % 3]
        def wo_block(k):
            slot = wo_slot(k)
            tag = "WO%d" % k
            us = [lambda: p.group(tag)]
            for i in range(8):
                m0 = (s_kvb, slot + i * 1024) if i % 4 == 0 else None
                us.append(self.dma(vWoD[i], SRD_O, (sWO[k], None), m0, tag, cfg.aux_wo, imm=(i & 3) * 1024))
            return us
        if cfg.rot:
            e("s_cmp_eq_u32 s%d, 7" % s_b); e("s_cselect_b32 s%d, 0, s%d" % (s_ng, s_b))
        else:
            e("s_mov_b32 s%d, 0" % s_ng)
        e("s_mov_b32 s4, s%d" % s_ng)
        for k in range(7):
            if k: e("s_add_u32 s4, s4, 1"); e("s_cmp_eq_u32 s4, 7"); e("s_cselect_b32 s4, 0, s4")
            e("s_lshl_b32 s%d, s4, 7" % sWO[k])
            e("s_lshl_b32 s6, s4, 2"); e("s_add_u32 s6, s6, s%d" % s_w); e("s_mul_i32 s%d, s6, 3072" % sST[k])
        for i in range(8):
            e("s_waitcnt lgkmcnt(0)")
            e("s_barrier")
            p.wait_vm("B%d" % (8 + i))
            fill = []
            if i + 1 < 8: fill = exp_ops(i + 1)
            dm = []
            if 1 <= i <= 5: dm = self.kv_block(8 + i + 2)
            if i == 6:
                red = []
                chains = []
                for t in range(6):
                    a = vT[14 + (t % 6)] if False else vT[8 + (t & 3)]
                    chains.append(["v_mov_b32 v%d, v%d" % (a, vL[t]), "v_permlane32_swap_b32 v%d, v%d" % (a, vL[t]), "v_add_f32 v%d, v%d, v%d" % (vL[t], vL[t], a),
                                   "v_mov_b32 v%d, v%d" % (a, vL[t]), "v_permlane16_swap_b32 v%d, v%d" % (a, vL[t]), "v_add_f32 v%d, v%d, v%d" % (vL[t], vL[t], a),
                                   "ds_write_b32 v%d, v%d offset:%d" % (vStW, vL[t], 2048 + t * 256)])
                for t in range(6): red += chains[t]
                fill = fill + red
            if i == 1 and cfg.fuse:
                dm = [["v_mov_b32 v%d, 0" % vT[19], lambda: p.group("NC"),
                       Ins("global_load_dword v%d, v%d, s[%d:%d] sc1" % (vNonce, vT[19], s_dbgp, s_dbgp + 1), "NC")]] + dm
            if i == 5:
                pre = []
                a0, a1, a2 = 168, 169, 170
                pre += ["v_lshrrev_b32 v%d, 3, v0" % a0, "s_lshl_b32 s6, s%d, 6" % s_w, "v_add_u32 v%d, s6, v%d" % (a0, a0), "v_mul_u32_u24 v%d, 896, v%d" % (a0, a0)]
                pre += ["v_lshrrev_b32 v%d, 4, v0" % a1, "v_and_b32 v%d, 1, v%d" % (a1, a1), "v_lshlrev_b32 v%d, 1, v%d" % (a1, a1), "v_and_b32 v%d, 7, v0" % a2, "v_xor_b32 v%d, v%d, v%d" % (a1, a1, a2),
                        "v_lshlrev_b32 v%d, 4, v%d" % (a1, a1)]
                pre += ["v_add_u32 v%d, v%d, v%d" % (a2, a0, a1), "v_xor_b32 v%d, 64, v%d" % (a1, a1), "v_add_u32 v%d, v%d, v%d" % (a1, a0, a1)]
                for k in range(8):
                    pre.append("v_add_u32 v%d, %d, v%d" % (vWoD[k], k * 7168 - (k & 3) * 1024, a1 if k & 1 else a2))
                fill = fill + pre
            if i == 6:
                dm = wo_block(0)
            if i == 7:
                for t in range(6):
                    b = 44 + 4 * (t % 4)
                    fill += ["ds_read_b128 %s, v%d offset:%d" % (vr(b, 4), vStR, 2048 + t * 256),
                             ["v_add_f32 v%d, v%d, v%d" % (b, b, b + 1), "v_add_f32 v%d, v%d, v%d" % (b + 2, b + 2, b + 3),
                              "v_add_f32 v%d, v%d, v%d" % (b, b, b + 2), "v_rcp_f32 v%d, v%d" % (vM[t], b)]]
                dm = wo_block(1)
            self.emit(v_reads(i, 0, 0))
            if i == 4:
                mv = ["v_accvgpr_read_b32 v%d, a%d" % (vS + r, r) for r in range(96)]
                self.emit(weave(mv, dm[:5], 0, 96)); dm = dm[5:]
            mf = []
            for u in range(4):
                m = pv_mfmas(i, u, u & 1)
                if u < 3: mf += weave(m, v_reads(i, u + 1, (u + 1) & 1), 0, 4)
                else: mf += m
            self.emit(weave(mf, merge(fill, dm), 1, len(mf) - 1))
            if cfg.fine and i < 7: self.emit(self.stamp())
        self.emit(self.stamp())
        e("s_waitcnt lgkmcnt(0)")
        e("s_barrier")
        self.emit(exch_write(OAv))
        if cfg.fuse: self.get_nonce()
        p.wait_vm("WO0")
        e("s_waitcnt lgkmcnt(0)")
        e("s_barrier")
        self.emit(self.stamp())
        OF = QF
        WF = lambda b, s: 192 + 32 * b + s * 4
        ACC = lambda t: vS + t * 4
        def wo_reads(k):
            slot = wo_slot(k)
            base = vWor
            if slot >= 65536: base = vA0
            off0 = slot if slot < 65536 else slot - 65536
            return ["ds_read_b64_tr_b16 %s, v%d offset:%d" % (ar(WF(k & 1, s) + 2 * jj, 2), base, off0 + (32 * s + 4 * jj) * 128) for s in range(8) for jj in range(2)]
        def epi(t):
            b = ACC(t)
            pk = vT[8] + 4 * ((t >> 1) & 1) + 2 * (t & 1)
            u = ["v_mul_f32 v%d, v%d, v%d" % (b + k, vM[t], b + k) for k in range(4)]
            u += ["v_cvt_pk_bf16_f32 v%d, v%d, v%d" % (pk, b, b + 1), "v_cvt_pk_bf16_f32 v%d, v%d, v%d" % (pk + 1, b + 2, b + 3)]
            return u
        def st(pair, k):
            pk = vT[8] + 4 * (pair & 1)
            return [[lambda: p.group("ST%d_%d" % (k, pair)),
                     Ins("buffer_store_dwordx4 %s, v%d, %s, s%d offen offset:%d %s" % (vr(pk, 4), vStO, srd(SRD_P), sST[k], pair * 1024, cfg.aux_st), "ST%d_%d" % (k, pair))]]
        def tile(k, t):
            return ["v_mfma_f32_16x16x32_bf16 %s, %s, %s, %s" % (vr(ACC(t)), ar(WF(k & 1, s)), ar(OF(t, s)), "0" if s == 0 else vr(ACC(t))) for s in range(8)]
        e("v_add_u32 v%d, 0x10000, v%d" % (vA0, vWor))
        r0 = wo_reads(0)
        self.emit([x for s in range(8) for x in (r0[2 * s:2 * s + 2] + [q_read(0, s)])])
        self.emit(wo_block(2))
        for k in range(7):
            f = [[] for _ in range(6)]
            if k == 0:
                for t in range(5): f[t] += [q_read(t + 1, s) for s in range(8)]
            else:
                f[0] += epi(4); f[1] += epi(5) + st(2, k - 1)
            f[2] += epi(0); f[3] += epi(1) + st(0, k); f[4] += epi(2); f[5] += epi(3) + st(1, k)
            nx = wo_reads(k + 1) if k < 6 else []
            dm = wo_block(k + 3) if k + 3 <= 6 else []
            for t in range(6):
                if t == 2 and k < 6:
                    if k == 5 and cfg.fuse:
                        e("s_waitcnt vmcnt(0)")
                        e("s_barrier")
                        self.emit(self.flag_store(0))
                    else:
                        p.wait_vm("WO%d" % (k + 1))
                        e("s_barrier")
                ex = []
                if t >= 2:
                    ex = nx[4 * (t - 2):4 * (t - 1)]
                    dd = dm[0:1] + dm[1:3] if t == 2 else dm[1 + 2 * (t - 2):3 + 2 * (t - 2)]
                    ex = merge(ex, dd)
                self.emit(weave(tile(k, t), merge(f[t], ex), 0, 8))
        self.emit(epi(4)); self.emit(epi(5)); self.emit(st(2, 6))
        self.emit(self.stamp())
        if cfg.fuse:
            self.reduce_tail()
        elif cfg.stamps or cfg.dbg:
            e("s_waitcnt vmcnt(0)")
            self.emit(self.stamp())
        e("L_k1_end:")
        e("s_endpgm")
        p.resolve()
        return p.text()

    def get_nonce(self):
        cfg, p, e = self.cfg, self.p, self.p.e
        e("v_readfirstlane_b32 s%d, v%d" % (s_nonce, vNonce))
        e("s_cmp_lg_u32 s%d, 0" % s_nonce); e("s_cbranch_scc1 L_havenonce")
        e("L_pollnonce:")
        e("v_mov_b32 v44, 0")
        p.raw(Ins("global_load_dword v%d, v44, s[%d:%d] sc1" % (vNonce, s_dbgp, s_dbgp + 1), "nocount"))
        p.raw(Ins("s_waitcnt vmcnt(0)", "nocredit"))
        e("v_readfirstlane_b32 s%d, v%d" % (s_nonce, vNonce))
        e("s_cmp_eq_u32 s%d, 0" % s_nonce); e("s_cbranch_scc1 L_pollnonce")
        e("L_havenonce:")
        e("s_lshl_b32 s4, s%d, 8" % s_G); e("s_add_u32 s4, s4, %d" % FLAG_OFF)
        e("s_add_u32 s68, s58, s4"); e("s_addc_u32 s69, s59, 0")

    def flag_store(self, which):
        lab = "L_nofl%d" % which
        return ["s_cmp_lg_u32 s%d, 0" % s_w, "s_cbranch_scc1 %s" % lab,
                "v_mov_b32 v42, s%d" % s_nonce, "s_lshl_b32 s4, s%d, 2" % s_h, "s_add_u32 s4, s4, %d" % (128 * which), "v_mov_b32 v43, s4",
                "s_mov_b64 exec, 1",
                Ins("global_store_dword v43, v42, s[68:69] sc1", "nocount"),
                "s_mov_b64 exec, -1", "s_nop 4", lab + ":"]

    def poll(self, which):
        e, p = self.p.e, self.p
        e("s_mov_b64 exec, 0xffff")
        e("v_lshlrev_b32 v45, 2, v0")
        e("L_poll%d:" % which)
        p.raw(Ins("global_load_dword v46, v45, s[68:69] offset:%d sc1" % (128 * which), "nocount"))
        p.raw(Ins("s_waitcnt vmcnt(0)", "nocredit"))
        e("v_cmp_ne_u32 vcc, s%d, v46" % s_nonce)
        e("s_nop 4")
        e("s_cbranch_vccz L_polldone%d" % which)
        e("s_sleep 1")
        e("s_branch L_poll%d" % which)
        e("L_polldone%d:" % which)
        e("s_mov_b64 exec, -1")

    def unit(self, su, tagname):
        cfg, p, e = self.cfg, self.p, self.p.e
        SG = 64
        e("s_mul_hi_u32 s5, s%d, %d" % (su, (1 << 32) // 12 + 1)); e("s_mul_i32 s6, s5, 12"); e("s_sub_u32 s6, s%d, s6" % su)
        e("s_add_u32 s5, s5, s%d" % s_ng); e("s_cmp_ge_u32 s5, 7"); e("s_cselect_b32 s7, 7, 0"); e("s_sub_u32 s5, s5, s7")
        e("s_mul_i32 s72, s5, 12"); e("s_add_u32 s72, s72, s6"); e("s_lshl_b32 s72, s72, 10")
        e("s_mul_hi_u32 s7, s6, %d" % ((1 << 32) // 3 + 1)); e("s_mul_i32 s76, s7, 3"); e("s_sub_u32 s76, s6, s76")
        e("s_lshl_b32 s5, s5, 7"); e("s_lshl_b32 s7, s7, 5"); e("s_mul_i32 s76, s76, %d" % (32 * 1792))
        e("s_add_u32 s5, s5, s7"); e("s_add_u32 s5, s5, s76"); e("s_add_u32 s73, s5, s70")
        e("s_cmp_ge_u32 s%d, 84" % su)
        e("s_cselect_b32 s72, 0x40000000, s72"); e("s_cselect_b32 s73, 0x40000000, s73")
        for h in range(16):
            e("s_add_u32 s5, s72, %d" % (h * PART))
            p.raw(Ins("buffer_load_dwordx4 %s, v%d, %s, s5 offen %s" % (vr(64 + 4 * h, 4), vStO, srd(SG), cfg.aux_rd), tagname))
        acc = list(range(48, 56))
        for a in acc: e("v_mov_b32 v%d, 0" % a)
        for h in range(16):
            b = 64 + 4 * h
            for q in range(4):
                e("v_dot2c_f32_bf16 v%d, s74, v%d" % (acc[2 * q], b + q)); e("v_dot2c_f32_bf16 v%d, s75, v%d" % (acc[2 * q + 1], b + q))
        for q in range(4): e("v_cvt_pk_bf16_f32 v%d, v%d, v%d" % (56 + q, acc[2 * q], acc[2 * q + 1]))
        e("buffer_store_dwordx2 v[56:57], v41, %s, s73 offen" % srd(SRD_OUT))
        e("s_add_u32 s5, s73, %d" % (16 * 1792))
        e("buffer_store_dwordx2 v[58:59], v41, %s, s5 offen" % srd(SRD_OUT))

    def reduce_tail(self):
        cfg, p, e = self.cfg, self.p, self.p.e
        SG = 64
        e("s_mul_i32 s4, s%d, %d" % (s_G, PART * 16))
        e("s_add_u32 s%d, s58, s4" % SG); e("s_addc_u32 s%d, s59, 0" % (SG + 1)); e("s_mov_b32 s%d, %d" % (SG + 2, PART * 16)); e("s_mov_b32 s%d, 0x20000" % (SG + 3))
        e("s_mul_i32 s70, s%d, %d" % (s_b, 96 * 1792)); e("s_mul_i32 s4, s%d, 896" % s_br); e("s_add_u32 s70, s70, s4")
        e("v_and_b32 v41, 15, v0"); e("v_mul_u32_u24 v41, 1792, v41"); e("v_lshrrev_b32 v42, 4, v0"); e("v_lshlrev_b32 v42, 3, v42"); e("v_add_u32 v41, v41, v42")
        e("s_mov_b32 s74, 0x3f80"); e("s_mov_b32 s75, 0x3f800000")
        e("s_lshl_b32 s61, s%d, 2" % s_h); e("s_add_u32 s61, s61, s%d" % s_w)
        e("s_cmp_ge_u32 s61, 60"); e("s_cselect_b32 s61, 127, s61")
        e("s_lshl_b32 s62, s%d, 4" % s_w); e("s_add_u32 s62, s62, s%d" % s_h); e("s_add_u32 s62, s62, 60")
        e("s_cmp_eq_u32 s%d, 3" % s_w); e("s_cbranch_scc0 L_np1")
        self.poll(0)
        e("L_np1:")
        e("s_waitcnt vmcnt(0)")
        e("s_barrier")
        self.emit(self.stamp())
        self.emit(self.flag_store(1))
        self.unit(61, "RD1")
        e("s_cmp_eq_u32 s%d, 3" % s_w); e("s_cbranch_scc0 L_np2")
        self.poll(1)
        e("L_np2:")
        e("s_barrier")
        self.emit(self.stamp())
        e("s_cmp_ge_u32 s%d, 2" % s_w); e("s_cbranch_scc1 L_fin")
        self.unit(62, "RD2")
        e("L_fin:")
        if cfg.stamps or cfg.dbg:
            e("s_waitcnt vmcnt(0)")
            self.emit(self.stamp())

def desc(name, vg, acc, sg=102):
    return """.amdhsa_kernel %s
  .amdhsa_next_free_vgpr %d
  .amdhsa_next_free_sgpr %d
  .amdhsa_accum_offset %d
  .amdhsa_group_segment_fixed_size 0
  .amdhsa_kernarg_size 104
  .amdhsa_user_sgpr_count 2
  .amdhsa_user_sgpr_kernarg_segment_ptr 1
  .amdhsa_system_sgpr_workgroup_id_x 1
  .amdhsa_float_denorm_mode_32 3
.end_amdhsa_kernel
""" % (name, vg, sg, acc)

REF = "concat_heads__gqa_block_cached__mha_block_cached__near_ridge.s.ref"
HEAD = open(REF).read().split("; Override launch geometry")[0] if os.path.exists(REF) else ""

def generate(cfg):
    k1 = K1(cfg).build()
    out = HEAD
    out += "; @launch grid=(256,1,1) block=(256,1,1) lds=163840\n"
    out += '.amdgcn_target "amdgcn-amd-amdhsa--gfx950"\n.text\n'
    out += ".globl %s\n.p2align 8\n.type %s,@function\n%s:\n%s\n" % (KNAME, KNAME, KNAME, k1)
    out += '.section .rodata,"a"\n.p2align 6\n' + desc(KNAME, 512, 256)
    return out

if __name__ == "__main__":
    kw = {}
    for a in sys.argv[2:]:
        k, v = a.split("=", 1)
        kw[k] = eval(v)
    txt = generate(Cfg(**kw))
    open(sys.argv[1], "w").write(txt)
    print("wrote", sys.argv[1], len(txt), "bytes,", txt.count("\n"), "lines")
```

```python
import sys, os
from asmgen import Prog, Ins

KNAME = "concat_heads__gqa_block_cached__mha_block_cached__near_ridge_kernel"

class Cfg:
    aux_kv = "nt"
    aux_w = ""
    aux_x = ""
    aux_wo = ""
    aux_st = "sc1"
    aux_rd = "sc1"
    stamps = False
    dbg = False
    dbg_wg = 128
    rot = True
    fuse = True
    fine = False
    early_dma = True
    krow = True
    code_pf = False
    code_bytes = 32768
    f1_drain = True
    exp_kpre = 4
    kstart = 22
    b0_first = False
    tlbwarm = True
    exp_nowx = False
    def __init__(self, **kw):
        for k, v in kw.items():
            assert hasattr(Cfg, k), k
            setattr(self, k, v)

SLOT = [0, 32768, 65536]
WB = 65536
XB = 114688
R = 98304
ST = 159744
PART = 86016
TS_OFF = 64 << 20
FLAG_OFF = 32 << 20

vK0, vK1, vV, vW, vX = 1, 2, 3, 4, 5
vVD = [3, 41, 42, 43]
vKr0, vKr1 = 6, 7
vVr0, vVr1 = 8, 9
vXr = [10, 11, 12, 13]
vQr = [14, 15, 16, 17]
vPw = 18
vQw = 19
vWor = 20
vStW, vStR = 21, 22
vStO = 23
vM = [24, 25, 26, 27, 28, 29]
vL = [30, 31, 32, 33, 34, 35]
vWoD = list(range(160, 168))
vA0, vA1 = 38, 39
vNonce = 40
vKT = 6
vT = list(range(44, 64))
vS = 64

def S(i, t): return vS + (i * 6 + t) * 4

s_w = 3
sT0, sSoff, sT1, sT2 = 4, 5, 6, 7
SRD_X, SRD_W, SRD_K, SRD_V, SRD_O, SRD_P = 8, 12, 16, 20, 24, 28
s_c = 32
s_kvb = 33
s_wrb = 34
s_w1k = 35
sCW = list(range(36, 43))
sCX = list(range(44, 51))
sWO = list(range(36, 43))
sST = list(range(44, 51))
s_ws = 58
s_cnt = 60
s_ng, s_ng2, s_slotR, s_slotN, s_slotD, s_stoff, s_stprev, s_wooff = 71, 72, 73, 74, 75, 76, 77, 78
s_b, s_hh, s_h, s_br = 79, 80, 81, 82
s_G = 83
s_tsoff = 88
s_nonce = 94
s_ones = 95
SRD_G, SRD_OUT = 64, 68
SRD_OUT = 52
s_dbgp = 96
s_outp = 98

def srd(n): return "s[%d:%d]" % (n, n + 3)
def vr(n, c=4): return "v[%d:%d]" % (n, n + c - 1)
def ar(n, c=4): return "a[%d:%d]" % (n, n + c - 1)

def weave(main, fill, lo=0, hi=None):
    if hi is None: hi = len(main)
    out = []
    n = hi - lo
    k = 0
    for i, m in enumerate(main):
        out.append(m)
        if lo <= i < hi:
            tgt = min(len(fill), -(-(len(fill) * (i - lo + 1)) // n))
            while k < tgt:
                out.append(fill[k]); k += 1
    while k < len(fill):
        out.append(fill[k]); k += 1
    return out

def merge(a, b):
    if not a: return list(b)
    if not b: return list(a)
    return weave(a, b) if len(a) >= len(b) else weave(b, a)

class K1:
    def __init__(self, cfg):
        self.cfg = cfg
        self.p = Prog()
        self.nstamp = 0
        self.vTs = 62

    def emit(self, seq):
        for u in seq:
            if isinstance(u, (list, tuple)): self.emit(u)
            elif callable(u): u()
            elif isinstance(u, Ins): self.p.raw(u)
            else: self.p.e(u)

    def dma(self, vaddr, srdn, soff, m0, tag, aux, imm=0):
        u = []
        if m0 is not None:
            if isinstance(m0, int): u.append("s_mov_b32 m0, %d" % m0)
            else: u.append("s_add_u32 m0, s%d, %d" % m0 if m0[1] else "s_mov_b32 m0, s%d" % m0[0])
        if isinstance(soff, int):
            u.append("s_mov_b32 s%d, %d" % (sSoff, soff)); sreg = sSoff
        elif soff[1] is None:
            sreg = soff[0]
            if m0 is not None: u.append("s_nop 0")
        else:
            u.append("s_add_u32 s%d, s%d, %d" % (sSoff, soff[0], soff[1])); sreg = sSoff
        u.append(Ins("buffer_load_dwordx4 v%d, %s, s%d offen %s%s lds" % (vaddr, srd(srdn), sreg, ("offset:%d " % imm) if imm else "", aux), tag))
        return u

    def stamp(self):
        cfg = self.cfg
        if cfg.dbg:
            i = self.nstamp; self.nstamp += 1
            lab = "L_st%d" % i
            return ["s_cmp_lg_u32 s89, 0", "s_cbranch_scc1 %s" % lab,
                    Ins("s_memrealtime s[86:87]", "nocount"), Ins("s_waitcnt lgkmcnt(0)", "nocredit"),
                    "v_mov_b32 v%d, s86" % self.vTs, "v_mov_b32 v%d, %d" % (self.vTs + 1, 4 * (i + 1)),
                    Ins("global_store_dword v%d, v%d, s[100:101]" % (self.vTs + 1, self.vTs), 'nocount'), lab + ":"]
        if not cfg.stamps: return []
        i = self.nstamp; self.nstamp += 1
        return ["s_memrealtime s[86:87]", "s_memtime s[92:93]", "s_waitcnt lgkmcnt(0)",
                "v_mov_b32 v%d, s86" % self.vTs, "v_mov_b32 v%d, s%d" % (self.vTs + 1, s_tsoff),
                Ins("global_store_dword v%d, v%d, s[84:85] offset:%d" % (self.vTs + 1, self.vTs, 4 * i), 'nocount'),
                "v_mov_b32 v%d, s92" % self.vTs,
                Ins("global_store_dword v%d, v%d, s[84:85] offset:%d" % (self.vTs + 1, self.vTs, 128 + 4 * i), 'nocount')]

    @staticmethod
    def kv_slot(n):
        return SLOT[n % 3]
    def kv_block(self, n):
        cfg = self.cfg
        slot = self.kv_slot(n)
        tag = "B%d" % n
        us = [lambda: self.p.group(tag)]
        if n < 8 and cfg.krow:
            for m in range(8):
                tmp = vK1 if m & 1 else vKT
                u = ["v_xor_b32 v%d, %d, v%d" % (tmp, 32 * m, vK0)]
                if m % 4 == 0:
                    u += self.dma(tmp, SRD_K, n * 32768 + m * 1024, (s_kvb, slot + m * 1024), tag, cfg.aux_kv)
                else:
                    u += self.dma(tmp, SRD_K, (sSoff, None), None, tag, cfg.aux_kv, imm=(m % 4) * 1024)
                us.append(u)
        elif n < 8:
            for m in range(4):
                for kh in range(2):
                    us.append(self.dma(vK1 if kh else vK0, SRD_K, n * 32768 + m * 128, (s_kvb, slot + (m * 2 + kh) * 1024), tag, cfg.aux_kv))
        else:
            for m in range(8):
                if m % 4 == 0:
                    us.append(self.dma(vVD[0], SRD_V, (n - 8) * 32768 + m * 4096, (s_kvb, slot + m * 1024), tag, cfg.aux_kv))
                else:
                    us.append(self.dma(vVD[m % 4], SRD_V, (sSoff, None), None, tag, cfg.aux_kv, imm=(m % 4) * 1024))
        return us

    def build(self):
        cfg, p, e = self.cfg, self.p, self.p.e
        e("s_cmp_ge_u32 s2, 256")
        e("s_cbranch_scc1 L_k1_end")
        e("s_load_dwordx8 s[36:43], s[0:1], 0")
        e("s_load_dwordx2 s[44:45], s[0:1], 32")
        e("s_load_dwordx8 s[48:55], s[0:1], 40")
        e("s_load_dwordx2 s[56:57], s[0:1], 72")
        e("s_load_dwordx2 s[58:59], s[0:1], 96")
        e("s_load_dwordx4 s[96:99], s[0:1], 80")
        e("v_lshrrev_b32 v60, 6, v0")
        e("v_and_b32 v0, 63, v0")
        e("v_readfirstlane_b32 s%d, v60" % s_w)
        e("s_and_b32 s4, s2, 7")
        e("s_lshr_b32 s6, s2, 3")
        e("s_lshr_b32 s%d, s6, 4" % s_br)
        e("s_lshr_b32 s%d, s6, 1" % s_b)
        e("s_and_b32 s%d, s%d, 7" % (s_b, s_b))
        e("s_and_b32 s%d, s6, 1" % s_hh)
        e("s_lshl_b32 s%d, s4, 1" % s_h)
        e("s_add_u32 s%d, s%d, s%d" % (s_h, s_h, s_hh))
        e("s_lshl_b32 s6, s%d, 3" % s_b); e("s_add_u32 s6, s6, s4")
        e("s_lshl_b32 s7, s%d, 4" % s_b); e("s_add_u32 s7, s7, s%d" % s_h)
        e("s_cmp_eq_u32 s%d, 0" % s_br)
        e("s_cselect_b32 s6, s6, s7")
        e("s_lshl_b32 s61, s6, 18")
        e("s_lshl_b32 s%d, s%d, 13" % (s_kvb, s_w))
        e("s_mul_i32 s%d, s%d, 12288" % (s_wrb, s_w)); e("s_add_u32 s%d, s%d, %d" % (s_wrb, s_wrb, WB))
        e("s_lshl_b32 s%d, s%d, 10" % (s_w1k, s_w))
        e("s_mov_b32 s%d, 0x3db8aa3b" % s_c)
        e("s_lshl_b32 s%d, s%d, 3" % (s_G, s_br)); e("s_add_u32 s%d, s%d, s%d" % (s_G, s_G, s_b))
        if cfg.rot:
            e("s_mul_i32 s62, s%d, 3" % s_hh); e("s_add_u32 s62, s62, s%d" % s_b)
            e("s_cmp_ge_u32 s62, 7"); e("s_cselect_b32 s6, 7, 0"); e("s_sub_u32 s62, s62, s6")
        else:
            e("s_mov_b32 s62, 0")
        t0, t1, t2, t3, t4 = vT[:5]
        l3, l7, l4, i15 = vT[5:9]
        e("v_lshrrev_b32 v%d, 3, v0" % l3)
        e("v_and_b32 v%d, 7, v0" % l7)
        e("v_lshrrev_b32 v%d, 4, v0" % l4)
        e("v_and_b32 v%d, 15, v0" % i15)
        e("v_and_b32 v%d, 1, v%d" % (t0, l4)); e("v_lshlrev_b32 v%d, 2, v%d" % (t0, t0))
        e("v_xor_b32 v%d, v%d, v%d" % (t0, l7, t0)); e("v_lshlrev_b32 v%d, 4, v%d" % (t0, t0))
        e("s_lshl_b32 s6, s%d, 7" % s_w)
        e("v_add_u32 v%d, s6, v%d" % (t0, t0))
        e("v_lshlrev_b32 v%d, 13, v%d" % (t1, l3)); e("v_add_u32 v%d, v%d, v%d" % (vW, t0, t1))
        e("v_lshlrev_b32 v%d, 9, v%d" % (t1, l3)); e("v_add_u32 v%d, v%d, v%d" % (vV, t0, t1))
        e("s_lshl_b32 s6, s%d, 3" % s_w); e("v_add_u32 v%d, s6, v%d" % (t2, l3)); e("v_mul_u32_u24 v%d, 896, v%d" % (t2, t2))
        e("s_and_b32 s7, s%d, 1" % s_w); e("s_lshl_b32 s7, s7, 2")
        e("v_add_u32 v%d, s7, v%d" % (t3, l4)); e("v_xor_b32 v%d, v%d, v%d" % (t3, l7, t3)); e("v_lshlrev_b32 v%d, 4, v%d" % (t3, t3))
        e("v_add_u32 v%d, v%d, v%d" % (vX, t2, t3))
        e("s_waitcnt lgkmcnt(0)")
        if cfg.stamps:
            e("s_mov_b32 s84, s58"); e("s_mov_b32 s85, s59")
            e("s_lshl_b32 s%d, s2, 2" % s_tsoff); e("s_add_u32 s%d, s%d, s%d" % (s_tsoff, s_tsoff, s_w))
            e("s_lshl_b32 s%d, s%d, 8" % (s_tsoff, s_tsoff)); e("s_add_u32 s%d, s%d, %d" % (s_tsoff, s_tsoff, TS_OFF))
        if cfg.dbg:
            e("s_sub_u32 s89, s2, %d" % cfg.dbg_wg); e("s_or_b32 s89, s89, s%d" % s_w)
            e("s_mov_b32 s100, s98"); e("s_mov_b32 s101, s99")
        self.emit(self.stamp())
        e("s_cmp_eq_u32 s%d, 0" % s_br)
        for (dst, a, b) in ((SRD_X, 36, 48), (SRD_K, 38, 50), (SRD_V, 40, 52), (SRD_W, 42, 54), (SRD_O, 44, 56)):
            e("s_cselect_b32 s%d, s%d, s%d" % (dst, a, b)); e("s_cselect_b32 s%d, s%d, s%d" % (dst + 1, a + 1, b + 1))
        e("s_mul_i32 s4, s%d, %d" % (s_b, PART))
        e("s_add_u32 s%d, s%d, s4" % (SRD_X, SRD_X)); e("s_addc_u32 s%d, s%d, 0" % (SRD_X + 1, SRD_X + 1))
        e("s_mov_b32 s%d, %d" % (SRD_X + 2, PART)); e("s_mov_b32 s%d, 0x20000" % (SRD_X + 3))
        e("s_lshl_b32 s4, s%d, 9" % s_h)
        e("s_add_u32 s%d, s%d, s4" % (SRD_W, SRD_W)); e("s_addc_u32 s%d, s%d, 0" % (SRD_W + 1, SRD_W + 1))
        e("s_sub_u32 s%d, %d, s4" % (SRD_W + 2, 448 * 8192)); e("s_mov_b32 s%d, 0x20000" % (SRD_W + 3))
        for c in range(7):
            if c == 0: e("s_mov_b32 s63, s62")
            else:
                e("s_add_u32 s63, s63, 1"); e("s_cmp_eq_u32 s63, 7"); e("s_cselect_b32 s63, 0, s63")
            e("s_lshl_b32 s%d, s63, 7" % sCX[c]); e("s_lshl_b32 s%d, s63, 19" % sCW[c])
            if c == 0:
                pass
        def xdma(c):
            us = [lambda: p.group("X%d" % c)]
            for i in range(3):
                us.append(self.dma(vX, SRD_X, (sCX[c], i * 32 * 896), (s_w1k, XB + (c % 3) * 12288 + i * 4096), "X%d" % c, cfg.aux_x))
            return us
        def wdma(n):
            us = [lambda: p.group("W%d" % n)]
            for m in range(2):
                us.append(self.dma(vW, SRD_W, (sCW[n >> 2], ((n & 3) * 16 + 8 * m) * 8192), (s_wrb, (n % 6) * 2048 + m * 1024), "W%d" % n, cfg.aux_w))
            return us
        self.emit(xdma(0)); self.emit(wdma(0)); self.emit(wdma(1))
        if cfg.b0_first:
            e("s_add_u32 s%d, s%d, s61" % (SRD_K, SRD_K)); e("s_addc_u32 s%d, s%d, 0" % (SRD_K + 1, SRD_K + 1))
            e("s_mov_b32 s%d, 262144" % (SRD_K + 2)); e("s_mov_b32 s%d, 0x20000" % (SRD_K + 3))
            e("v_lshrrev_b32 v%d, 5, v0" % t0); e("v_and_b32 v%d, 31, v0" % t1); e("v_xor_b32 v%d, v%d, v%d" % (t1, t1, t0))
            e("v_lshlrev_b32 v%d, 4, v%d" % (t1, t1)); e("v_lshlrev_b32 v%d, 9, v%d" % (t0, t0)); e("v_add_u32 v%d, v%d, v%d" % (t0, t0, t1))
            e("v_add_u32 v%d, s%d, v%d" % (vK0, s_kvb, t0))
            self.emit(self.kv_block(0))
        if cfg.code_pf:
            e("s_getpc_b64 s[90:91]")
            e("L_pcbase:")
            e("s_lshr_b32 s4, s2, 3"); e("s_lshl_b32 s4, s4, 11")
            e("v_lshlrev_b32 v%d, 7, v0" % t0); e("v_add_u32 v%d, s4, v%d" % (t0, t0))
            e("v_mov_b32 v%d, s91" % (t2 + 1))
            e("v_add_co_u32 v%d, vcc, s90, v%d" % (t2, t0)); e("v_addc_co_u32 v%d, vcc, 0, v%d, vcc" % (t2 + 1, t2 + 1))
            e("v_cmp_gt_u32 vcc, L_k1_end-L_pcbase, v%d" % t0)
            e("s_mov_b64 s[90:91], exec"); e("s_and_b64 exec, vcc, 0xffff")
            e("s_cbranch_execz L_nopf")
            p.raw(Ins("global_load_dword v43, v[%d:%d], off" % (t2, t2 + 1), "nocount"))
            e("L_nopf:")
            e("s_mov_b64 exec, s[90:91]")
        if not cfg.b0_first:
            e("s_add_u32 s%d, s%d, s61" % (SRD_K, SRD_K)); e("s_addc_u32 s%d, s%d, 0" % (SRD_K + 1, SRD_K + 1))
            e("s_mov_b32 s%d, 262144" % (SRD_K + 2)); e("s_mov_b32 s%d, 0x20000" % (SRD_K + 3))
        e("s_add_u32 s%d, s%d, s61" % (SRD_V, SRD_V)); e("s_addc_u32 s%d, s%d, 0" % (SRD_V + 1, SRD_V + 1))
        e("s_mov_b32 s%d, 262144" % (SRD_V + 2)); e("s_mov_b32 s%d, 0x20000" % (SRD_V + 3))
        e("s_mul_i32 s4, s%d, %d" % (s_h, 256 * 896))
        e("s_add_u32 s%d, s%d, s4" % (SRD_O, SRD_O)); e("s_addc_u32 s%d, s%d, 0" % (SRD_O + 1, SRD_O + 1))
        e("s_mov_b32 s%d, %d" % (SRD_O + 2, 256 * 896)); e("s_mov_b32 s%d, 0x20000" % (SRD_O + 3))
        e("s_lshl_b32 s4, s%d, 4" % s_G); e("s_add_u32 s4, s4, s%d" % s_h); e("s_mul_i32 s4, s4, %d" % PART)
        e("s_add_u32 s%d, s58, s4" % SRD_P); e("s_addc_u32 s%d, s59, 0" % (SRD_P + 1))
        e("s_mov_b32 s%d, %d" % (SRD_P + 2, PART)); e("s_mov_b32 s%d, 0x20000" % (SRD_P + 3))
        e("s_mov_b32 s%d, s96" % SRD_OUT); e("s_mov_b32 s%d, s97" % (SRD_OUT + 1))
        e("s_mov_b32 s%d, %d" % (SRD_OUT + 2, 8 * 96 * 1792)); e("s_mov_b32 s%d, 0x20000" % (SRD_OUT + 3))
        e("s_mov_b32 s%d, s98" % s_dbgp); e("s_mov_b32 s%d, s99" % (s_dbgp + 1))
        if cfg.fuse:
            e("s_or_b32 s4, s2, s%d" % s_w); e("s_cmp_lg_u32 s4, 0"); e("s_cbranch_scc1 L_nononce")
            p.raw(Ins("s_memrealtime s[90:91]", "nocount")); p.raw(Ins("s_waitcnt lgkmcnt(0)", "nocredit")); e("s_or_b32 s90, s90, 1")
            e("v_mov_b32 v%d, s90" % t0); e("v_mov_b32 v%d, 0" % t1)
            p.raw(Ins("global_store_dword v%d, v%d, s[%d:%d] sc1" % (t1, t0, s_dbgp, s_dbgp + 1), 'nocount'))
            e("L_nononce:")
        if cfg.krow:
            e("v_lshrrev_b32 v%d, 5, v0" % t0); e("v_and_b32 v%d, 31, v0" % t1); e("v_xor_b32 v%d, v%d, v%d" % (t1, t1, t0))
            e("v_lshlrev_b32 v%d, 4, v%d" % (t1, t1)); e("v_lshlrev_b32 v%d, 9, v%d" % (t0, t0)); e("v_add_u32 v%d, v%d, v%d" % (t0, t0, t1))
            e("v_add_u32 v%d, s%d, v%d" % (vK0, s_kvb, t0))
        else:
            e("s_lshl_b32 s4, s%d, 4" % s_w)
            e("v_add_u32 v%d, s4, v%d" % (t0, l3)); e("v_lshlrev_b32 v%d, 9, v%d" % (t0, t0))
            e("v_xor_b32 v%d, v%d, v%d" % (t1, l7, l4)); e("v_lshlrev_b32 v%d, 4, v%d" % (t1, t1))
            e("v_add_u32 v%d, v%d, v%d" % (vK0, t0, t1))
            e("v_xor_b32 v%d, 64, v%d" % (vK1, vK0)); e("v_add_u32 v%d, 4096, v%d" % (vK1, vK1))
        if not cfg.krow:
            e("v_lshrrev_b32 v%d, 3, v%d" % (t0, i15)); e("v_lshlrev_b32 v%d, 10, v%d" % (t0, t0))
            e("v_and_b32 v%d, 7, v%d" % (t1, i15)); e("v_lshlrev_b32 v%d, 7, v%d" % (t1, t1)); e("v_add_u32 v%d, v%d, v%d" % (t0, t0, t1))
            e("v_lshrrev_b32 v%d, 1, v%d" % (t1, i15)); e("v_xor_b32 v%d, v%d, v%d" % (t1, l4, t1)); e("v_lshlrev_b32 v%d, 4, v%d" % (t1, t1))
            e("v_add_u32 v%d, v%d, v%d" % (t0, t0, t1)); e("v_add_u32 v%d, s%d, v%d" % (vKr0, s_kvb, t0)); e("v_xor_b32 v%d, 64, v%d" % (vKr1, vKr0))
        e("v_lshrrev_b32 v%d, 5, v0" % t0); e("v_lshlrev_b32 v%d, 3, v%d" % (t0, t0)); e("v_lshrrev_b32 v%d, 2, v%d" % (t1, i15))
        e("v_add_u32 v%d, v%d, v%d" % (t0, t0, t1)); e("v_lshlrev_b32 v%d, 7, v%d" % (t0, t0))
        e("v_and_b32 v%d, 1, v%d" % (t1, l4)); e("v_lshlrev_b32 v%d, 1, v%d" % (t1, t1))
        e("v_and_b32 v%d, 3, v%d" % (t4, i15)); e("v_lshrrev_b32 v%d, 1, v%d" % (t4, t4)); e("v_add_u32 v%d, v%d, v%d" % (t1, t1, t4))
        e("v_lshrrev_b32 v%d, 3, v%d" % (t4, i15)); e("v_lshlrev_b32 v%d, 2, v%d" % (t4, t4)); e("v_xor_b32 v%d, v%d, v%d" % (t1, t1, t4))
        e("v_lshlrev_b32 v%d, 4, v%d" % (t1, t1)); e("v_add_u32 v%d, v%d, v%d" % (t0, t0, t1))
        e("v_and_b32 v%d, 1, v%d" % (t1, i15)); e("v_lshlrev_b32 v%d, 3, v%d" % (t1, t1)); e("v_add_u32 v%d, v%d, v%d" % (t0, t0, t1))
        e("v_add_u32 v%d, s%d, v%d" % (vVr0, s_kvb, t0)); e("v_xor_b32 v%d, 64, v%d" % (vVr1, vVr0))
        e("v_add_u32 v%d, s%d, v%d" % (vA0, s_wrb, t0)); e("v_xor_b32 v%d, 64, v%d" % (vA1, vA0))
        e("v_and_b32 v%d, 31, v0" % t0); e("v_lshrrev_b32 v%d, 1, v%d" % (t1, t0)); e("v_and_b32 v%d, 7, v%d" % (t1, t1))
        e("v_lshrrev_b32 v%d, 5, v0" % t4); e("v_xor_b32 v%d, v%d, v%d" % (t1, t1, t4)); e("v_lshlrev_b32 v%d, 4, v%d" % (t1, t1))
        e("v_lshlrev_b32 v%d, 7, v%d" % (t0, t0)); e("v_add_u32 v%d, v%d, v%d" % (t0, t0, t1)); e("v_add_u32 v%d, %d, v%d" % (vXr[0], XB, t0))
        for j in range(1, 4): e("v_xor_b32 v%d, %d, v%d" % (vXr[j], 32 * j, vXr[0]))
        e("v_xor_b32 v%d, v%d, v%d" % (t1, l4, i15)); e("v_lshlrev_b32 v%d, 4, v%d" % (t1, t1)); e("v_lshlrev_b32 v%d, 9, v%d" % (t0, i15))
        e("v_add_u32 v%d, v%d, v%d" % (t0, t0, t1)); e("v_add_u32 v%d, %d, v%d" % (vQr[0], R, t0))
        for j in range(1, 4): e("v_xor_b32 v%d, %d, v%d" % (vQr[j], 64 * j, vQr[0]))
        e("s_lshl_b32 s6, s%d, 1" % s_w)
        e("v_lshrrev_b32 v%d, 1, v%d" % (t0, l4)); e("v_add_u32 v%d, s6, v%d" % (t0, t0)); e("v_lshrrev_b32 v%d, 1, v%d" % (t1, i15))
        e("v_xor_b32 v%d, v%d, v%d" % (t0, t0, t1)); e("v_lshlrev_b32 v%d, 4, v%d" % (t0, t0))
        e("v_lshlrev_b32 v%d, 7, v%d" % (t1, i15)); e("v_add_u32 v%d, v%d, v%d" % (t0, t0, t1))
        e("v_and_b32 v%d, 1, v%d" % (t1, l4)); e("v_lshlrev_b32 v%d, 3, v%d" % (t1, t1)); e("v_add_u32 v%d, v%d, v%d" % (t0, t0, t1))
        e("v_add_u32 v%d, %d, v%d" % (vPw, R, t0))
        e("s_lshl_b32 s6, s%d, 3" % s_w)
        e("v_xor_b32 v%d, s6, v%d" % (t0, i15)); e("v_lshlrev_b32 v%d, 4, v%d" % (t0, t0))
        e("v_and_b32 v%d, 31, v0" % t1); e("v_lshlrev_b32 v%d, 9, v%d" % (t1, t1)); e("v_add_u32 v%d, v%d, v%d" % (t0, t0, t1))
        e("v_lshrrev_b32 v%d, 5, v0" % t1); e("v_lshlrev_b32 v%d, 3, v%d" % (t1, t1)); e("v_add_u32 v%d, v%d, v%d" % (t0, t0, t1))
        e("v_add_u32 v%d, %d, v%d" % (vQw, R, t0))
        e("v_lshlrev_b32 v%d, 3, v%d" % (t0, l4)); e("v_lshrrev_b32 v%d, 2, v%d" % (t1, i15)); e("v_add_u32 v%d, v%d, v%d" % (t0, t0, t1)); e("v_lshlrev_b32 v%d, 7, v%d" % (t0, t0))
        e("s_lshl_b32 s6, s%d, 1" % s_w)
        e("v_and_b32 v%d, 3, v%d" % (t1, i15)); e("v_lshrrev_b32 v%d, 1, v%d" % (t1, t1)); e("v_add_u32 v%d, s6, v%d" % (t1, t1))
        e("v_lshrrev_b32 v%d, 3, v%d" % (t4, i15)); e("v_and_b32 v%d, 1, v%d" % (t3, l4)); e("v_lshlrev_b32 v%d, 1, v%d" % (t3, t3)); e("v_or_b32 v%d, v%d, v%d" % (t4, t4, t3))
        e("v_lshlrev_b32 v%d, 1, v%d" % (t4, t4)); e("v_xor_b32 v%d, v%d, v%d" % (t1, t1, t4)); e("v_lshlrev_b32 v%d, 4, v%d" % (t1, t1)); e("v_add_u32 v%d, v%d, v%d" % (t0, t0, t1))
        e("v_and_b32 v%d, 1, v%d" % (t1, i15)); e("v_lshlrev_b32 v%d, 3, v%d" % (t1, t1)); e("v_add_u32 v%d, v%d, v%d" % (vWor, t0, t1))
        e("v_lshlrev_b32 v%d, 4, v%d" % (t0, i15)); e("v_add_u32 v%d, %d, v%d" % (vStR, ST, t0))
        e("s_lshl_b32 s6, s%d, 2" % s_w); e("v_add_u32 v%d, s6, v%d" % (vStW, vStR))
        e("v_lshlrev_b32 v%d, 4, v0" % vStO)

        def qacc(dt, qt): return vS + (dt * 3 + qt) * 16
        FA = lambda buf, dt: buf * 20 + dt * 4
        FB = lambda buf, qt: buf * 20 + 8 + qt * 4
        def q_reads(n):
            buf = n & 3; sl = (n % 6) * 2048; xs = ((n >> 2) % 3) * 12288
            rd = []
            for dt in range(2):
                va = vA0 if dt == 0 else vA1
                for jj in range(2):
                    rd.append("ds_read_b64_tr_b16 %s, v%d offset:%d" % (ar(FA(buf, dt) + 2 * jj, 2), va, sl + jj * 512))
            for qt in range(3):
                rd.append("ds_read_b128 %s, v%d offset:%d" % (ar(FB(buf, qt)), vXr[n & 3], xs + qt * 4096))
            return [rd[0], rd[1], rd[4], rd[2], rd[3], rd[5], rd[6]]
        def q_mfmas(n):
            buf = n & 3
            return ["v_mfma_f32_32x32x16_bf16 %s, %s, %s, %s" % (vr(qacc(dt, qt), 16), ar(FA(buf, dt)), ar(FB(buf, qt)), "0" if n == 0 else vr(qacc(dt, qt), 16))
                    for qt in range(3) for dt in range(2)]
        def KFr(i, s): return ar(192 + (i & 1) * 32 + s * 4)
        vKa = [vT[8], vT[9], vT[10], vT[11]]
        def k_addr(i):
            if not cfg.krow: return []
            d = self.kv_slot(i) - R
            return ["s_add_u32 s4, s%d, %d" % (s_kvb, d & 0xffffffff)] + ["v_add_u32 v%d, s4, v%d" % (vKa[j], vQr[j]) for j in range(4)]
        def k_read(i, s):
            if cfg.krow:
                return "ds_read_b128 %s, v%d offset:%d" % (KFr(i, s), vKa[s & 3], (s >> 2) * 256)
            slot = self.kv_slot(i)
            base = (vKr1 if s & 1 else vKr0)
            off = slot + (s >> 1) * 2048
            if off >= 65536:
                base = (vT[11] if s & 1 else vT[10]); off -= 65536
            return "ds_read_b128 %s, v%d offset:%d" % (KFr(i, s), base, off)
        self.emit(wdma(2)); self.emit(wdma(3)); self.emit(xdma(1)); self.emit(wdma(4)); self.emit(wdma(5))
        p.wait_vm("X0"); p.wait_vm("W1")
        e("s_barrier")
        self.emit(self.stamp())
        self.emit(q_reads(0)); self.emit(q_reads(1))
        kb01 = (self.kv_block(0) if not cfg.b0_first else []) + self.kv_block(1)
        k0 = cfg.kstart
        for n in range(28):
            pre = []
            rd = []
            if n + 2 < 28:
                p.wait_vm("W%d" % (n + 2))
                if (n + 2) % 4 == 0:
                    p.wait_vm("X%d" % ((n + 2) >> 2))
                    e("s_waitcnt lgkmcnt(0)")
                    e("s_barrier")
                rd = q_reads(n + 2)
            dm = []
            if n + 6 < 28 and not cfg.exp_nowx: dm += wdma(n + 6)
            if n == 1 and not cfg.exp_nowx: dm += xdma(2)
            if (n + 2) % 4 == 0 and ((n + 2) >> 2) + 2 <= 6 and not cfg.exp_nowx: dm += xdma(((n + 2) >> 2) + 2)
            if k0 <= n < k0 + 6: dm += kb01[(len(kb01) * (n - k0)) // 6:(len(kb01) * (n - k0 + 1)) // 6]
            mf = q_mfmas(n)
            seq = []
            nr = len(rd)
            rpos = [min(3, (4 * k) // max(nr, 1)) for k in range(nr)]
            dpos = [2 + (4 * k) // max(len(dm), 1) for k in range(len(dm))]
            for i, m in enumerate(mf):
                seq.append(m)
                seq += [rd[k] for k in range(nr) if rpos[k] == i]
                seq += [dm[k] for k in range(len(dm)) if min(dpos[k], 5) == i]
            self.emit(seq)
        self.emit(self.stamp())
        e("s_waitcnt lgkmcnt(0)")
        e("s_barrier")
        blk4 = self.kv_block(2)
        def exch_write(src_of):
            seq = []
            for dt in range(2):
                for rg in range(4):
                    va = vT[12 + ((dt * 4 + rg) & 1)]
                    seq.append("v_xor_b32 v%d, %d, v%d" % (va, (4 * dt + rg) * 16, vQw))
                    for qt in range(3):
                        b = src_of(dt, qt) + rg * 4
                        ta = vT[14 + 2 * qt]
                        seq.append(["v_cvt_pk_bf16_f32 v%d, v%d, v%d" % (ta, b, b + 1), "v_cvt_pk_bf16_f32 v%d, v%d, v%d" % (ta + 1, b + 2, b + 3),
                                    "ds_write_b64 v%d, %s offset:%d" % (va, vr(ta, 2), qt * 16384)])
            return seq
        self.emit(weave(exch_write(qacc), blk4))
        if not cfg.krow:
            e("v_add_u32 v%d, 0x10000, v%d" % (vT[10], vKr0)); e("v_add_u32 v%d, 0x10000, v%d" % (vT[11], vKr1))
        e("s_waitcnt lgkmcnt(0)")
        e("s_barrier")
        self.emit(self.stamp())
        QF = lambda t, s: (s * 6 + t) * 4
        def q_read(t, s):
            return "ds_read_b128 %s, v%d offset:%d" % (ar(QF(t, s)), vQr[s & 3], t * 8192 + (s >> 2) * 256)
        def qk_mfma(i, t, s):
            c = "0" if s == 0 else vr(S(i, t))
            return "v_mfma_f32_16x16x32_bf16 %s, %s, %s, %s" % (vr(S(i, t)), KFr(i, s), ar(QF(t, s)), c)
        def max_ops(i):
            r = []
            for t in range(6):
                b = S(i, t)
                if i == 0:
                    r.append("v_max3_f32 v%d, v%d, v%d, v%d" % (vM[t], b, b + 1, b + 2))
                    r.append("v_max_f32 v%d, v%d, v%d" % (vM[t], vM[t], b + 3))
                else:
                    r.append("v_max3_f32 v%d, v%d, v%d, v%d" % (vM[t], vM[t], b, b + 1))
                    r.append("v_max3_f32 v%d, v%d, v%d, v%d" % (vM[t], vM[t], b + 2, b + 3))
            return r
        for j in range(1, 4): e("v_add_u32 v%d, %d, v%d" % (vVD[j], j * 3072, vV))
        for i in range(8):
            self.emit(k_addr(i))
            p.wait_vm("B%d" % i)
            rd = [k_read(i, s) for s in range(8)]
            dm = self.kv_block(i + 2) if i >= 1 else []
            mx = max_ops(i - 1) if i >= 1 else []
            if i == 0:
                self.emit([rd[0]] + [q_read(t, 0) for t in range(6)])
                for s in range(8):
                    nxq = ([rd[s + 1]] + [q_read(t, s + 1) for t in range(6)]) if s < 7 else []
                    self.emit(weave([qk_mfma(0, t, s) for t in range(6)], nxq))
            else:
                mf = [qk_mfma(i, t, s) for s in range(8) for t in range(6)]
                self.emit(rd)
                self.emit(weave(mf, merge(dm, mx), 2, 47))
            if cfg.fine and i < 7: self.emit(self.stamp())
        self.emit(self.stamp())
        e("v_add_u32 v%d, 0x10000, v%d" % (vA0, vVr0)); e("v_add_u32 v%d, 0x10000, v%d" % (vA1, vVr1))
        self.emit(max_ops(7))
        seq = []
        for t in range(6):
            a = vT[0 + (t & 1)]
            seq += ["v_mov_b32 v%d, v%d" % (a, vM[t]), "v_permlane32_swap_b32 v%d, v%d" % (a, vM[t]), "v_max_f32 v%d, v%d, v%d" % (vM[t], vM[t], a),
                    "v_mov_b32 v%d, v%d" % (a, vM[t]), "v_permlane16_swap_b32 v%d, v%d" % (a, vM[t]), "v_max_f32 v%d, v%d, v%d" % (vM[t], vM[t], a),
                    "ds_write_b32 v%d, v%d offset:%d" % (vStW, vM[t], t * 256)]
        chains = [seq[7 * t:7 * t + 7] for t in range(6)]
        chains = []
        for t in range(6):
            a = vT[t]
            chains.append(["v_mov_b32 v%d, v%d" % (a, vM[t]), "v_permlane32_swap_b32 v%d, v%d" % (a, vM[t]), "v_max_f32 v%d, v%d, v%d" % (vM[t], vM[t], a),
                           "v_mov_b32 v%d, v%d" % (a, vM[t]), "v_permlane16_swap_b32 v%d, v%d" % (a, vM[t]), "v_max_f32 v%d, v%d, v%d" % (vM[t], vM[t], a),
                           "ds_write_b32 v%d, v%d offset:%d" % (vStW, vM[t], t * 256)])
        for k in range(7):
            for t in range(6): e(chains[t][k])
        e("s_waitcnt lgkmcnt(0)")
        e("s_barrier")
        for t in range(5): e("ds_read_b128 %s, v%d offset:%d" % (vr(44 + 4 * t, 4), vStR, t * 256))
        for t in range(6):
            b = 44 + 4 * (t % 5)
            if t == 5: e("ds_read_b128 %s, v%d offset:%d" % (vr(b, 4), vStR, t * 256))
            e("v_max3_f32 v%d, v%d, v%d, v%d" % (vM[t], b, b + 1, b + 2)); e("v_max_f32 v%d, v%d, v%d" % (vM[t], vM[t], b + 3))
        for t in range(6): e("v_mul_f32 v%d, s%d, v%d" % (vM[t], s_c, vM[t]))
        for j in range(4): e("v_add_u32 v%d, %d, v%d" % (vXr[j], (R - XB) & 0xffffffff, vXr[j]))
        e("s_mov_b32 s%d, 0x3f803f80" % s_ones)
        for t in range(6): e("v_mov_b32 v%d, 0" % vL[t])
        def exp_ops(i):
            us = []
            for t in range(6):
                b = S(i, t)
                tm = [vT[0], vT[1], vT[2], vT[3]] if t % 2 == 0 else [vT[4], vT[5], vT[6], vT[7]]
                pk = vT[8 + 2 * (t % 2)] if False else (vT[12] + 2 * (t % 2))
                for k in range(4): us.append("v_fma_f32 v%d, v%d, s%d, -v%d" % (tm[k], b + k, s_c, vM[t]))
                for k in range(4): us.append("v_exp_f32 v%d, v%d" % (tm[k], tm[k]))
                us.append("v_cvt_pk_bf16_f32 v%d, v%d, v%d" % (pk, tm[0], tm[1]))
                us.append("v_cvt_pk_bf16_f32 v%d, v%d, v%d" % (pk + 1, tm[2], tm[3]))
                us.append("v_dot2c_f32_bf16 v%d, s%d, v%d" % (vL[t], s_ones, pk))
                us.append("v_dot2c_f32_bf16 v%d, s%d, v%d" % (vL[t], s_ones, pk + 1))
                us.append("ds_write_b64 v%d, %s offset:%d" % (vPw, vr(pk, 2), (i & 1) * 12288 + t * 2048))
            return us
        self.emit(weave(exp_ops(0), self.kv_block(10)))
        self.emit(self.stamp())
        OAa = lambda dt, qt: (dt * 3 + qt) * 16
        OAv = lambda dt, qt: vS + (dt * 3 + qt) * 16
        VF = lambda buf, dt: 96 + buf * 20 + dt * 4
        PF = lambda buf, qt: 96 + buf * 20 + 8 + qt * 4
        def v_reads(i, u, buf):
            slot = self.kv_slot(8 + i)
            rd = []
            for dt in range(2):
                for jj in range(2):
                    off = slot + (16 * u + 4 * jj) * 128
                    base = vVr1 if dt else vVr0
                    if off >= 65536:
                        base = vA1 if dt else vA0; off -= 65536
                    rd.append("ds_read_b64_tr_b16 %s, v%d offset:%d" % (ar(VF(buf, dt) + 2 * jj, 2), base, off))
            for qt in range(3):
                rd.append("ds_read_b128 %s, v%d offset:%d" % (ar(PF(buf, qt)), vXr[u], (i & 1) * 12288 + qt * 4096))
            return [rd[0], rd[1], rd[4], rd[2], rd[3], rd[5], rd[6]]
        def pv_mfmas(i, u, buf):
            out = []
            for qt in range(3):
                for dt in range(2):
                    d = ar(OAa(dt, qt), 16) if i < 4 else vr(OAv(dt, qt), 16)
                    c = "0" if (i == 0 and u == 0) else d
                    out.append("v_mfma_f32_32x32x16_bf16 %s, %s, %s, %s" % (d, ar(VF(buf, dt)), ar(PF(buf, qt)), c))
            return out
        wo_slot = lambda k: SLOT[(16 + k) % 3]
        def wo_block(k):
            slot = wo_slot(k)
            tag = "WO%d" % k
            us = [lambda: p.group(tag)]
            for i in range(8):
                m0 = (s_kvb, slot + i * 1024) if i % 4 == 0 else None
                us.append(self.dma(vWoD[i], SRD_O, (sWO[k], None), m0, tag, cfg.aux_wo, imm=(i & 3) * 1024))
            return us
        if cfg.rot:
            e("s_cmp_eq_u32 s%d, 7" % s_b); e("s_cselect_b32 s%d, 0, s%d" % (s_ng, s_b))
        else:
            e("s_mov_b32 s%d, 0" % s_ng)
        e("s_mov_b32 s4, s%d" % s_ng)
        for k in range(7):
            if k: e("s_add_u32 s4, s4, 1"); e("s_cmp_eq_u32 s4, 7"); e("s_cselect_b32 s4, 0, s4")
            e("s_lshl_b32 s%d, s4, 7" % sWO[k])
            e("s_lshl_b32 s6, s4, 2"); e("s_add_u32 s6, s6, s%d" % s_w); e("s_mul_i32 s%d, s6, 3072" % sST[k])
        for i in range(8):
            e("s_waitcnt lgkmcnt(0)")
            e("s_barrier")
            p.wait_vm("B%d" % (8 + i))
            fill = []
            if i + 1 < 8: fill = exp_ops(i + 1)
            dm = []
            if 1 <= i <= 5: dm = self.kv_block(8 + i + 2)
            if i == 6:
                red = []
                chains = []
                for t in range(6):
                    a = vT[14 + (t % 6)] if False else vT[8 + (t & 3)]
                    chains.append(["v_mov_b32 v%d, v%d" % (a, vL[t]), "v_permlane32_swap_b32 v%d, v%d" % (a, vL[t]), "v_add_f32 v%d, v%d, v%d" % (vL[t], vL[t], a),
                                   "v_mov_b32 v%d, v%d" % (a, vL[t]), "v_permlane16_swap_b32 v%d, v%d" % (a, vL[t]), "v_add_f32 v%d, v%d, v%d" % (vL[t], vL[t], a),
                                   "ds_write_b32 v%d, v%d offset:%d" % (vStW, vL[t], 2048 + t * 256)])
                for t in range(6): red += chains[t]
                fill = fill + red
            if i == 1 and cfg.fuse:
                dm = [["v_mov_b32 v%d, 0" % vT[19], lambda: p.group("NC"),
                       Ins("global_load_dword v%d, v%d, s[%d:%d] sc1" % (vNonce, vT[19], s_dbgp, s_dbgp + 1), "NC")]] + dm
            if i == 5:
                pre = []
                a0, a1, a2 = 168, 169, 170
                pre += ["v_lshrrev_b32 v%d, 3, v0" % a0, "s_lshl_b32 s6, s%d, 6" % s_w, "v_add_u32 v%d, s6, v%d" % (a0, a0), "v_mul_u32_u24 v%d, 896, v%d" % (a0, a0)]
                pre += ["v_lshrrev_b32 v%d, 4, v0" % a1, "v_and_b32 v%d, 1, v%d" % (a1, a1), "v_lshlrev_b32 v%d, 1, v%d" % (a1, a1), "v_and_b32 v%d, 7, v0" % a2, "v_xor_b32 v%d, v%d, v%d" % (a1, a1, a2),
                        "v_lshlrev_b32 v%d, 4, v%d" % (a1, a1)]
                pre += ["v_add_u32 v%d, v%d, v%d" % (a2, a0, a1), "v_xor_b32 v%d, 64, v%d" % (a1, a1), "v_add_u32 v%d, v%d, v%d" % (a1, a0, a1)]
                for k in range(8):
                    pre.append("v_add_u32 v%d, %d, v%d" % (vWoD[k], k * 7168 - (k & 3) * 1024, a1 if k & 1 else a2))
                fill = fill + pre
            if i == 6:
                dm = wo_block(0)
            if i == 7:
                for t in range(6):
                    b = 44 + 4 * (t % 4)
                    fill += ["ds_read_b128 %s, v%d offset:%d" % (vr(b, 4), vStR, 2048 + t * 256),
                             ["v_add_f32 v%d, v%d, v%d" % (b, b, b + 1), "v_add_f32 v%d, v%d, v%d" % (b + 2, b + 2, b + 3),
                              "v_add_f32 v%d, v%d, v%d" % (b, b, b + 2), "v_rcp_f32 v%d, v%d" % (vM[t], b)]]
                dm = wo_block(1)
            self.emit(v_reads(i, 0, 0))
            if i == 4:
                mv = ["v_accvgpr_read_b32 v%d, a%d" % (vS + r, r) for r in range(96)]
                self.emit(weave(mv, dm[:5], 0, 96)); dm = dm[5:]
            mf = []
            for u in range(4):
                m = pv_mfmas(i, u, u & 1)
                if u < 3: mf += weave(m, v_reads(i, u + 1, (u + 1) & 1), 0, 4)
                else: mf += m
            self.emit(weave(mf, merge(fill, dm), 1, len(mf) - 1))
            if cfg.fine and i < 7: self.emit(self.stamp())
        self.emit(self.stamp())
        e("s_waitcnt lgkmcnt(0)")
        e("s_barrier")
        self.emit(exch_write(OAv))
        if cfg.fuse: self.get_nonce()
        p.wait_vm("WO0")
        e("s_waitcnt lgkmcnt(0)")
        e("s_barrier")
        self.emit(self.stamp())
        OF = QF
        WF = lambda b, s: 192 + 32 * b + s * 4
        ACC = lambda t: vS + t * 4
        def wo_reads(k):
            slot = wo_slot(k)
            base = vWor
            if slot >= 65536: base = vA0
            off0 = slot if slot < 65536 else slot - 65536
            return ["ds_read_b64_tr_b16 %s, v%d offset:%d" % (ar(WF(k & 1, s) + 2 * jj, 2), base, off0 + (32 * s + 4 * jj) * 128) for s in range(8) for jj in range(2)]
        def epi(t):
            b = ACC(t)
            pk = vT[8] + 4 * ((t >> 1) & 1) + 2 * (t & 1)
            u = ["v_mul_f32 v%d, v%d, v%d" % (b + k, vM[t], b + k) for k in range(4)]
            u += ["v_cvt_pk_bf16_f32 v%d, v%d, v%d" % (pk, b, b + 1), "v_cvt_pk_bf16_f32 v%d, v%d, v%d" % (pk + 1, b + 2, b + 3)]
            return u
        def st(pair, k):
            pk = vT[8] + 4 * (pair & 1)
            return [[lambda: p.group("ST%d_%d" % (k, pair)),
                     Ins("buffer_store_dwordx4 %s, v%d, %s, s%d offen offset:%d %s" % (vr(pk, 4), vStO, srd(SRD_P), sST[k], pair * 1024, cfg.aux_st), "ST%d_%d" % (k, pair))]]
        def tile(k, t):
            return ["v_mfma_f32_16x16x32_bf16 %s, %s, %s, %s" % (vr(ACC(t)), ar(WF(k & 1, s)), ar(OF(t, s)), "0" if s == 0 else vr(ACC(t))) for s in range(8)]
        e("v_add_u32 v%d, 0x10000, v%d" % (vA0, vWor))
        r0 = wo_reads(0)
        self.emit([x for s in range(8) for x in (r0[2 * s:2 * s + 2] + [q_read(0, s)])])
        self.emit(wo_block(2))
        for k in range(7):
            f = [[] for _ in range(6)]
            if k == 0:
                for t in range(5): f[t] += [q_read(t + 1, s) for s in range(8)]
            else:
                f[0] += epi(4); f[1] += epi(5) + st(2, k - 1)
            f[2] += epi(0); f[3] += epi(1) + st(0, k); f[4] += epi(2); f[5] += epi(3) + st(1, k)
            nx = wo_reads(k + 1) if k < 6 else []
            dm = wo_block(k + 3) if k + 3 <= 6 else []
            for t in range(6):
                if t == 2 and k < 6:
                    if k == 5 and cfg.fuse:
                        e("s_waitcnt vmcnt(0)")
                        e("s_barrier")
                        self.emit(self.flag_store(0))
                    else:
                        p.wait_vm("WO%d" % (k + 1))
                        e("s_barrier")
                ex = []
                if t >= 2:
                    ex = nx[4 * (t - 2):4 * (t - 1)]
                    dd = dm[0:1] + dm[1:3] if t == 2 else dm[1 + 2 * (t - 2):3 + 2 * (t - 2)]
                    ex = merge(ex, dd)
                self.emit(weave(tile(k, t), merge(f[t], ex), 0, 8))
        self.emit(epi(4)); self.emit(epi(5)); self.emit(st(2, 6))
        self.emit(self.stamp())
        if cfg.fuse:
            self.reduce_tail()
        elif cfg.stamps or cfg.dbg:
            e("s_waitcnt vmcnt(0)")
            self.emit(self.stamp())
        e("L_k1_end:")
        e("s_endpgm")
        p.resolve()
        return p.text()

    def get_nonce(self):
        cfg, p, e = self.cfg, self.p, self.p.e
        e("v_readfirstlane_b32 s%d, v%d" % (s_nonce, vNonce))
        e("s_cmp_lg_u32 s%d, 0" % s_nonce); e("s_cbranch_scc1 L_havenonce")
        e("L_pollnonce:")
        e("v_mov_b32 v44, 0")
        p.raw(Ins("global_load_dword v%d, v44, s[%d:%d] sc1" % (vNonce, s_dbgp, s_dbgp + 1), "nocount"))
        p.raw(Ins("s_waitcnt vmcnt(0)", "nocredit"))
        e("v_readfirstlane_b32 s%d, v%d" % (s_nonce, vNonce))
        e("s_cmp_eq_u32 s%d, 0" % s_nonce); e("s_cbranch_scc1 L_pollnonce")
        e("L_havenonce:")
        e("s_lshl_b32 s4, s%d, 8" % s_G); e("s_add_u32 s4, s4, %d" % FLAG_OFF)
        e("s_add_u32 s68, s58, s4"); e("s_addc_u32 s69, s59, 0")

    def flag_store(self, which):
        lab = "L_nofl%d" % which
        return ["s_cmp_lg_u32 s%d, 0" % s_w, "s_cbranch_scc1 %s" % lab,
                "v_mov_b32 v42, s%d" % s_nonce, "s_lshl_b32 s4, s%d, 2" % s_h, "s_add_u32 s4, s4, %d" % (128 * which), "v_mov_b32 v43, s4",
                "s_mov_b64 exec, 1",
                Ins("global_store_dword v43, v42, s[68:69] sc1", "nocount"),
                "s_mov_b64 exec, -1", "s_nop 4", lab + ":"]

    def poll(self, which):
        e, p = self.p.e, self.p
        e("s_mov_b64 exec, 0xffff")
        e("v_lshlrev_b32 v45, 2, v0")
        e("L_poll%d:" % which)
        p.raw(Ins("global_load_dword v46, v45, s[68:69] offset:%d sc1" % (128 * which), "nocount"))
        p.raw(Ins("s_waitcnt vmcnt(0)", "nocredit"))
        e("v_cmp_ne_u32 vcc, s%d, v46" % s_nonce)
        e("s_nop 4")
        e("s_cbranch_vccz L_polldone%d" % which)
        e("s_sleep 1")
        e("s_branch L_poll%d" % which)
        e("L_polldone%d:" % which)
        e("s_mov_b64 exec, -1")

    def unit(self, su, tagname):
        cfg, p, e = self.cfg, self.p, self.p.e
        SG = 64
        e("s_mul_hi_u32 s5, s%d, %d" % (su, (1 << 32) // 12 + 1)); e("s_mul_i32 s6, s5, 12"); e("s_sub_u32 s6, s%d, s6" % su)
        e("s_add_u32 s5, s5, s%d" % s_ng); e("s_cmp_ge_u32 s5, 7"); e("s_cselect_b32 s7, 7, 0"); e("s_sub_u32 s5, s5, s7")
        e("s_mul_i32 s72, s5, 12"); e("s_add_u32 s72, s72, s6"); e("s_lshl_b32 s72, s72, 10")
        e("s_mul_hi_u32 s7, s6, %d" % ((1 << 32) // 3 + 1)); e("s_mul_i32 s76, s7, 3"); e("s_sub_u32 s76, s6, s76")
        e("s_lshl_b32 s5, s5, 7"); e("s_lshl_b32 s7, s7, 5"); e("s_mul_i32 s76, s76, %d" % (32 * 1792))
        e("s_add_u32 s5, s5, s7"); e("s_add_u32 s5, s5, s76"); e("s_add_u32 s73, s5, s70")
        e("s_cmp_ge_u32 s%d, 84" % su)
        e("s_cselect_b32 s72, 0x40000000, s72"); e("s_cselect_b32 s73, 0x40000000, s73")
        for h in range(16):
            e("s_add_u32 s5, s72, %d" % (h * PART))
            p.raw(Ins("buffer_load_dwordx4 %s, v%d, %s, s5 offen %s" % (vr(64 + 4 * h, 4), vStO, srd(SG), cfg.aux_rd), tagname))
        acc = list(range(48, 56))
        for a in acc: e("v_mov_b32 v%d, 0" % a)
        for h in range(16):
            b = 64 + 4 * h
            for q in range(4):
                e("v_dot2c_f32_bf16 v%d, s74, v%d" % (acc[2 * q], b + q)); e("v_dot2c_f32_bf16 v%d, s75, v%d" % (acc[2 * q + 1], b + q))
        for q in range(4): e("v_cvt_pk_bf16_f32 v%d, v%d, v%d" % (56 + q, acc[2 * q], acc[2 * q + 1]))
        e("buffer_store_dwordx2 v[56:57], v41, %s, s73 offen" % srd(SRD_OUT))
        e("s_add_u32 s5, s73, %d" % (16 * 1792))
        e("buffer_store_dwordx2 v[58:59], v41, %s, s5 offen" % srd(SRD_OUT))

    def reduce_tail(self):
        cfg, p, e = self.cfg, self.p, self.p.e
        SG = 64
        e("s_mul_i32 s4, s%d, %d" % (s_G, PART * 16))
        e("s_add_u32 s%d, s58, s4" % SG); e("s_addc_u32 s%d, s59, 0" % (SG + 1)); e("s_mov_b32 s%d, %d" % (SG + 2, PART * 16)); e("s_mov_b32 s%d, 0x20000" % (SG + 3))
        e("s_mul_i32 s70, s%d, %d" % (s_b, 96 * 1792)); e("s_mul_i32 s4, s%d, 896" % s_br); e("s_add_u32 s70, s70, s4")
        e("v_and_b32 v41, 15, v0"); e("v_mul_u32_u24 v41, 1792, v41"); e("v_lshrrev_b32 v42, 4, v0"); e("v_lshlrev_b32 v42, 3, v42"); e("v_add_u32 v41, v41, v42")
        e("s_mov_b32 s74, 0x3f80"); e("s_mov_b32 s75, 0x3f800000")
        e("s_lshl_b32 s61, s%d, 2" % s_h); e("s_add_u32 s61, s61, s%d" % s_w)
        e("s_cmp_ge_u32 s61, 60"); e("s_cselect_b32 s61, 127, s61")
        e("s_lshl_b32 s62, s%d, 4" % s_w); e("s_add_u32 s62, s62, s%d" % s_h); e("s_add_u32 s62, s62, 60")
        e("s_cmp_eq_u32 s%d, 3" % s_w); e("s_cbranch_scc0 L_np1")
        self.poll(0)
        e("L_np1:")
        e("s_waitcnt vmcnt(0)")
        e("s_barrier")
        self.emit(self.stamp())
        self.emit(self.flag_store(1))
        self.unit(61, "RD1")
        e("s_cmp_eq_u32 s%d, 3" % s_w); e("s_cbranch_scc0 L_np2")
        self.poll(1)
        e("L_np2:")
        e("s_barrier")
        self.emit(self.stamp())
        e("s_cmp_ge_u32 s%d, 2" % s_w); e("s_cbranch_scc1 L_fin")
        self.unit(62, "RD2")
        e("L_fin:")
        if cfg.stamps or cfg.dbg:
            e("s_waitcnt vmcnt(0)")
            self.emit(self.stamp())

def desc(name, vg, acc, sg=102):
    return """.amdhsa_kernel %s
  .amdhsa_next_free_vgpr %d
  .amdhsa_next_free_sgpr %d
  .amdhsa_accum_offset %d
  .amdhsa_group_segment_fixed_size 0
  .amdhsa_kernarg_size 104
  .amdhsa_user_sgpr_count 2
  .amdhsa_user_sgpr_kernarg_segment_ptr 1
  .amdhsa_system_sgpr_workgroup_id_x 1
  .amdhsa_float_denorm_mode_32 3
.end_amdhsa_kernel
""" % (name, vg, sg, acc)

REF = "concat_heads__gqa_block_cached__mha_block_cached__near_ridge.s.ref"
HEAD = open(REF).read().split("; Override launch geometry")[0] if os.path.exists(REF) else ""

def generate(cfg):
    k1 = K1(cfg).build()
    out = HEAD
    out += "; @launch grid=(256,1,1) block=(256,1,1) lds=163840\n"
    out += '.amdgcn_target "amdgcn-amd-amdhsa--gfx950"\n.text\n'
    out += ".globl %s\n.p2align 8\n.type %s,@function\n%s:\n%s\n" % (KNAME, KNAME, KNAME, k1)
    out += '.section .rodata,"a"\n.p2align 6\n' + desc(KNAME, 512, 256)
    return out

if __name__ == "__main__":
    kw = {}
    for a in sys.argv[2:]:
        k, v = a.split("=", 1)
        kw[k] = eval(v)
    txt = generate(Cfg(**kw))
    open(sys.argv[1], "w").write(txt)
    print("wrote", sys.argv[1], len(txt), "bytes,", txt.count("\n"), "lines")
```

```python
import sys, os
from asmgen import Prog, Ins

KNAME = "concat_heads__gqa_block_cached__mha_block_cached__near_ridge_kernel"

class Cfg:
    aux_kv = "nt"
    aux_w = ""
    aux_x = ""
    aux_wo = ""
    aux_st = "sc1"
    aux_rd = "sc1"
    stamps = False
    dbg = False
    dbg_wg = 128
    rot = True
    fuse = True
    fine = False
    early_dma = True
    krow = True
    code_pf = False
    code_bytes = 32768
    f1_drain = True
    exp_kpre = 4
    kstart = 22
    kbar = False
    rot_hh = 3
    b0_first = False
    tlbwarm = True
    exp_nowx = False
    def __init__(self, **kw):
        for k, v in kw.items():
            assert hasattr(Cfg, k), k
            setattr(self, k, v)

SLOT = [0, 32768, 65536]
WB = 65536
XB = 114688
R = 98304
ST = 159744
PART = 86016
TS_OFF = 64 << 20
FLAG_OFF = 32 << 20

vK0, vK1, vV, vW, vX = 1, 2, 3, 4, 5
vVD = [3, 41, 42, 43]
vKr0, vKr1 = 6, 7
vVr0, vVr1 = 8, 9
vXr = [10, 11, 12, 13]
vQr = [14, 15, 16, 17]
vPw = 18
vQw = 19
vWor = 20
vStW, vStR = 21, 22
vStO = 23
vM = [24, 25, 26, 27, 28, 29]
vL = [30, 31, 32, 33, 34, 35]
vWoD = list(range(160, 168))
vA0, vA1 = 38, 39
vNonce = 40
vKT = 6
vT = list(range(44, 64))
vS = 64

def S(i, t): return vS + (i * 6 + t) * 4

s_w = 3
sT0, sSoff, sT1, sT2 = 4, 5, 6, 7
SRD_X, SRD_W, SRD_K, SRD_V, SRD_O, SRD_P = 8, 12, 16, 20, 24, 28
s_c = 32
s_kvb = 33
s_wrb = 34
s_w1k = 35
sCW = list(range(36, 43))
sCX = list(range(44, 51))
sWO = list(range(36, 43))
sST = list(range(44, 51))
s_ws = 58
s_cnt = 60
s_ng, s_ng2, s_slotR, s_slotN, s_slotD, s_stoff, s_stprev, s_wooff = 71, 72, 73, 74, 75, 76, 77, 78
s_b, s_hh, s_h, s_br = 79, 80, 81, 82
s_G = 83
s_tsoff = 88
s_nonce = 94
s_ones = 95
SRD_G, SRD_OUT = 64, 68
SRD_OUT = 52
s_dbgp = 96
s_outp = 98

def srd(n): return "s[%d:%d]" % (n, n + 3)
def vr(n, c=4): return "v[%d:%d]" % (n, n + c - 1)
def ar(n, c=4): return "a[%d:%d]" % (n, n + c - 1)

def weave(main, fill, lo=0, hi=None):
    if hi is None: hi = len(main)
    out = []
    n = hi - lo
    k = 0
    for i, m in enumerate(main):
        out.append(m)
        if lo <= i < hi:
            tgt = min(len(fill), -(-(len(fill) * (i - lo + 1)) // n))
            while k < tgt:
                out.append(fill[k]); k += 1
    while k < len(fill):
        out.append(fill[k]); k += 1
    return out

def merge(a, b):
    if not a: return list(b)
    if not b: return list(a)
    return weave(a, b) if len(a) >= len(b) else weave(b, a)

class K1:
    def __init__(self, cfg):
        self.cfg = cfg
        self.p = Prog()
        self.nstamp = 0
        self.vTs = 62
        self.npf = 0

    def emit(self, seq):
        for u in seq:
            if isinstance(u, (list, tuple)): self.emit(u)
            elif callable(u): u()
            elif isinstance(u, Ins): self.p.raw(u)
            else: self.p.e(u)

    def dma(self, vaddr, srdn, soff, m0, tag, aux, imm=0):
        u = []
        if m0 is not None:
            if isinstance(m0, int): u.append("s_mov_b32 m0, %d" % m0)
            else: u.append("s_add_u32 m0, s%d, %d" % m0 if m0[1] else "s_mov_b32 m0, s%d" % m0[0])
        if isinstance(soff, int):
            u.append("s_mov_b32 s%d, %d" % (sSoff, soff)); sreg = sSoff
        elif soff[1] is None:
            sreg = soff[0]
            if m0 is not None: u.append("s_nop 0")
        else:
            u.append("s_add_u32 s%d, s%d, %d" % (sSoff, soff[0], soff[1])); sreg = sSoff
        u.append(Ins("buffer_load_dwordx4 v%d, %s, s%d offen %s%s lds" % (vaddr, srd(srdn), sreg, ("offset:%d " % imm) if imm else "", aux), tag))
        return u

    def stamp(self):
        cfg = self.cfg
        if cfg.dbg:
            i = self.nstamp; self.nstamp += 1
            lab = "L_st%d" % i
            return ["s_cmp_lg_u32 s89, 0", "s_cbranch_scc1 %s" % lab,
                    Ins("s_memrealtime s[86:87]", "nocount"), Ins("s_waitcnt lgkmcnt(0)", "nocredit"),
                    "v_mov_b32 v%d, s86" % self.vTs, "v_mov_b32 v%d, %d" % (self.vTs + 1, 4 * (i + 1)),
                    Ins("global_store_dword v%d, v%d, s[100:101]" % (self.vTs + 1, self.vTs), 'nocount'), lab + ":"]
        if not cfg.stamps: return []
        i = self.nstamp; self.nstamp += 1
        return ["s_memrealtime s[86:87]", "s_memtime s[92:93]", "s_waitcnt lgkmcnt(0)",
                "v_mov_b32 v%d, s86" % self.vTs, "v_mov_b32 v%d, s%d" % (self.vTs + 1, s_tsoff),
                Ins("global_store_dword v%d, v%d, s[84:85] offset:%d" % (self.vTs + 1, self.vTs, 4 * i), 'nocount'),
                "v_mov_b32 v%d, s92" % self.vTs,
                Ins("global_store_dword v%d, v%d, s[84:85] offset:%d" % (self.vTs + 1, self.vTs, 128 + 4 * i), 'nocount')]

    def code_prefetch(self, t0, t2):
        e, p = self.p.e, self.p
        i = self.npf; self.npf += 1
        e("s_cmp_lg_u32 s%d, 0" % s_w); e("s_cbranch_scc1 L_nopf%d" % i)
        e("s_getpc_b64 s[90:91]")
        e("L_pc%d:" % i)
        e("s_sub_u32 s90, s90, L_pc%d-%s" % (i, KNAME)); e("s_subb_u32 s91, s91, 0")
        e("s_lshr_b32 s4, s2, 3"); e("s_lshl_b32 s4, s4, 11")
        e("v_lshlrev_b32 v%d, 7, v0" % t0); e("v_add_u32 v%d, s4, v%d" % (t0, t0))
        e("v_mov_b32 v%d, s91" % (t2 + 1))
        e("v_add_co_u32 v%d, vcc, s90, v%d" % (t2, t0)); e("v_addc_co_u32 v%d, vcc, 0, v%d, vcc" % (t2 + 1, t2 + 1))
        e("v_cmp_gt_u32 vcc, L_k1_end-%s, v%d" % (KNAME, t0))
        e("s_and_b64 exec, vcc, 0xffff")
        e("s_cbranch_execz L_nopfx%d" % i)
        p.raw(Ins("global_load_dword v%d, v[%d:%d], off" % (vNonce, t2, t2 + 1), "nocount"))
        e("L_nopfx%d:" % i)
        e("s_mov_b64 exec, -1")
        e("s_nop 4")
        e("L_nopf%d:" % i)

    @staticmethod
    def kv_slot(n):
        return SLOT[n % 3]
    def kv_block(self, n):
        cfg = self.cfg
        slot = self.kv_slot(n)
        tag = "B%d" % n
        us = [lambda: self.p.group(tag)]
        if n < 8 and cfg.krow:
            for m in range(8):
                tmp = vK1 if m & 1 else vKT
                u = ["v_xor_b32 v%d, %d, v%d" % (tmp, 32 * m, vK0)]
                if m % 4 == 0:
                    u += self.dma(tmp, SRD_K, n * 32768 + m * 1024, (s_kvb, slot + m * 1024), tag, cfg.aux_kv)
                else:
                    u += self.dma(tmp, SRD_K, (sSoff, None), None, tag, cfg.aux_kv, imm=(m % 4) * 1024)
                us.append(u)
        elif n < 8:
            for m in range(4):
                for kh in range(2):
                    us.append(self.dma(vK1 if kh else vK0, SRD_K, n * 32768 + m * 128, (s_kvb, slot + (m * 2 + kh) * 1024), tag, cfg.aux_kv))
        else:
            for m in range(8):
                if m % 4 == 0:
                    us.append(self.dma(vVD[0], SRD_V, (n - 8) * 32768 + m * 4096, (s_kvb, slot + m * 1024), tag, cfg.aux_kv))
                else:
                    us.append(self.dma(vVD[m % 4], SRD_V, (sSoff, None), None, tag, cfg.aux_kv, imm=(m % 4) * 1024))
        return us

    def build(self):
        cfg, p, e = self.cfg, self.p, self.p.e
        e("s_cmp_ge_u32 s2, 256")
        e("s_cbranch_scc1 L_k1_end")
        e("s_load_dwordx8 s[36:43], s[0:1], 0")
        e("s_load_dwordx2 s[44:45], s[0:1], 32")
        e("s_load_dwordx8 s[48:55], s[0:1], 40")
        e("s_load_dwordx2 s[56:57], s[0:1], 72")
        e("s_load_dwordx2 s[58:59], s[0:1], 96")
        e("s_load_dwordx4 s[96:99], s[0:1], 80")
        e("v_lshrrev_b32 v60, 6, v0")
        e("v_and_b32 v0, 63, v0")
        e("v_readfirstlane_b32 s%d, v60" % s_w)
        e("s_and_b32 s4, s2, 7")
        e("s_lshr_b32 s6, s2, 3")
        e("s_lshr_b32 s%d, s6, 4" % s_br)
        e("s_lshr_b32 s%d, s6, 1" % s_b)
        e("s_and_b32 s%d, s%d, 7" % (s_b, s_b))
        e("s_and_b32 s%d, s6, 1" % s_hh)
        e("s_lshl_b32 s%d, s4, 1" % s_h)
        e("s_add_u32 s%d, s%d, s%d" % (s_h, s_h, s_hh))
        e("s_lshl_b32 s6, s%d, 3" % s_b); e("s_add_u32 s6, s6, s4")
        e("s_lshl_b32 s7, s%d, 4" % s_b); e("s_add_u32 s7, s7, s%d" % s_h)
        e("s_cmp_eq_u32 s%d, 0" % s_br)
        e("s_cselect_b32 s6, s6, s7")
        e("s_lshl_b32 s61, s6, 18")
        e("s_lshl_b32 s%d, s%d, 13" % (s_kvb, s_w))
        e("s_mul_i32 s%d, s%d, 12288" % (s_wrb, s_w)); e("s_add_u32 s%d, s%d, %d" % (s_wrb, s_wrb, WB))
        e("s_lshl_b32 s%d, s%d, 10" % (s_w1k, s_w))
        e("s_mov_b32 s%d, 0x3db8aa3b" % s_c)
        e("s_lshl_b32 s%d, s%d, 3" % (s_G, s_br)); e("s_add_u32 s%d, s%d, s%d" % (s_G, s_G, s_b))
        if cfg.rot:
            e("s_mul_i32 s62, s%d, %d" % (s_hh, cfg.rot_hh)); e("s_add_u32 s62, s62, s%d" % s_b)
            e("s_cmp_ge_u32 s62, 7"); e("s_cselect_b32 s6, 7, 0"); e("s_sub_u32 s62, s62, s6")
        else:
            e("s_mov_b32 s62, 0")
        t0, t1, t2, t3, t4 = vT[:5]
        l3, l7, l4, i15 = vT[5:9]
        e("v_lshrrev_b32 v%d, 3, v0" % l3)
        e("v_and_b32 v%d, 7, v0" % l7)
        e("v_lshrrev_b32 v%d, 4, v0" % l4)
        e("v_and_b32 v%d, 15, v0" % i15)
        e("v_and_b32 v%d, 1, v%d" % (t0, l4)); e("v_lshlrev_b32 v%d, 2, v%d" % (t0, t0))
        e("v_xor_b32 v%d, v%d, v%d" % (t0, l7, t0)); e("v_lshlrev_b32 v%d, 4, v%d" % (t0, t0))
        e("s_lshl_b32 s6, s%d, 7" % s_w)
        e("v_add_u32 v%d, s6, v%d" % (t0, t0))
        e("v_lshlrev_b32 v%d, 13, v%d" % (t1, l3)); e("v_add_u32 v%d, v%d, v%d" % (vW, t0, t1))
        e("v_lshlrev_b32 v%d, 9, v%d" % (t1, l3)); e("v_add_u32 v%d, v%d, v%d" % (vV, t0, t1))
        e("s_lshl_b32 s6, s%d, 3" % s_w); e("v_add_u32 v%d, s6, v%d" % (t2, l3)); e("v_mul_u32_u24 v%d, 896, v%d" % (t2, t2))
        e("s_and_b32 s7, s%d, 1" % s_w); e("s_lshl_b32 s7, s7, 2")
        e("v_add_u32 v%d, s7, v%d" % (t3, l4)); e("v_xor_b32 v%d, v%d, v%d" % (t3, l7, t3)); e("v_lshlrev_b32 v%d, 4, v%d" % (t3, t3))
        e("v_add_u32 v%d, v%d, v%d" % (vX, t2, t3))
        e("s_waitcnt lgkmcnt(0)")
        if cfg.stamps:
            e("s_mov_b32 s84, s58"); e("s_mov_b32 s85, s59")
            e("s_lshl_b32 s%d, s2, 2" % s_tsoff); e("s_add_u32 s%d, s%d, s%d" % (s_tsoff, s_tsoff, s_w))
            e("s_lshl_b32 s%d, s%d, 8" % (s_tsoff, s_tsoff)); e("s_add_u32 s%d, s%d, %d" % (s_tsoff, s_tsoff, TS_OFF))
        if cfg.dbg:
            e("s_sub_u32 s89, s2, %d" % cfg.dbg_wg); e("s_or_b32 s89, s89, s%d" % s_w)
            e("s_mov_b32 s100, s98"); e("s_mov_b32 s101, s99")
        self.emit(self.stamp())
        e("s_cmp_eq_u32 s%d, 0" % s_br)
        for (dst, a, b) in ((SRD_X, 36, 48), (SRD_K, 38, 50), (SRD_V, 40, 52), (SRD_W, 42, 54), (SRD_O, 44, 56)):
            e("s_cselect_b32 s%d, s%d, s%d" % (dst, a, b)); e("s_cselect_b32 s%d, s%d, s%d" % (dst + 1, a + 1, b + 1))
        e("s_mul_i32 s4, s%d, %d" % (s_b, PART))
        e("s_add_u32 s%d, s%d, s4" % (SRD_X, SRD_X)); e("s_addc_u32 s%d, s%d, 0" % (SRD_X + 1, SRD_X + 1))
        e("s_mov_b32 s%d, %d" % (SRD_X + 2, PART)); e("s_mov_b32 s%d, 0x20000" % (SRD_X + 3))
        e("s_lshl_b32 s4, s%d, 9" % s_h)
        e("s_add_u32 s%d, s%d, s4" % (SRD_W, SRD_W)); e("s_addc_u32 s%d, s%d, 0" % (SRD_W + 1, SRD_W + 1))
        e("s_sub_u32 s%d, %d, s4" % (SRD_W + 2, 448 * 8192)); e("s_mov_b32 s%d, 0x20000" % (SRD_W + 3))
        for c in range(7):
            if c == 0: e("s_mov_b32 s63, s62")
            else:
                e("s_add_u32 s63, s63, 1"); e("s_cmp_eq_u32 s63, 7"); e("s_cselect_b32 s63, 0, s63")
            e("s_lshl_b32 s%d, s63, 7" % sCX[c]); e("s_lshl_b32 s%d, s63, 19" % sCW[c])
            if c == 0:
                pass
        def xdma(c):
            us = [lambda: p.group("X%d" % c)]
            for i in range(3):
                us.append(self.dma(vX, SRD_X, (sCX[c], i * 32 * 896), (s_w1k, XB + (c % 3) * 12288 + i * 4096), "X%d" % c, cfg.aux_x))
            return us
        def wdma(n):
            us = [lambda: p.group("W%d" % n)]
            for m in range(2):
                us.append(self.dma(vW, SRD_W, (sCW[n >> 2], ((n & 3) * 16 + 8 * m) * 8192), (s_wrb, (n % 6) * 2048 + m * 1024), "W%d" % n, cfg.aux_w))
            return us
        self.emit(xdma(0)); self.emit(wdma(0)); self.emit(wdma(1))
        if cfg.b0_first:
            e("s_add_u32 s%d, s%d, s61" % (SRD_K, SRD_K)); e("s_addc_u32 s%d, s%d, 0" % (SRD_K + 1, SRD_K + 1))
            e("s_mov_b32 s%d, 262144" % (SRD_K + 2)); e("s_mov_b32 s%d, 0x20000" % (SRD_K + 3))
            e("v_lshrrev_b32 v%d, 5, v0" % t0); e("v_and_b32 v%d, 31, v0" % t1); e("v_xor_b32 v%d, v%d, v%d" % (t1, t1, t0))
            e("v_lshlrev_b32 v%d, 4, v%d" % (t1, t1)); e("v_lshlrev_b32 v%d, 9, v%d" % (t0, t0)); e("v_add_u32 v%d, v%d, v%d" % (t0, t0, t1))
            e("v_add_u32 v%d, s%d, v%d" % (vK0, s_kvb, t0))
            self.emit(self.kv_block(0))
        if cfg.code_pf: self.code_prefetch(t0, t2)
        if not cfg.b0_first:
            e("s_add_u32 s%d, s%d, s61" % (SRD_K, SRD_K)); e("s_addc_u32 s%d, s%d, 0" % (SRD_K + 1, SRD_K + 1))
            e("s_mov_b32 s%d, 262144" % (SRD_K + 2)); e("s_mov_b32 s%d, 0x20000" % (SRD_K + 3))
        e("s_add_u32 s%d, s%d, s61" % (SRD_V, SRD_V)); e("s_addc_u32 s%d, s%d, 0" % (SRD_V + 1, SRD_V + 1))
        e("s_mov_b32 s%d, 262144" % (SRD_V + 2)); e("s_mov_b32 s%d, 0x20000" % (SRD_V + 3))
        e("s_mul_i32 s4, s%d, %d" % (s_h, 256 * 896))
        e("s_add_u32 s%d, s%d, s4" % (SRD_O, SRD_O)); e("s_addc_u32 s%d, s%d, 0" % (SRD_O + 1, SRD_O + 1))
        e("s_mov_b32 s%d, %d" % (SRD_O + 2, 256 * 896)); e("s_mov_b32 s%d, 0x20000" % (SRD_O + 3))
        e("s_lshl_b32 s4, s%d, 4" % s_G); e("s_add_u32 s4, s4, s%d" % s_h); e("s_mul_i32 s4, s4, %d" % PART)
        e("s_add_u32 s%d, s58, s4" % SRD_P); e("s_addc_u32 s%d, s59, 0" % (SRD_P + 1))
        e("s_mov_b32 s%d, %d" % (SRD_P + 2, PART)); e("s_mov_b32 s%d, 0x20000" % (SRD_P + 3))
        e("s_mov_b32 s%d, s96" % SRD_OUT); e("s_mov_b32 s%d, s97" % (SRD_OUT + 1))
        e("s_mov_b32 s%d, %d" % (SRD_OUT + 2, 8 * 96 * 1792)); e("s_mov_b32 s%d, 0x20000" % (SRD_OUT + 3))
        e("s_mov_b32 s%d, s98" % s_dbgp); e("s_mov_b32 s%d, s99" % (s_dbgp + 1))
        if cfg.fuse:
            e("s_or_b32 s4, s2, s%d" % s_w); e("s_cmp_lg_u32 s4, 0"); e("s_cbranch_scc1 L_nononce")
            p.raw(Ins("s_memrealtime s[90:91]", "nocount")); p.raw(Ins("s_waitcnt lgkmcnt(0)", "nocredit")); e("s_or_b32 s90, s90, 1")
            e("v_mov_b32 v%d, s90" % t0); e("v_mov_b32 v%d, 0" % t1)
            p.raw(Ins("global_store_dword v%d, v%d, s[%d:%d] sc1" % (t1, t0, s_dbgp, s_dbgp + 1), 'nocount'))
            e("L_nononce:")
        if cfg.krow:
            e("v_lshrrev_b32 v%d, 5, v0" % t0); e("v_and_b32 v%d, 31, v0" % t1); e("v_xor_b32 v%d, v%d, v%d" % (t1, t1, t0))
            e("v_lshlrev_b32 v%d, 4, v%d" % (t1, t1)); e("v_lshlrev_b32 v%d, 9, v%d" % (t0, t0)); e("v_add_u32 v%d, v%d, v%d" % (t0, t0, t1))
            e("v_add_u32 v%d, s%d, v%d" % (vK0, s_kvb, t0))
        else:
            e("s_lshl_b32 s4, s%d, 4" % s_w)
            e("v_add_u32 v%d, s4, v%d" % (t0, l3)); e("v_lshlrev_b32 v%d, 9, v%d" % (t0, t0))
            e("v_xor_b32 v%d, v%d, v%d" % (t1, l7, l4)); e("v_lshlrev_b32 v%d, 4, v%d" % (t1, t1))
            e("v_add_u32 v%d, v%d, v%d" % (vK0, t0, t1))
            e("v_xor_b32 v%d, 64, v%d" % (vK1, vK0)); e("v_add_u32 v%d, 4096, v%d" % (vK1, vK1))
        if not cfg.krow:
            e("v_lshrrev_b32 v%d, 3, v%d" % (t0, i15)); e("v_lshlrev_b32 v%d, 10, v%d" % (t0, t0))
            e("v_and_b32 v%d, 7, v%d" % (t1, i15)); e("v_lshlrev_b32 v%d, 7, v%d" % (t1, t1)); e("v_add_u32 v%d, v%d, v%d" % (t0, t0, t1))
            e("v_lshrrev_b32 v%d, 1, v%d" % (t1, i15)); e("v_xor_b32 v%d, v%d, v%d" % (t1, l4, t1)); e("v_lshlrev_b32 v%d, 4, v%d" % (t1, t1))
            e("v_add_u32 v%d, v%d, v%d" % (t0, t0, t1)); e("v_add_u32 v%d, s%d, v%d" % (vKr0, s_kvb, t0)); e("v_xor_b32 v%d, 64, v%d" % (vKr1, vKr0))
        e("v_lshrrev_b32 v%d, 5, v0" % t0); e("v_lshlrev_b32 v%d, 3, v%d" % (t0, t0)); e("v_lshrrev_b32 v%d, 2, v%d" % (t1, i15))
        e("v_add_u32 v%d, v%d, v%d" % (t0, t0, t1)); e("v_lshlrev_b32 v%d, 7, v%d" % (t0, t0))
        e("v_and_b32 v%d, 1, v%d" % (t1, l4)); e("v_lshlrev_b32 v%d, 1, v%d" % (t1, t1))
        e("v_and_b32 v%d, 3, v%d" % (t4, i15)); e("v_lshrrev_b32 v%d, 1, v%d" % (t4, t4)); e("v_add_u32 v%d, v%d, v%d" % (t1, t1, t4))
        e("v_lshrrev_b32 v%d, 3, v%d" % (t4, i15)); e("v_lshlrev_b32 v%d, 2, v%d" % (t4, t4)); e("v_xor_b32 v%d, v%d, v%d" % (t1, t1, t4))
        e("v_lshlrev_b32 v%d, 4, v%d" % (t1, t1)); e("v_add_u32 v%d, v%d, v%d" % (t0, t0, t1))
        e("v_and_b32 v%d, 1, v%d" % (t1, i15)); e("v_lshlrev_b32 v%d, 3, v%d" % (t1, t1)); e("v_add_u32 v%d, v%d, v%d" % (t0, t0, t1))
        e("v_add_u32 v%d, s%d, v%d" % (vVr0, s_kvb, t0)); e("v_xor_b32 v%d, 64, v%d" % (vVr1, vVr0))
        e("v_add_u32 v%d, s%d, v%d" % (vA0, s_wrb, t0)); e("v_xor_b32 v%d, 64, v%d" % (vA1, vA0))
        e("v_and_b32 v%d, 31, v0" % t0); e("v_lshrrev_b32 v%d, 1, v%d" % (t1, t0)); e("v_and_b32 v%d, 7, v%d" % (t1, t1))
        e("v_lshrrev_b32 v%d, 5, v0" % t4); e("v_xor_b32 v%d, v%d, v%d" % (t1, t1, t4)); e("v_lshlrev_b32 v%d, 4, v%d" % (t1, t1))
        e("v_lshlrev_b32 v%d, 7, v%d" % (t0, t0)); e("v_add_u32 v%d, v%d, v%d" % (t0, t0, t1)); e("v_add_u32 v%d, %d, v%d" % (vXr[0], XB, t0))
        for j in range(1, 4): e("v_xor_b32 v%d, %d, v%d" % (vXr[j], 32 * j, vXr[0]))
        e("v_xor_b32 v%d, v%d, v%d" % (t1, l4, i15)); e("v_lshlrev_b32 v%d, 4, v%d" % (t1, t1)); e("v_lshlrev_b32 v%d, 9, v%d" % (t0, i15))
        e("v_add_u32 v%d, v%d, v%d" % (t0, t0, t1)); e("v_add_u32 v%d, %d, v%d" % (vQr[0], R, t0))
        for j in range(1, 4): e("v_xor_b32 v%d, %d, v%d" % (vQr[j], 64 * j, vQr[0]))
        e("s_lshl_b32 s6, s%d, 1" % s_w)
        e("v_lshrrev_b32 v%d, 1, v%d" % (t0, l4)); e("v_add_u32 v%d, s6, v%d" % (t0, t0)); e("v_lshrrev_b32 v%d, 1, v%d" % (t1, i15))
        e("v_xor_b32 v%d, v%d, v%d" % (t0, t0, t1)); e("v_lshlrev_b32 v%d, 4, v%d" % (t0, t0))
        e("v_lshlrev_b32 v%d, 7, v%d" % (t1, i15)); e("v_add_u32 v%d, v%d, v%d" % (t0, t0, t1))
        e("v_and_b32 v%d, 1, v%d" % (t1, l4)); e("v_lshlrev_b32 v%d, 3, v%d" % (t1, t1)); e("v_add_u32 v%d, v%d, v%d" % (t0, t0, t1))
        e("v_add_u32 v%d, %d, v%d" % (vPw, R, t0))
        e("s_lshl_b32 s6, s%d, 3" % s_w)
        e("v_xor_b32 v%d, s6, v%d" % (t0, i15)); e("v_lshlrev_b32 v%d, 4, v%d" % (t0, t0))
        e("v_and_b32 v%d, 31, v0" % t1); e("v_lshlrev_b32 v%d, 9, v%d" % (t1, t1)); e("v_add_u32 v%d, v%d, v%d" % (t0, t0, t1))
        e("v_lshrrev_b32 v%d, 5, v0" % t1); e("v_lshlrev_b32 v%d, 3, v%d" % (t1, t1)); e("v_add_u32 v%d, v%d, v%d" % (t0, t0, t1))
        e("v_add_u32 v%d, %d, v%d" % (vQw, R, t0))
        e("v_lshlrev_b32 v%d, 3, v%d" % (t0, l4)); e("v_lshrrev_b32 v%d, 2, v%d" % (t1, i15)); e("v_add_u32 v%d, v%d, v%d" % (t0, t0, t1)); e("v_lshlrev_b32 v%d, 7, v%d" % (t0, t0))
        e("s_lshl_b32 s6, s%d, 1" % s_w)
        e("v_and_b32 v%d, 3, v%d" % (t1, i15)); e("v_lshrrev_b32 v%d, 1, v%d" % (t1, t1)); e("v_add_u32 v%d, s6, v%d" % (t1, t1))
        e("v_lshrrev_b32 v%d, 3, v%d" % (t4, i15)); e("v_and_b32 v%d, 1, v%d" % (t3, l4)); e("v_lshlrev_b32 v%d, 1, v%d" % (t3, t3)); e("v_or_b32 v%d, v%d, v%d" % (t4, t4, t3))
        e("v_lshlrev_b32 v%d, 1, v%d" % (t4, t4)); e("v_xor_b32 v%d, v%d, v%d" % (t1, t1, t4)); e("v_lshlrev_b32 v%d, 4, v%d" % (t1, t1)); e("v_add_u32 v%d, v%d, v%d" % (t0, t0, t1))
        e("v_and_b32 v%d, 1, v%d" % (t1, i15)); e("v_lshlrev_b32 v%d, 3, v%d" % (t1, t1)); e("v_add_u32 v%d, v%d, v%d" % (vWor, t0, t1))
        e("v_lshlrev_b32 v%d, 4, v%d" % (t0, i15)); e("v_add_u32 v%d, %d, v%d" % (vStR, ST, t0))
        e("s_lshl_b32 s6, s%d, 2" % s_w); e("v_add_u32 v%d, s6, v%d" % (vStW, vStR))
        e("v_lshlrev_b32 v%d, 4, v0" % vStO)

        def qacc(dt, qt): return vS + (dt * 3 + qt) * 16
        FA = lambda buf, dt: buf * 20 + dt * 4
        FB = lambda buf, qt: buf * 20 + 8 + qt * 4
        def q_reads(n):
            buf = n & 3; sl = (n % 6) * 2048; xs = ((n >> 2) % 3) * 12288
            rd = []
            for dt in range(2):
                va = vA0 if dt == 0 else vA1
                for jj in range(2):
                    rd.append("ds_read_b64_tr_b16 %s, v%d offset:%d" % (ar(FA(buf, dt) + 2 * jj, 2), va, sl + jj * 512))
            for qt in range(3):
                rd.append("ds_read_b128 %s, v%d offset:%d" % (ar(FB(buf, qt)), vXr[n & 3], xs + qt * 4096))
            return [rd[0], rd[1], rd[4], rd[2], rd[3], rd[5], rd[6]]
        def q_mfmas(n):
            buf = n & 3
            return ["v_mfma_f32_32x32x16_bf16 %s, %s, %s, %s" % (vr(qacc(dt, qt), 16), ar(FA(buf, dt)), ar(FB(buf, qt)), "0" if n == 0 else vr(qacc(dt, qt), 16))
                    for qt in range(3) for dt in range(2)]
        def KFr(i, s): return ar(192 + (i & 1) * 32 + s * 4)
        vKa = [vT[8], vT[9], vT[10], vT[11]]
        def k_addr(i):
            if not cfg.krow: return []
            d = self.kv_slot(i) - R
            return ["s_add_u32 s4, s%d, %d" % (s_kvb, d & 0xffffffff)] + ["v_add_u32 v%d, s4, v%d" % (vKa[j], vQr[j]) for j in range(4)]
        def k_read(i, s):
            if cfg.krow:
                return "ds_read_b128 %s, v%d offset:%d" % (KFr(i, s), vKa[s & 3], (s >> 2) * 256)
            slot = self.kv_slot(i)
            base = (vKr1 if s & 1 else vKr0)
            off = slot + (s >> 1) * 2048
            if off >= 65536:
                base = (vT[11] if s & 1 else vT[10]); off -= 65536
            return "ds_read_b128 %s, v%d offset:%d" % (KFr(i, s), base, off)
        self.emit(wdma(2)); self.emit(wdma(3)); self.emit(xdma(1)); self.emit(wdma(4)); self.emit(wdma(5))
        p.wait_vm("X0"); p.wait_vm("W1")
        e("s_barrier")
        self.emit(self.stamp())
        self.emit(q_reads(0)); self.emit(q_reads(1))
        kb01 = (self.kv_block(0) if not cfg.b0_first else []) + self.kv_block(1)
        k0 = cfg.kstart
        for n in range(28):
            pre = []
            rd = []
            if n + 2 < 28:
                p.wait_vm("W%d" % (n + 2))
                if (n + 2) % 4 == 0:
                    p.wait_vm("X%d" % ((n + 2) >> 2))
                    e("s_waitcnt lgkmcnt(0)")
                    e("s_barrier")
                rd = q_reads(n + 2)
            dm = []
            if n + 6 < 28 and not cfg.exp_nowx: dm += wdma(n + 6)
            if n == 1 and not cfg.exp_nowx: dm += xdma(2)
            if (n + 2) % 4 == 0 and ((n + 2) >> 2) + 2 <= 6 and not cfg.exp_nowx: dm += xdma(((n + 2) >> 2) + 2)
            if k0 <= n < k0 + 6: dm += kb01[(len(kb01) * (n - k0)) // 6:(len(kb01) * (n - k0 + 1)) // 6]
            mf = q_mfmas(n)
            seq = []
            nr = len(rd)
            rpos = [min(3, (4 * k) // max(nr, 1)) for k in range(nr)]
            dpos = [2 + (4 * k) // max(len(dm), 1) for k in range(len(dm))]
            for i, m in enumerate(mf):
                seq.append(m)
                seq += [rd[k] for k in range(nr) if rpos[k] == i]
                seq += [dm[k] for k in range(len(dm)) if min(dpos[k], 5) == i]
            self.emit(seq)
        if cfg.code_pf >= 2: self.code_prefetch(vT[0], vT[2])
        self.emit(self.stamp())
        e("s_waitcnt lgkmcnt(0)")
        e("s_barrier")
        blk4 = self.kv_block(2)
        def exch_write(src_of):
            seq = []
            for dt in range(2):
                for rg in range(4):
                    va = vT[12 + ((dt * 4 + rg) & 1)]
                    seq.append("v_xor_b32 v%d, %d, v%d" % (va, (4 * dt + rg) * 16, vQw))
                    for qt in range(3):
                        b = src_of(dt, qt) + rg * 4
                        ta = vT[14 + 2 * qt]
                        seq.append(["v_cvt_pk_bf16_f32 v%d, v%d, v%d" % (ta, b, b + 1), "v_cvt_pk_bf16_f32 v%d, v%d, v%d" % (ta + 1, b + 2, b + 3),
                                    "ds_write_b64 v%d, %s offset:%d" % (va, vr(ta, 2), qt * 16384)])
            return seq
        self.emit(weave(exch_write(qacc), blk4))
        if not cfg.krow:
            e("v_add_u32 v%d, 0x10000, v%d" % (vT[10], vKr0)); e("v_add_u32 v%d, 0x10000, v%d" % (vT[11], vKr1))
        e("s_waitcnt lgkmcnt(0)")
        e("s_barrier")
        self.emit(self.stamp())
        QF = lambda t, s: (s * 6 + t) * 4
        def q_read(t, s):
            return "ds_read_b128 %s, v%d offset:%d" % (ar(QF(t, s)), vQr[s & 3], t * 8192 + (s >> 2) * 256)
        def qk_mfma(i, t, s):
            c = "0" if s == 0 else vr(S(i, t))
            return "v_mfma_f32_16x16x32_bf16 %s, %s, %s, %s" % (vr(S(i, t)), KFr(i, s), ar(QF(t, s)), c)
        def max_ops(i):
            r = []
            for t in range(6):
                b = S(i, t)
                if i == 0:
                    r.append("v_max3_f32 v%d, v%d, v%d, v%d" % (vM[t], b, b + 1, b + 2))
                    r.append("v_max_f32 v%d, v%d, v%d" % (vM[t], vM[t], b + 3))
                else:
                    r.append("v_max3_f32 v%d, v%d, v%d, v%d" % (vM[t], vM[t], b, b + 1))
                    r.append("v_max3_f32 v%d, v%d, v%d, v%d" % (vM[t], vM[t], b + 2, b + 3))
            return r
        for j in range(1, 4): e("v_add_u32 v%d, %d, v%d" % (vVD[j], j * 3072, vV))
        for i in range(8):
            self.emit(k_addr(i))
            if cfg.kbar and i >= 1: e("s_barrier")
            p.wait_vm("B%d" % i)
            rd = [k_read(i, s) for s in range(8)]
            dm = self.kv_block(i + 2) if i >= 1 else []
            mx = max_ops(i - 1) if i >= 1 else []
            if i == 0:
                self.emit([rd[0]] + [q_read(t, 0) for t in range(6)])
                for s in range(8):
                    nxq = ([rd[s + 1]] + [q_read(t, s + 1) for t in range(6)]) if s < 7 else []
                    self.emit(weave([qk_mfma(0, t, s) for t in range(6)], nxq))
            else:
                mf = [qk_mfma(i, t, s) for s in range(8) for t in range(6)]
                self.emit(rd)
                self.emit(weave(mf, merge(dm, mx), 2, 47))
            if cfg.fine and i < 7: self.emit(self.stamp())
        if cfg.code_pf >= 2: self.code_prefetch(vT[0], vT[2])
        self.emit(self.stamp())
        e("v_add_u32 v%d, 0x10000, v%d" % (vA0, vVr0)); e("v_add_u32 v%d, 0x10000, v%d" % (vA1, vVr1))
        self.emit(max_ops(7))
        seq = []
        for t in range(6):
            a = vT[0 + (t & 1)]
            seq += ["v_mov_b32 v%d, v%d" % (a, vM[t]), "v_permlane32_swap_b32 v%d, v%d" % (a, vM[t]), "v_max_f32 v%d, v%d, v%d" % (vM[t], vM[t], a),
                    "v_mov_b32 v%d, v%d" % (a, vM[t]), "v_permlane16_swap_b32 v%d, v%d" % (a, vM[t]), "v_max_f32 v%d, v%d, v%d" % (vM[t], vM[t], a),
                    "ds_write_b32 v%d, v%d offset:%d" % (vStW, vM[t], t * 256)]
        chains = [seq[7 * t:7 * t + 7] for t in range(6)]
        chains = []
        for t in range(6):
            a = vT[t]
            chains.append(["v_mov_b32 v%d, v%d" % (a, vM[t]), "v_permlane32_swap_b32 v%d, v%d" % (a, vM[t]), "v_max_f32 v%d, v%d, v%d" % (vM[t], vM[t], a),
                           "v_mov_b32 v%d, v%d" % (a, vM[t]), "v_permlane16_swap_b32 v%d, v%d" % (a, vM[t]), "v_max_f32 v%d, v%d, v%d" % (vM[t], vM[t], a),
                           "ds_write_b32 v%d, v%d offset:%d" % (vStW, vM[t], t * 256)])
        for k in range(7):
            for t in range(6): e(chains[t][k])
        e("s_waitcnt lgkmcnt(0)")
        e("s_barrier")
        for t in range(5): e("ds_read_b128 %s, v%d offset:%d" % (vr(44 + 4 * t, 4), vStR, t * 256))
        for t in range(6):
            b = 44 + 4 * (t % 5)
            if t == 5: e("ds_read_b128 %s, v%d offset:%d" % (vr(b, 4), vStR, t * 256))
            e("v_max3_f32 v%d, v%d, v%d, v%d" % (vM[t], b, b + 1, b + 2)); e("v_max_f32 v%d, v%d, v%d" % (vM[t], vM[t], b + 3))
        for t in range(6): e("v_mul_f32 v%d, s%d, v%d" % (vM[t], s_c, vM[t]))
        for j in range(4): e("v_add_u32 v%d, %d, v%d" % (vXr[j], (R - XB) & 0xffffffff, vXr[j]))
        e("s_mov_b32 s%d, 0x3f803f80" % s_ones)
        for t in range(6): e("v_mov_b32 v%d, 0" % vL[t])
        def exp_ops(i):
            us = []
            for t in range(6):
                b = S(i, t)
                tm = [vT[0], vT[1], vT[2], vT[3]] if t % 2 == 0 else [vT[4], vT[5], vT[6], vT[7]]
                pk = vT[8 + 2 * (t % 2)] if False else (vT[12] + 2 * (t % 2))
                for k in range(4): us.append("v_fma_f32 v%d, v%d, s%d, -v%d" % (tm[k], b + k, s_c, vM[t]))
                for k in range(4): us.append("v_exp_f32 v%d, v%d" % (tm[k], tm[k]))
                us.append("v_cvt_pk_bf16_f32 v%d, v%d, v%d" % (pk, tm[0], tm[1]))
                us.append("v_cvt_pk_bf16_f32 v%d, v%d, v%d" % (pk + 1, tm[2], tm[3]))
                us.append("v_dot2c_f32_bf16 v%d, s%d, v%d" % (vL[t], s_ones, pk))
                us.append("v_dot2c_f32_bf16 v%d, s%d, v%d" % (vL[t], s_ones, pk + 1))
                us.append("ds_write_b64 v%d, %s offset:%d" % (vPw, vr(pk, 2), (i & 1) * 12288 + t * 2048))
            return us
        self.emit(weave(exp_ops(0), self.kv_block(10)))
        self.emit(self.stamp())
        OAa = lambda dt, qt: (dt * 3 + qt) * 16
        OAv = lambda dt, qt: vS + (dt * 3 + qt) * 16
        VF = lambda buf, dt: 96 + buf * 20 + dt * 4
        PF = lambda buf, qt: 96 + buf * 20 + 8 + qt * 4
        def v_reads(i, u, buf):
            slot = self.kv_slot(8 + i)
            rd = []
            for dt in range(2):
                for jj in range(2):
                    off = slot + (16 * u + 4 * jj) * 128
                    base = vVr1 if dt else vVr0
                    if off >= 65536:
                        base = vA1 if dt else vA0; off -= 65536
                    rd.append("ds_read_b64_tr_b16 %s, v%d offset:%d" % (ar(VF(buf, dt) + 2 * jj, 2), base, off))
            for qt in range(3):
                rd.append("ds_read_b128 %s, v%d offset:%d" % (ar(PF(buf, qt)), vXr[u], (i & 1) * 12288 + qt * 4096))
            return [rd[0], rd[1], rd[4], rd[2], rd[3], rd[5], rd[6]]
        def pv_mfmas(i, u, buf):
            out = []
            for qt in range(3):
                for dt in range(2):
                    d = ar(OAa(dt, qt), 16) if i < 4 else vr(OAv(dt, qt), 16)
                    c = "0" if (i == 0 and u == 0) else d
                    out.append("v_mfma_f32_32x32x16_bf16 %s, %s, %s, %s" % (d, ar(VF(buf, dt)), ar(PF(buf, qt)), c))
            return out
        wo_slot = lambda k: SLOT[(16 + k) % 3]
        def wo_block(k):
            slot = wo_slot(k)
            tag = "WO%d" % k
            us = [lambda: p.group(tag)]
            for i in range(8):
                m0 = (s_kvb, slot + i * 1024) if i % 4 == 0 else None
                us.append(self.dma(vWoD[i], SRD_O, (sWO[k], None), m0, tag, cfg.aux_wo, imm=(i & 3) * 1024))
            return us
        if cfg.rot:
            e("s_cmp_eq_u32 s%d, 7" % s_b); e("s_cselect_b32 s%d, 0, s%d" % (s_ng, s_b))
        else:
            e("s_mov_b32 s%d, 0" % s_ng)
        e("s_mov_b32 s4, s%d" % s_ng)
        for k in range(7):
            if k: e("s_add_u32 s4, s4, 1"); e("s_cmp_eq_u32 s4, 7"); e("s_cselect_b32 s4, 0, s4")
            e("s_lshl_b32 s%d, s4, 7" % sWO[k])
            e("s_lshl_b32 s6, s4, 2"); e("s_add_u32 s6, s6, s%d" % s_w); e("s_mul_i32 s%d, s6, 3072" % sST[k])
        for i in range(8):
            e("s_waitcnt lgkmcnt(0)")
            e("s_barrier")
            p.wait_vm("B%d" % (8 + i))
            fill = []
            if i + 1 < 8: fill = exp_ops(i + 1)
            dm = []
            if 1 <= i <= 5: dm = self.kv_block(8 + i + 2)
            if i == 6:
                red = []
                chains = []
                for t in range(6):
                    a = vT[14 + (t % 6)] if False else vT[8 + (t & 3)]
                    chains.append(["v_mov_b32 v%d, v%d" % (a, vL[t]), "v_permlane32_swap_b32 v%d, v%d" % (a, vL[t]), "v_add_f32 v%d, v%d, v%d" % (vL[t], vL[t], a),
                                   "v_mov_b32 v%d, v%d" % (a, vL[t]), "v_permlane16_swap_b32 v%d, v%d" % (a, vL[t]), "v_add_f32 v%d, v%d, v%d" % (vL[t], vL[t], a),
                                   "ds_write_b32 v%d, v%d offset:%d" % (vStW, vL[t], 2048 + t * 256)])
                for t in range(6): red += chains[t]
                fill = fill + red
            if i == 1 and cfg.fuse:
                dm = [["v_mov_b32 v%d, 0" % vT[19], lambda: p.group("NC"),
                       Ins("global_load_dword v%d, v%d, s[%d:%d] sc1" % (vNonce, vT[19], s_dbgp, s_dbgp + 1), "NC")]] + dm
            if i == 5:
                pre = []
                a0, a1, a2 = 168, 169, 170
                pre += ["v_lshrrev_b32 v%d, 3, v0" % a0, "s_lshl_b32 s6, s%d, 6" % s_w, "v_add_u32 v%d, s6, v%d" % (a0, a0), "v_mul_u32_u24 v%d, 896, v%d" % (a0, a0)]
                pre += ["v_lshrrev_b32 v%d, 4, v0" % a1, "v_and_b32 v%d, 1, v%d" % (a1, a1), "v_lshlrev_b32 v%d, 1, v%d" % (a1, a1), "v_and_b32 v%d, 7, v0" % a2, "v_xor_b32 v%d, v%d, v%d" % (a1, a1, a2),
                        "v_lshlrev_b32 v%d, 4, v%d" % (a1, a1)]
                pre += ["v_add_u32 v%d, v%d, v%d" % (a2, a0, a1), "v_xor_b32 v%d, 64, v%d" % (a1, a1), "v_add_u32 v%d, v%d, v%d" % (a1, a0, a1)]
                for k in range(8):
                    pre.append("v_add_u32 v%d, %d, v%d" % (vWoD[k], k * 7168 - (k & 3) * 1024, a1 if k & 1 else a2))
                fill = fill + pre
            if i == 6:
                dm = wo_block(0)
            if i == 7:
                for t in range(6):
                    b = 44 + 4 * (t % 4)
                    fill += ["ds_read_b128 %s, v%d offset:%d" % (vr(b, 4), vStR, 2048 + t * 256),
                             ["v_add_f32 v%d, v%d, v%d" % (b, b, b + 1), "v_add_f32 v%d, v%d, v%d" % (b + 2, b + 2, b + 3),
                              "v_add_f32 v%d, v%d, v%d" % (b, b, b + 2), "v_rcp_f32 v%d, v%d" % (vM[t], b)]]
                dm = wo_block(1)
            self.emit(v_reads(i, 0, 0))
            if i == 4:
                mv = ["v_accvgpr_read_b32 v%d, a%d" % (vS + r, r) for r in range(96)]
                self.emit(weave(mv, dm[:5], 0, 96)); dm = dm[5:]
            mf = []
            for u in range(4):
                m = pv_mfmas(i, u, u & 1)
                if u < 3: mf += weave(m, v_reads(i, u + 1, (u + 1) & 1), 0, 4)
                else: mf += m
            self.emit(weave(mf, merge(fill, dm), 1, len(mf) - 1))
            if cfg.fine and i < 7: self.emit(self.stamp())
        self.emit(self.stamp())
        e("s_waitcnt lgkmcnt(0)")
        e("s_barrier")
        self.emit(exch_write(OAv))
        if cfg.fuse: self.get_nonce()
        p.wait_vm("WO0")
        e("s_waitcnt lgkmcnt(0)")
        e("s_barrier")
        self.emit(self.stamp())
        OF = QF
        WF = lambda b, s: 192 + 32 * b + s * 4
        ACC = lambda t: vS + t * 4
        def wo_reads(k):
            slot = wo_slot(k)
            base = vWor
            if slot >= 65536: base = vA0
            off0 = slot if slot < 65536 else slot - 65536
            return ["ds_read_b64_tr_b16 %s, v%d offset:%d" % (ar(WF(k & 1, s) + 2 * jj, 2), base, off0 + (32 * s + 4 * jj) * 128) for s in range(8) for jj in range(2)]
        def epi(t):
            b = ACC(t)
            pk = vT[8] + 4 * ((t >> 1) & 1) + 2 * (t & 1)
            u = ["v_mul_f32 v%d, v%d, v%d" % (b + k, vM[t], b + k) for k in range(4)]
            u += ["v_cvt_pk_bf16_f32 v%d, v%d, v%d" % (pk, b, b + 1), "v_cvt_pk_bf16_f32 v%d, v%d, v%d" % (pk + 1, b + 2, b + 3)]
            return u
        def st(pair, k):
            pk = vT[8] + 4 * (pair & 1)
            return [[lambda: p.group("ST%d_%d" % (k, pair)),
                     Ins("buffer_store_dwordx4 %s, v%d, %s, s%d offen offset:%d %s" % (vr(pk, 4), vStO, srd(SRD_P), sST[k], pair * 1024, cfg.aux_st), "ST%d_%d" % (k, pair))]]
        def tile(k, t):
            return ["v_mfma_f32_16x16x32_bf16 %s, %s, %s, %s" % (vr(ACC(t)), ar(WF(k & 1, s)), ar(OF(t, s)), "0" if s == 0 else vr(ACC(t))) for s in range(8)]
        e("v_add_u32 v%d, 0x10000, v%d" % (vA0, vWor))
        r0 = wo_reads(0)
        self.emit([x for s in range(8) for x in (r0[2 * s:2 * s + 2] + [q_read(0, s)])])
        self.emit(wo_block(2))
        for k in range(7):
            f = [[] for _ in range(6)]
            if k == 0:
                for t in range(5): f[t] += [q_read(t + 1, s) for s in range(8)]
            else:
                f[0] += epi(4); f[1] += epi(5) + st(2, k - 1)
            f[2] += epi(0); f[3] += epi(1) + st(0, k); f[4] += epi(2); f[5] += epi(3) + st(1, k)
            nx = wo_reads(k + 1) if k < 6 else []
            dm = wo_block(k + 3) if k + 3 <= 6 else []
            for t in range(6):
                if t == 2 and k < 6:
                    if k == 5 and cfg.fuse:
                        e("s_waitcnt vmcnt(0)")
                        e("s_barrier")
                        self.emit(self.flag_store(0))
                    else:
                        p.wait_vm("WO%d" % (k + 1))
                        e("s_barrier")
                ex = []
                if t >= 2:
                    ex = nx[4 * (t - 2):4 * (t - 1)]
                    dd = dm[0:1] + dm[1:3] if t == 2 else dm[1 + 2 * (t - 2):3 + 2 * (t - 2)]
                    ex = merge(ex, dd)
                self.emit(weave(tile(k, t), merge(f[t], ex), 0, 8))
        self.emit(epi(4)); self.emit(epi(5)); self.emit(st(2, 6))
        self.emit(self.stamp())
        if cfg.fuse:
            self.reduce_tail()
        elif cfg.stamps or cfg.dbg:
            e("s_waitcnt vmcnt(0)")
            self.emit(self.stamp())
        e("L_k1_end:")
        e("s_endpgm")
        p.resolve()
        return p.text()

    def get_nonce(self):
        cfg, p, e = self.cfg, self.p, self.p.e
        e("v_readfirstlane_b32 s%d, v%d" % (s_nonce, vNonce))
        e("s_cmp_lg_u32 s%d, 0" % s_nonce); e("s_cbranch_scc1 L_havenonce")
        e("L_pollnonce:")
        e("v_mov_b32 v44, 0")
        p.raw(Ins("global_load_dword v%d, v44, s[%d:%d] sc1" % (vNonce, s_dbgp, s_dbgp + 1), "nocount"))
        p.raw(Ins("s_waitcnt vmcnt(0)", "nocredit"))
        e("v_readfirstlane_b32 s%d, v%d" % (s_nonce, vNonce))
        e("s_cmp_eq_u32 s%d, 0" % s_nonce); e("s_cbranch_scc1 L_pollnonce")
        e("L_havenonce:")
        e("s_lshl_b32 s4, s%d, 8" % s_G); e("s_add_u32 s4, s4, %d" % FLAG_OFF)
        e("s_add_u32 s68, s58, s4"); e("s_addc_u32 s69, s59, 0")

    def flag_store(self, which):
        lab = "L_nofl%d" % which
        return ["s_cmp_lg_u32 s%d, 0" % s_w, "s_cbranch_scc1 %s" % lab,
                "v_mov_b32 v42, s%d" % s_nonce, "s_lshl_b32 s4, s%d, 2" % s_h, "s_add_u32 s4, s4, %d" % (128 * which), "v_mov_b32 v43, s4",
                "s_mov_b64 exec, 1",
                Ins("global_store_dword v43, v42, s[68:69] sc1", "nocount"),
                "s_mov_b64 exec, -1", "s_nop 4", lab + ":"]

    def poll(self, which):
        e, p = self.p.e, self.p
        e("s_mov_b64 exec, 0xffff")
        e("v_lshlrev_b32 v45, 2, v0")
        e("L_poll%d:" % which)
        p.raw(Ins("global_load_dword v46, v45, s[68:69] offset:%d sc1" % (128 * which), "nocount"))
        p.raw(Ins("s_waitcnt vmcnt(0)", "nocredit"))
        e("v_cmp_ne_u32 vcc, s%d, v46" % s_nonce)
        e("s_nop 4")
        e("s_cbranch_vccz L_polldone%d" % which)
        e("s_sleep 1")
        e("s_branch L_poll%d" % which)
        e("L_polldone%d:" % which)
        e("s_mov_b64 exec, -1")

    def unit(self, su, tagname):
        cfg, p, e = self.cfg, self.p, self.p.e
        SG = 64
        e("s_mul_hi_u32 s5, s%d, %d" % (su, (1 << 32) // 12 + 1)); e("s_mul_i32 s6, s5, 12"); e("s_sub_u32 s6, s%d, s6" % su)
        e("s_add_u32 s5, s5, s%d" % s_ng); e("s_cmp_ge_u32 s5, 7"); e("s_cselect_b32 s7, 7, 0"); e("s_sub_u32 s5, s5, s7")
        e("s_mul_i32 s72, s5, 12"); e("s_add_u32 s72, s72, s6"); e("s_lshl_b32 s72, s72, 10")
        e("s_mul_hi_u32 s7, s6, %d" % ((1 << 32) // 3 + 1)); e("s_mul_i32 s76, s7, 3"); e("s_sub_u32 s76, s6, s76")
        e("s_lshl_b32 s5, s5, 7"); e("s_lshl_b32 s7, s7, 5"); e("s_mul_i32 s76, s76, %d" % (32 * 1792))
        e("s_add_u32 s5, s5, s7"); e("s_add_u32 s5, s5, s76"); e("s_add_u32 s73, s5, s70")
        e("s_cmp_ge_u32 s%d, 84" % su)
        e("s_cselect_b32 s72, 0x40000000, s72"); e("s_cselect_b32 s73, 0x40000000, s73")
        for h in range(16):
            e("s_add_u32 s5, s72, %d" % (h * PART))
            p.raw(Ins("buffer_load_dwordx4 %s, v%d, %s, s5 offen %s" % (vr(64 + 4 * h, 4), vStO, srd(SG), cfg.aux_rd), tagname))
        acc = list(range(48, 56))
        for a in acc: e("v_mov_b32 v%d, 0" % a)
        for h in range(16):
            b = 64 + 4 * h
            for q in range(4):
                e("v_dot2c_f32_bf16 v%d, s74, v%d" % (acc[2 * q], b + q)); e("v_dot2c_f32_bf16 v%d, s75, v%d" % (acc[2 * q + 1], b + q))
        for q in range(4): e("v_cvt_pk_bf16_f32 v%d, v%d, v%d" % (56 + q, acc[2 * q], acc[2 * q + 1]))
        e("buffer_store_dwordx2 v[56:57], v41, %s, s73 offen" % srd(SRD_OUT))
        e("s_add_u32 s5, s73, %d" % (16 * 1792))
        e("buffer_store_dwordx2 v[58:59], v41, %s, s5 offen" % srd(SRD_OUT))

    def reduce_tail(self):
        cfg, p, e = self.cfg, self.p, self.p.e
        SG = 64
        e("s_mul_i32 s4, s%d, %d" % (s_G, PART * 16))
        e("s_add_u32 s%d, s58, s4" % SG); e("s_addc_u32 s%d, s59, 0" % (SG + 1)); e("s_mov_b32 s%d, %d" % (SG + 2, PART * 16)); e("s_mov_b32 s%d, 0x20000" % (SG + 3))
        e("s_mul_i32 s70, s%d, %d" % (s_b, 96 * 1792)); e("s_mul_i32 s4, s%d, 896" % s_br); e("s_add_u32 s70, s70, s4")
        e("v_and_b32 v41, 15, v0"); e("v_mul_u32_u24 v41, 1792, v41"); e("v_lshrrev_b32 v42, 4, v0"); e("v_lshlrev_b32 v42, 3, v42"); e("v_add_u32 v41, v41, v42")
        e("s_mov_b32 s74, 0x3f80"); e("s_mov_b32 s75, 0x3f800000")
        e("s_lshl_b32 s61, s%d, 2" % s_h); e("s_add_u32 s61, s61, s%d" % s_w)
        e("s_cmp_ge_u32 s61, 60"); e("s_cselect_b32 s61, 127, s61")
        e("s_lshl_b32 s62, s%d, 4" % s_w); e("s_add_u32 s62, s62, s%d" % s_h); e("s_add_u32 s62, s62, 60")
        e("s_cmp_eq_u32 s%d, 3" % s_w); e("s_cbranch_scc0 L_np1")
        self.poll(0)
        e("L_np1:")
        e("s_waitcnt vmcnt(0)")
        e("s_barrier")
        self.emit(self.stamp())
        self.emit(self.flag_store(1))
        self.unit(61, "RD1")
        e("s_cmp_eq_u32 s%d, 3" % s_w); e("s_cbranch_scc0 L_np2")
        self.poll(1)
        e("L_np2:")
        e("s_barrier")
        self.emit(self.stamp())
        e("s_cmp_ge_u32 s%d, 2" % s_w); e("s_cbranch_scc1 L_fin")
        self.unit(62, "RD2")
        e("L_fin:")
        if cfg.stamps or cfg.dbg:
            e("s_waitcnt vmcnt(0)")
            self.emit(self.stamp())

def desc(name, vg, acc, sg=102):
    return """.amdhsa_kernel %s
  .amdhsa_next_free_vgpr %d
  .amdhsa_next_free_sgpr %d
  .amdhsa_accum_offset %d
  .amdhsa_group_segment_fixed_size 0
  .amdhsa_kernarg_size 104
  .amdhsa_user_sgpr_count 2
  .amdhsa_user_sgpr_kernarg_segment_ptr 1
  .amdhsa_system_sgpr_workgroup_id_x 1
  .amdhsa_float_denorm_mode_32 3
.end_amdhsa_kernel
""" % (name, vg, sg, acc)

REF = "concat_heads__gqa_block_cached__mha_block_cached__near_ridge.s.ref"
HEAD = open(REF).read().split("; Override launch geometry")[0] if os.path.exists(REF) else ""

def generate(cfg):
    k1 = K1(cfg).build()
    out = HEAD
    out += "; @launch grid=(256,1,1) block=(256,1,1) lds=163840\n"
    out += '.amdgcn_target "amdgcn-amd-amdhsa--gfx950"\n.text\n'
    out += ".globl %s\n.p2align 8\n.type %s,@function\n%s:\n%s\n" % (KNAME, KNAME, KNAME, k1)
    out += '.section .rodata,"a"\n.p2align 6\n' + desc(KNAME, 512, 256)
    return out

if __name__ == "__main__":
    kw = {}
    for a in sys.argv[2:]:
        k, v = a.split("=", 1)
        kw[k] = eval(v)
    txt = generate(Cfg(**kw))
    open(sys.argv[1], "w").write(txt)
    print("wrote", sys.argv[1], len(txt), "bytes,", txt.count("\n"), "lines")
```

```python
import sys, os
from asmgen import Prog, Ins

KNAME = "concat_heads__gqa_block_cached__mha_block_cached__near_ridge_kernel"

class Cfg:
    aux_kv = "nt"
    aux_w = ""
    aux_x = ""
    aux_wo = ""
    aux_st = "sc1"
    aux_rd = "sc1"
    stamps = False
    dbg = False
    dbg_wg = 128
    rot = True
    fuse = True
    fine = False
    early_dma = True
    krow = True
    code_pf = False
    code_bytes = 32768
    f1_drain = True
    exp_kpre = 4
    kstart = 22
    kd3 = False
    kbar = False
    rot_hh = 3
    b0_first = False
    tlbwarm = True
    exp_nowx = False
    def __init__(self, **kw):
        for k, v in kw.items():
            assert hasattr(Cfg, k), k
            setattr(self, k, v)

SLOT = [0, 32768, 65536]
WB = 65536
XB = 114688
R = 98304
ST = 159744
PART = 86016
TS_OFF = 64 << 20
FLAG_OFF = 32 << 20

vK0, vK1, vV, vW, vX = 1, 2, 3, 4, 5
vVD = [3, 41, 42, 43]
vKr0, vKr1 = 6, 7
vVr0, vVr1 = 8, 9
vXr = [10, 11, 12, 13]
vQr = [14, 15, 16, 17]
vPw = 18
vQw = 19
vWor = 20
vStW, vStR = 21, 22
vStO = 23
vM = [24, 25, 26, 27, 28, 29]
vL = [30, 31, 32, 33, 34, 35]
vWoD = list(range(160, 168))
vA0, vA1 = 38, 39
vNonce = 40
vKT = 6
vT = list(range(44, 64))
vS = 64

def S(i, t): return vS + (i * 6 + t) * 4

s_w = 3
sT0, sSoff, sT1, sT2 = 4, 5, 6, 7
SRD_X, SRD_W, SRD_K, SRD_V, SRD_O, SRD_P = 8, 12, 16, 20, 24, 28
s_c = 32
s_kvb = 33
s_wrb = 34
s_w1k = 35
sCW = list(range(36, 43))
sCX = list(range(44, 51))
sWO = list(range(36, 43))
sST = list(range(44, 51))
s_ws = 58
s_cnt = 60
s_ng, s_ng2, s_slotR, s_slotN, s_slotD, s_stoff, s_stprev, s_wooff = 71, 72, 73, 74, 75, 76, 77, 78
s_b, s_hh, s_h, s_br = 79, 80, 81, 82
s_G = 83
s_tsoff = 88
s_nonce = 94
s_ones = 95
SRD_G, SRD_OUT = 64, 68
SRD_OUT = 52
s_dbgp = 96
s_outp = 98

def srd(n): return "s[%d:%d]" % (n, n + 3)
def vr(n, c=4): return "v[%d:%d]" % (n, n + c - 1)
def ar(n, c=4): return "a[%d:%d]" % (n, n + c - 1)

def weave(main, fill, lo=0, hi=None):
    if hi is None: hi = len(main)
    out = []
    n = hi - lo
    k = 0
    for i, m in enumerate(main):
        out.append(m)
        if lo <= i < hi:
            tgt = min(len(fill), -(-(len(fill) * (i - lo + 1)) // n))
            while k < tgt:
                out.append(fill[k]); k += 1
    while k < len(fill):
        out.append(fill[k]); k += 1
    return out

def merge(a, b):
    if not a: return list(b)
    if not b: return list(a)
    return weave(a, b) if len(a) >= len(b) else weave(b, a)

class K1:
    def __init__(self, cfg):
        self.cfg = cfg
        self.p = Prog()
        self.nstamp = 0
        self.vTs = 62
        self.npf = 0

    def emit(self, seq):
        for u in seq:
            if isinstance(u, (list, tuple)): self.emit(u)
            elif callable(u): u()
            elif isinstance(u, Ins): self.p.raw(u)
            else: self.p.e(u)

    def dma(self, vaddr, srdn, soff, m0, tag, aux, imm=0):
        u = []
        if m0 is not None:
            if isinstance(m0, int): u.append("s_mov_b32 m0, %d" % m0)
            else: u.append("s_add_u32 m0, s%d, %d" % m0 if m0[1] else "s_mov_b32 m0, s%d" % m0[0])
        if isinstance(soff, int):
            u.append("s_mov_b32 s%d, %d" % (sSoff, soff)); sreg = sSoff
        elif soff[1] is None:
            sreg = soff[0]
            if m0 is not None: u.append("s_nop 0")
        else:
            u.append("s_add_u32 s%d, s%d, %d" % (sSoff, soff[0], soff[1])); sreg = sSoff
        u.append(Ins("buffer_load_dwordx4 v%d, %s, s%d offen %s%s lds" % (vaddr, srd(srdn), sreg, ("offset:%d " % imm) if imm else "", aux), tag))
        return u

    def stamp(self):
        cfg = self.cfg
        if cfg.dbg:
            i = self.nstamp; self.nstamp += 1
            lab = "L_st%d" % i
            return ["s_cmp_lg_u32 s89, 0", "s_cbranch_scc1 %s" % lab,
                    Ins("s_memrealtime s[86:87]", "nocount"), Ins("s_waitcnt lgkmcnt(0)", "nocredit"),
                    "v_mov_b32 v%d, s86" % self.vTs, "v_mov_b32 v%d, %d" % (self.vTs + 1, 4 * (i + 1)),
                    Ins("global_store_dword v%d, v%d, s[100:101]" % (self.vTs + 1, self.vTs), 'nocount'), lab + ":"]
        if not cfg.stamps: return []
        i = self.nstamp; self.nstamp += 1
        return ["s_memrealtime s[86:87]", "s_memtime s[92:93]", "s_waitcnt lgkmcnt(0)",
                "v_mov_b32 v%d, s86" % self.vTs, "v_mov_b32 v%d, s%d" % (self.vTs + 1, s_tsoff),
                Ins("global_store_dword v%d, v%d, s[84:85] offset:%d" % (self.vTs + 1, self.vTs, 4 * i), 'nocount'),
                "v_mov_b32 v%d, s92" % self.vTs,
                Ins("global_store_dword v%d, v%d, s[84:85] offset:%d" % (self.vTs + 1, self.vTs, 128 + 4 * i), 'nocount')]

    def code_prefetch(self, t0, t2):
        e, p = self.p.e, self.p
        i = self.npf; self.npf += 1
        e("s_cmp_lg_u32 s%d, 0" % s_w); e("s_cbranch_scc1 L_nopf%d" % i)
        e("s_getpc_b64 s[90:91]")
        e("L_pc%d:" % i)
        e("s_sub_u32 s90, s90, L_pc%d-%s" % (i, KNAME)); e("s_subb_u32 s91, s91, 0")
        e("s_lshr_b32 s4, s2, 3"); e("s_lshl_b32 s4, s4, 11")
        e("v_lshlrev_b32 v%d, 7, v0" % t0); e("v_add_u32 v%d, s4, v%d" % (t0, t0))
        e("v_mov_b32 v%d, s91" % (t2 + 1))
        e("v_add_co_u32 v%d, vcc, s90, v%d" % (t2, t0)); e("v_addc_co_u32 v%d, vcc, 0, v%d, vcc" % (t2 + 1, t2 + 1))
        e("v_cmp_gt_u32 vcc, L_k1_end-%s, v%d" % (KNAME, t0))
        e("s_and_b64 exec, vcc, 0xffff")
        e("s_cbranch_execz L_nopfx%d" % i)
        p.raw(Ins("global_load_dword v%d, v[%d:%d], off" % (vNonce, t2, t2 + 1), "nocount"))
        e("L_nopfx%d:" % i)
        e("s_mov_b64 exec, -1")
        e("s_nop 4")
        e("L_nopf%d:" % i)

    @staticmethod
    def kv_slot(n):
        return SLOT[n % 3]
    def kv_block(self, n):
        cfg = self.cfg
        slot = self.kv_slot(n)
        tag = "B%d" % n
        us = [lambda: self.p.group(tag)]
        if n < 8 and cfg.krow:
            for m in range(8):
                tmp = vK1 if m & 1 else vKT
                u = ["v_xor_b32 v%d, %d, v%d" % (tmp, 32 * m, vK0)]
                if m % 4 == 0:
                    u += self.dma(tmp, SRD_K, n * 32768 + m * 1024, (s_kvb, slot + m * 1024), tag, cfg.aux_kv)
                else:
                    u += self.dma(tmp, SRD_K, (sSoff, None), None, tag, cfg.aux_kv, imm=(m % 4) * 1024)
                us.append(u)
        elif n < 8:
            for m in range(4):
                for kh in range(2):
                    us.append(self.dma(vK1 if kh else vK0, SRD_K, n * 32768 + m * 128, (s_kvb, slot + (m * 2 + kh) * 1024), tag, cfg.aux_kv))
        else:
            for m in range(8):
                if m % 4 == 0:
                    us.append(self.dma(vVD[0], SRD_V, (n - 8) * 32768 + m * 4096, (s_kvb, slot + m * 1024), tag, cfg.aux_kv))
                else:
                    us.append(self.dma(vVD[m % 4], SRD_V, (sSoff, None), None, tag, cfg.aux_kv, imm=(m % 4) * 1024))
        return us

    def build(self):
        cfg, p, e = self.cfg, self.p, self.p.e
        e("s_cmp_ge_u32 s2, 256")
        e("s_cbranch_scc1 L_k1_end")
        e("s_load_dwordx8 s[36:43], s[0:1], 0")
        e("s_load_dwordx2 s[44:45], s[0:1], 32")
        e("s_load_dwordx8 s[48:55], s[0:1], 40")
        e("s_load_dwordx2 s[56:57], s[0:1], 72")
        e("s_load_dwordx2 s[58:59], s[0:1], 96")
        e("s_load_dwordx4 s[96:99], s[0:1], 80")
        e("v_lshrrev_b32 v60, 6, v0")
        e("v_and_b32 v0, 63, v0")
        e("v_readfirstlane_b32 s%d, v60" % s_w)
        e("s_and_b32 s4, s2, 7")
        e("s_lshr_b32 s6, s2, 3")
        e("s_lshr_b32 s%d, s6, 4" % s_br)
        e("s_lshr_b32 s%d, s6, 1" % s_b)
        e("s_and_b32 s%d, s%d, 7" % (s_b, s_b))
        e("s_and_b32 s%d, s6, 1" % s_hh)
        e("s_lshl_b32 s%d, s4, 1" % s_h)
        e("s_add_u32 s%d, s%d, s%d" % (s_h, s_h, s_hh))
        e("s_lshl_b32 s6, s%d, 3" % s_b); e("s_add_u32 s6, s6, s4")
        e("s_lshl_b32 s7, s%d, 4" % s_b); e("s_add_u32 s7, s7, s%d" % s_h)
        e("s_cmp_eq_u32 s%d, 0" % s_br)
        e("s_cselect_b32 s6, s6, s7")
        e("s_lshl_b32 s61, s6, 18")
        e("s_lshl_b32 s%d, s%d, 13" % (s_kvb, s_w))
        e("s_mul_i32 s%d, s%d, 12288" % (s_wrb, s_w)); e("s_add_u32 s%d, s%d, %d" % (s_wrb, s_wrb, WB))
        e("s_lshl_b32 s%d, s%d, 10" % (s_w1k, s_w))
        e("s_mov_b32 s%d, 0x3db8aa3b" % s_c)
        e("s_lshl_b32 s%d, s%d, 3" % (s_G, s_br)); e("s_add_u32 s%d, s%d, s%d" % (s_G, s_G, s_b))
        if cfg.rot:
            e("s_mul_i32 s62, s%d, %d" % (s_hh, cfg.rot_hh)); e("s_add_u32 s62, s62, s%d" % s_b)
            e("s_cmp_ge_u32 s62, 7"); e("s_cselect_b32 s6, 7, 0"); e("s_sub_u32 s62, s62, s6")
        else:
            e("s_mov_b32 s62, 0")
        t0, t1, t2, t3, t4 = vT[:5]
        l3, l7, l4, i15 = vT[5:9]
        e("v_lshrrev_b32 v%d, 3, v0" % l3)
        e("v_and_b32 v%d, 7, v0" % l7)
        e("v_lshrrev_b32 v%d, 4, v0" % l4)
        e("v_and_b32 v%d, 15, v0" % i15)
        e("v_and_b32 v%d, 1, v%d" % (t0, l4)); e("v_lshlrev_b32 v%d, 2, v%d" % (t0, t0))
        e("v_xor_b32 v%d, v%d, v%d" % (t0, l7, t0)); e("v_lshlrev_b32 v%d, 4, v%d" % (t0, t0))
        e("s_lshl_b32 s6, s%d, 7" % s_w)
        e("v_add_u32 v%d, s6, v%d" % (t0, t0))
        e("v_lshlrev_b32 v%d, 13, v%d" % (t1, l3)); e("v_add_u32 v%d, v%d, v%d" % (vW, t0, t1))
        e("v_lshlrev_b32 v%d, 9, v%d" % (t1, l3)); e("v_add_u32 v%d, v%d, v%d" % (vV, t0, t1))
        e("s_lshl_b32 s6, s%d, 3" % s_w); e("v_add_u32 v%d, s6, v%d" % (t2, l3)); e("v_mul_u32_u24 v%d, 896, v%d" % (t2, t2))
        e("s_and_b32 s7, s%d, 1" % s_w); e("s_lshl_b32 s7, s7, 2")
        e("v_add_u32 v%d, s7, v%d" % (t3, l4)); e("v_xor_b32 v%d, v%d, v%d" % (t3, l7, t3)); e("v_lshlrev_b32 v%d, 4, v%d" % (t3, t3))
        e("v_add_u32 v%d, v%d, v%d" % (vX, t2, t3))
        e("s_waitcnt lgkmcnt(0)")
        if cfg.stamps:
            e("s_mov_b32 s84, s58"); e("s_mov_b32 s85, s59")
            e("s_lshl_b32 s%d, s2, 2" % s_tsoff); e("s_add_u32 s%d, s%d, s%d" % (s_tsoff, s_tsoff, s_w))
            e("s_lshl_b32 s%d, s%d, 8" % (s_tsoff, s_tsoff)); e("s_add_u32 s%d, s%d, %d" % (s_tsoff, s_tsoff, TS_OFF))
        if cfg.dbg:
            e("s_sub_u32 s89, s2, %d" % cfg.dbg_wg); e("s_or_b32 s89, s89, s%d" % s_w)
            e("s_mov_b32 s100, s98"); e("s_mov_b32 s101, s99")
        self.emit(self.stamp())
        e("s_cmp_eq_u32 s%d, 0" % s_br)
        for (dst, a, b) in ((SRD_X, 36, 48), (SRD_K, 38, 50), (SRD_V, 40, 52), (SRD_W, 42, 54), (SRD_O, 44, 56)):
            e("s_cselect_b32 s%d, s%d, s%d" % (dst, a, b)); e("s_cselect_b32 s%d, s%d, s%d" % (dst + 1, a + 1, b + 1))
        e("s_mul_i32 s4, s%d, %d" % (s_b, PART))
        e("s_add_u32 s%d, s%d, s4" % (SRD_X, SRD_X)); e("s_addc_u32 s%d, s%d, 0" % (SRD_X + 1, SRD_X + 1))
        e("s_mov_b32 s%d, %d" % (SRD_X + 2, PART)); e("s_mov_b32 s%d, 0x20000" % (SRD_X + 3))
        e("s_lshl_b32 s4, s%d, 9" % s_h)
        e("s_add_u32 s%d, s%d, s4" % (SRD_W, SRD_W)); e("s_addc_u32 s%d, s%d, 0" % (SRD_W + 1, SRD_W + 1))
        e("s_sub_u32 s%d, %d, s4" % (SRD_W + 2, 448 * 8192)); e("s_mov_b32 s%d, 0x20000" % (SRD_W + 3))
        for c in range(7):
            if c == 0: e("s_mov_b32 s63, s62")
            else:
                e("s_add_u32 s63, s63, 1"); e("s_cmp_eq_u32 s63, 7"); e("s_cselect_b32 s63, 0, s63")
            e("s_lshl_b32 s%d, s63, 7" % sCX[c]); e("s_lshl_b32 s%d, s63, 19" % sCW[c])
            if c == 0:
                pass
        def xdma(c):
            us = [lambda: p.group("X%d" % c)]
            for i in range(3):
                us.append(self.dma(vX, SRD_X, (sCX[c], i * 32 * 896), (s_w1k, XB + (c % 3) * 12288 + i * 4096), "X%d" % c, cfg.aux_x))
            return us
        def wdma(n):
            us = [lambda: p.group("W%d" % n)]
            for m in range(2):
                us.append(self.dma(vW, SRD_W, (sCW[n >> 2], ((n & 3) * 16 + 8 * m) * 8192), (s_wrb, (n % 6) * 2048 + m * 1024), "W%d" % n, cfg.aux_w))
            return us
        self.emit(xdma(0)); self.emit(wdma(0)); self.emit(wdma(1))
        if cfg.b0_first:
            e("s_add_u32 s%d, s%d, s61" % (SRD_K, SRD_K)); e("s_addc_u32 s%d, s%d, 0" % (SRD_K + 1, SRD_K + 1))
            e("s_mov_b32 s%d, 262144" % (SRD_K + 2)); e("s_mov_b32 s%d, 0x20000" % (SRD_K + 3))
            e("v_lshrrev_b32 v%d, 5, v0" % t0); e("v_and_b32 v%d, 31, v0" % t1); e("v_xor_b32 v%d, v%d, v%d" % (t1, t1, t0))
            e("v_lshlrev_b32 v%d, 4, v%d" % (t1, t1)); e("v_lshlrev_b32 v%d, 9, v%d" % (t0, t0)); e("v_add_u32 v%d, v%d, v%d" % (t0, t0, t1))
            e("v_add_u32 v%d, s%d, v%d" % (vK0, s_kvb, t0))
            self.emit(self.kv_block(0))
        if cfg.code_pf: self.code_prefetch(t0, t2)
        if not cfg.b0_first:
            e("s_add_u32 s%d, s%d, s61" % (SRD_K, SRD_K)); e("s_addc_u32 s%d, s%d, 0" % (SRD_K + 1, SRD_K + 1))
            e("s_mov_b32 s%d, 262144" % (SRD_K + 2)); e("s_mov_b32 s%d, 0x20000" % (SRD_K + 3))
        e("s_add_u32 s%d, s%d, s61" % (SRD_V, SRD_V)); e("s_addc_u32 s%d, s%d, 0" % (SRD_V + 1, SRD_V + 1))
        e("s_mov_b32 s%d, 262144" % (SRD_V + 2)); e("s_mov_b32 s%d, 0x20000" % (SRD_V + 3))
        e("s_mul_i32 s4, s%d, %d" % (s_h, 256 * 896))
        e("s_add_u32 s%d, s%d, s4" % (SRD_O, SRD_O)); e("s_addc_u32 s%d, s%d, 0" % (SRD_O + 1, SRD_O + 1))
        e("s_mov_b32 s%d, %d" % (SRD_O + 2, 256 * 896)); e("s_mov_b32 s%d, 0x20000" % (SRD_O + 3))
        e("s_lshl_b32 s4, s%d, 4" % s_G); e("s_add_u32 s4, s4, s%d" % s_h); e("s_mul_i32 s4, s4, %d" % PART)
        e("s_add_u32 s%d, s58, s4" % SRD_P); e("s_addc_u32 s%d, s59, 0" % (SRD_P + 1))
        e("s_mov_b32 s%d, %d" % (SRD_P + 2, PART)); e("s_mov_b32 s%d, 0x20000" % (SRD_P + 3))
        e("s_mov_b32 s%d, s96" % SRD_OUT); e("s_mov_b32 s%d, s97" % (SRD_OUT + 1))
        e("s_mov_b32 s%d, %d" % (SRD_OUT + 2, 8 * 96 * 1792)); e("s_mov_b32 s%d, 0x20000" % (SRD_OUT + 3))
        e("s_mov_b32 s%d, s98" % s_dbgp); e("s_mov_b32 s%d, s99" % (s_dbgp + 1))
        if cfg.fuse:
            e("s_or_b32 s4, s2, s%d" % s_w); e("s_cmp_lg_u32 s4, 0"); e("s_cbranch_scc1 L_nononce")
            p.raw(Ins("s_memrealtime s[90:91]", "nocount")); p.raw(Ins("s_waitcnt lgkmcnt(0)", "nocredit")); e("s_or_b32 s90, s90, 1")
            e("v_mov_b32 v%d, s90" % t0); e("v_mov_b32 v%d, 0" % t1)
            p.raw(Ins("global_store_dword v%d, v%d, s[%d:%d] sc1" % (t1, t0, s_dbgp, s_dbgp + 1), 'nocount'))
            e("L_nononce:")
        if cfg.krow:
            e("v_lshrrev_b32 v%d, 5, v0" % t0); e("v_and_b32 v%d, 31, v0" % t1); e("v_xor_b32 v%d, v%d, v%d" % (t1, t1, t0))
            e("v_lshlrev_b32 v%d, 4, v%d" % (t1, t1)); e("v_lshlrev_b32 v%d, 9, v%d" % (t0, t0)); e("v_add_u32 v%d, v%d, v%d" % (t0, t0, t1))
            e("v_add_u32 v%d, s%d, v%d" % (vK0, s_kvb, t0))
        else:
            e("s_lshl_b32 s4, s%d, 4" % s_w)
            e("v_add_u32 v%d, s4, v%d" % (t0, l3)); e("v_lshlrev_b32 v%d, 9, v%d" % (t0, t0))
            e("v_xor_b32 v%d, v%d, v%d" % (t1, l7, l4)); e("v_lshlrev_b32 v%d, 4, v%d" % (t1, t1))
            e("v_add_u32 v%d, v%d, v%d" % (vK0, t0, t1))
            e("v_xor_b32 v%d, 64, v%d" % (vK1, vK0)); e("v_add_u32 v%d, 4096, v%d" % (vK1, vK1))
        if not cfg.krow:
            e("v_lshrrev_b32 v%d, 3, v%d" % (t0, i15)); e("v_lshlrev_b32 v%d, 10, v%d" % (t0, t0))
            e("v_and_b32 v%d, 7, v%d" % (t1, i15)); e("v_lshlrev_b32 v%d, 7, v%d" % (t1, t1)); e("v_add_u32 v%d, v%d, v%d" % (t0, t0, t1))
            e("v_lshrrev_b32 v%d, 1, v%d" % (t1, i15)); e("v_xor_b32 v%d, v%d, v%d" % (t1, l4, t1)); e("v_lshlrev_b32 v%d, 4, v%d" % (t1, t1))
            e("v_add_u32 v%d, v%d, v%d" % (t0, t0, t1)); e("v_add_u32 v%d, s%d, v%d" % (vKr0, s_kvb, t0)); e("v_xor_b32 v%d, 64, v%d" % (vKr1, vKr0))
        e("v_lshrrev_b32 v%d, 5, v0" % t0); e("v_lshlrev_b32 v%d, 3, v%d" % (t0, t0)); e("v_lshrrev_b32 v%d, 2, v%d" % (t1, i15))
        e("v_add_u32 v%d, v%d, v%d" % (t0, t0, t1)); e("v_lshlrev_b32 v%d, 7, v%d" % (t0, t0))
        e("v_and_b32 v%d, 1, v%d" % (t1, l4)); e("v_lshlrev_b32 v%d, 1, v%d" % (t1, t1))
        e("v_and_b32 v%d, 3, v%d" % (t4, i15)); e("v_lshrrev_b32 v%d, 1, v%d" % (t4, t4)); e("v_add_u32 v%d, v%d, v%d" % (t1, t1, t4))
        e("v_lshrrev_b32 v%d, 3, v%d" % (t4, i15)); e("v_lshlrev_b32 v%d, 2, v%d" % (t4, t4)); e("v_xor_b32 v%d, v%d, v%d" % (t1, t1, t4))
        e("v_lshlrev_b32 v%d, 4, v%d" % (t1, t1)); e("v_add_u32 v%d, v%d, v%d" % (t0, t0, t1))
        e("v_and_b32 v%d, 1, v%d" % (t1, i15)); e("v_lshlrev_b32 v%d, 3, v%d" % (t1, t1)); e("v_add_u32 v%d, v%d, v%d" % (t0, t0, t1))
        e("v_add_u32 v%d, s%d, v%d" % (vVr0, s_kvb, t0)); e("v_xor_b32 v%d, 64, v%d" % (vVr1, vVr0))
        e("v_add_u32 v%d, s%d, v%d" % (vA0, s_wrb, t0)); e("v_xor_b32 v%d, 64, v%d" % (vA1, vA0))
        e("v_and_b32 v%d, 31, v0" % t0); e("v_lshrrev_b32 v%d, 1, v%d" % (t1, t0)); e("v_and_b32 v%d, 7, v%d" % (t1, t1))
        e("v_lshrrev_b32 v%d, 5, v0" % t4); e("v_xor_b32 v%d, v%d, v%d" % (t1, t1, t4)); e("v_lshlrev_b32 v%d, 4, v%d" % (t1, t1))
        e("v_lshlrev_b32 v%d, 7, v%d" % (t0, t0)); e("v_add_u32 v%d, v%d, v%d" % (t0, t0, t1)); e("v_add_u32 v%d, %d, v%d" % (vXr[0], XB, t0))
        for j in range(1, 4): e("v_xor_b32 v%d, %d, v%d" % (vXr[j], 32 * j, vXr[0]))
        e("v_xor_b32 v%d, v%d, v%d" % (t1, l4, i15)); e("v_lshlrev_b32 v%d, 4, v%d" % (t1, t1)); e("v_lshlrev_b32 v%d, 9, v%d" % (t0, i15))
        e("v_add_u32 v%d, v%d, v%d" % (t0, t0, t1)); e("v_add_u32 v%d, %d, v%d" % (vQr[0], R, t0))
        for j in range(1, 4): e("v_xor_b32 v%d, %d, v%d" % (vQr[j], 64 * j, vQr[0]))
        e("s_lshl_b32 s6, s%d, 1" % s_w)
        e("v_lshrrev_b32 v%d, 1, v%d" % (t0, l4)); e("v_add_u32 v%d, s6, v%d" % (t0, t0)); e("v_lshrrev_b32 v%d, 1, v%d" % (t1, i15))
        e("v_xor_b32 v%d, v%d, v%d" % (t0, t0, t1)); e("v_lshlrev_b32 v%d, 4, v%d" % (t0, t0))
        e("v_lshlrev_b32 v%d, 7, v%d" % (t1, i15)); e("v_add_u32 v%d, v%d, v%d" % (t0, t0, t1))
        e("v_and_b32 v%d, 1, v%d" % (t1, l4)); e("v_lshlrev_b32 v%d, 3, v%d" % (t1, t1)); e("v_add_u32 v%d, v%d, v%d" % (t0, t0, t1))
        e("v_add_u32 v%d, %d, v%d" % (vPw, R, t0))
        e("s_lshl_b32 s6, s%d, 3" % s_w)
        e("v_xor_b32 v%d, s6, v%d" % (t0, i15)); e("v_lshlrev_b32 v%d, 4, v%d" % (t0, t0))
        e("v_and_b32 v%d, 31, v0" % t1); e("v_lshlrev_b32 v%d, 9, v%d" % (t1, t1)); e("v_add_u32 v%d, v%d, v%d" % (t0, t0, t1))
        e("v_lshrrev_b32 v%d, 5, v0" % t1); e("v_lshlrev_b32 v%d, 3, v%d" % (t1, t1)); e("v_add_u32 v%d, v%d, v%d" % (t0, t0, t1))
        e("v_add_u32 v%d, %d, v%d" % (vQw, R, t0))
        e("v_lshlrev_b32 v%d, 3, v%d" % (t0, l4)); e("v_lshrrev_b32 v%d, 2, v%d" % (t1, i15)); e("v_add_u32 v%d, v%d, v%d" % (t0, t0, t1)); e("v_lshlrev_b32 v%d, 7, v%d" % (t0, t0))
        e("s_lshl_b32 s6, s%d, 1" % s_w)
        e("v_and_b32 v%d, 3, v%d" % (t1, i15)); e("v_lshrrev_b32 v%d, 1, v%d" % (t1, t1)); e("v_add_u32 v%d, s6, v%d" % (t1, t1))
        e("v_lshrrev_b32 v%d, 3, v%d" % (t4, i15)); e("v_and_b32 v%d, 1, v%d" % (t3, l4)); e("v_lshlrev_b32 v%d, 1, v%d" % (t3, t3)); e("v_or_b32 v%d, v%d, v%d" % (t4, t4, t3))
        e("v_lshlrev_b32 v%d, 1, v%d" % (t4, t4)); e("v_xor_b32 v%d, v%d, v%d" % (t1, t1, t4)); e("v_lshlrev_b32 v%d, 4, v%d" % (t1, t1)); e("v_add_u32 v%d, v%d, v%d" % (t0, t0, t1))
        e("v_and_b32 v%d, 1, v%d" % (t1, i15)); e("v_lshlrev_b32 v%d, 3, v%d" % (t1, t1)); e("v_add_u32 v%d, v%d, v%d" % (vWor, t0, t1))
        e("v_lshlrev_b32 v%d, 4, v%d" % (t0, i15)); e("v_add_u32 v%d, %d, v%d" % (vStR, ST, t0))
        e("s_lshl_b32 s6, s%d, 2" % s_w); e("v_add_u32 v%d, s6, v%d" % (vStW, vStR))
        e("v_lshlrev_b32 v%d, 4, v0" % vStO)

        def qacc(dt, qt): return vS + (dt * 3 + qt) * 16
        FA = lambda buf, dt: buf * 20 + dt * 4
        FB = lambda buf, qt: buf * 20 + 8 + qt * 4
        def q_reads(n):
            buf = n & 3; sl = (n % 6) * 2048; xs = ((n >> 2) % 3) * 12288
            rd = []
            for dt in range(2):
                va = vA0 if dt == 0 else vA1
                for jj in range(2):
                    rd.append("ds_read_b64_tr_b16 %s, v%d offset:%d" % (ar(FA(buf, dt) + 2 * jj, 2), va, sl + jj * 512))
            for qt in range(3):
                rd.append("ds_read_b128 %s, v%d offset:%d" % (ar(FB(buf, qt)), vXr[n & 3], xs + qt * 4096))
            return [rd[0], rd[1], rd[4], rd[2], rd[3], rd[5], rd[6]]
        def q_mfmas(n):
            buf = n & 3
            return ["v_mfma_f32_32x32x16_bf16 %s, %s, %s, %s" % (vr(qacc(dt, qt), 16), ar(FA(buf, dt)), ar(FB(buf, qt)), "0" if n == 0 else vr(qacc(dt, qt), 16))
                    for qt in range(3) for dt in range(2)]
        def KFr(i, s): return ar(192 + (i & 1) * 32 + s * 4)
        vKa = [vT[8], vT[9], vT[10], vT[11]]
        def k_addr(i):
            if not cfg.krow: return []
            d = self.kv_slot(i) - R
            return ["s_add_u32 s4, s%d, %d" % (s_kvb, d & 0xffffffff)] + ["v_add_u32 v%d, s4, v%d" % (vKa[j], vQr[j]) for j in range(4)]
        def k_read(i, s):
            if cfg.krow:
                return "ds_read_b128 %s, v%d offset:%d" % (KFr(i, s), vKa[s & 3], (s >> 2) * 256)
            slot = self.kv_slot(i)
            base = (vKr1 if s & 1 else vKr0)
            off = slot + (s >> 1) * 2048
            if off >= 65536:
                base = (vT[11] if s & 1 else vT[10]); off -= 65536
            return "ds_read_b128 %s, v%d offset:%d" % (KFr(i, s), base, off)
        self.emit(wdma(2)); self.emit(wdma(3)); self.emit(xdma(1)); self.emit(wdma(4)); self.emit(wdma(5))
        p.wait_vm("X0"); p.wait_vm("W1")
        e("s_barrier")
        self.emit(self.stamp())
        self.emit(q_reads(0)); self.emit(q_reads(1))
        kb01 = (self.kv_block(0) if not cfg.b0_first else []) + self.kv_block(1)
        k0 = cfg.kstart
        for n in range(28):
            pre = []
            rd = []
            if n + 2 < 28:
                p.wait_vm("W%d" % (n + 2))
                if (n + 2) % 4 == 0:
                    p.wait_vm("X%d" % ((n + 2) >> 2))
                    e("s_waitcnt lgkmcnt(0)")
                    e("s_barrier")
                rd = q_reads(n + 2)
            dm = []
            if n + 6 < 28 and not cfg.exp_nowx: dm += wdma(n + 6)
            if n == 1 and not cfg.exp_nowx: dm += xdma(2)
            if (n + 2) % 4 == 0 and ((n + 2) >> 2) + 2 <= 6 and not cfg.exp_nowx: dm += xdma(((n + 2) >> 2) + 2)
            if k0 <= n < k0 + 6: dm += kb01[(len(kb01) * (n - k0)) // 6:(len(kb01) * (n - k0 + 1)) // 6]
            mf = q_mfmas(n)
            seq = []
            nr = len(rd)
            rpos = [min(3, (4 * k) // max(nr, 1)) for k in range(nr)]
            dpos = [2 + (4 * k) // max(len(dm), 1) for k in range(len(dm))]
            for i, m in enumerate(mf):
                seq.append(m)
                seq += [rd[k] for k in range(nr) if rpos[k] == i]
                seq += [dm[k] for k in range(len(dm)) if min(dpos[k], 5) == i]
            self.emit(seq)
        if cfg.code_pf >= 2: self.code_prefetch(vT[0], vT[2])
        self.emit(self.stamp())
        e("s_waitcnt lgkmcnt(0)")
        e("s_barrier")
        blk4 = self.kv_block(2)
        def exch_write(src_of):
            seq = []
            for dt in range(2):
                for rg in range(4):
                    va = vT[12 + ((dt * 4 + rg) & 1)]
                    seq.append("v_xor_b32 v%d, %d, v%d" % (va, (4 * dt + rg) * 16, vQw))
                    for qt in range(3):
                        b = src_of(dt, qt) + rg * 4
                        ta = vT[14 + 2 * qt]
                        seq.append(["v_cvt_pk_bf16_f32 v%d, v%d, v%d" % (ta, b, b + 1), "v_cvt_pk_bf16_f32 v%d, v%d, v%d" % (ta + 1, b + 2, b + 3),
                                    "ds_write_b64 v%d, %s offset:%d" % (va, vr(ta, 2), qt * 16384)])
            return seq
        if cfg.kd3:
            self.emit(k_addr(0))
            pre0 = [lambda: p.wait_vm("B0")] + [k_read(0, s) for s in range(8)]
            self.emit(weave(exch_write(qacc), blk4 + pre0))
        else:
            self.emit(weave(exch_write(qacc), blk4))
        if not cfg.krow:
            e("v_add_u32 v%d, 0x10000, v%d" % (vT[10], vKr0)); e("v_add_u32 v%d, 0x10000, v%d" % (vT[11], vKr1))
        e("s_waitcnt lgkmcnt(0)")
        e("s_barrier")
        self.emit(self.stamp())
        QF = lambda t, s: (s * 6 + t) * 4
        def q_read(t, s):
            return "ds_read_b128 %s, v%d offset:%d" % (ar(QF(t, s)), vQr[s & 3], t * 8192 + (s >> 2) * 256)
        def qk_mfma(i, t, s):
            c = "0" if s == 0 else vr(S(i, t))
            return "v_mfma_f32_16x16x32_bf16 %s, %s, %s, %s" % (vr(S(i, t)), KFr(i, s), ar(QF(t, s)), c)
        def max_ops(i):
            r = []
            for t in range(6):
                b = S(i, t)
                if i == 0:
                    r.append("v_max3_f32 v%d, v%d, v%d, v%d" % (vM[t], b, b + 1, b + 2))
                    r.append("v_max_f32 v%d, v%d, v%d" % (vM[t], vM[t], b + 3))
                else:
                    r.append("v_max3_f32 v%d, v%d, v%d, v%d" % (vM[t], vM[t], b, b + 1))
                    r.append("v_max3_f32 v%d, v%d, v%d, v%d" % (vM[t], vM[t], b + 2, b + 3))
            return r
        for j in range(1, 4): e("v_add_u32 v%d, %d, v%d" % (vVD[j], j * 3072, vV))
        for i in range(8):
            if cfg.kd3 and i == 0:
                dm = self.kv_block(3)
                self.emit([q_read(t, 0) for t in range(6)])
                seq = []
                for s in range(8):
                    nxq = [q_read(t, s + 1) for t in range(6)] if s < 7 else []
                    seq += weave([qk_mfma(0, t, s) for t in range(6)], nxq)
                self.emit(weave(seq, dm, 6, len(seq)))
                if cfg.fine: self.emit(self.stamp())
                continue
            self.emit(k_addr(i))
            p.wait_vm("B%d" % i)
            rd = [k_read(i, s) for s in range(8)]
            mx = max_ops(i - 1) if i >= 1 else []
            if cfg.kd3:
                dm = self.kv_block(i + 3)
                mf = [qk_mfma(i, t, s) for s in range(8) for t in range(6)]
                self.emit(rd)
                self.emit(mf[:6])
                e("s_waitcnt lgkmcnt(0)")
                self.emit(weave(mf[6:], merge(dm, mx), 0, 41))
            else:
                dm = self.kv_block(i + 2) if i >= 1 else []
                if i == 0:
                    self.emit([rd[0]] + [q_read(t, 0) for t in range(6)])
                    for s in range(8):
                        nxq = ([rd[s + 1]] + [q_read(t, s + 1) for t in range(6)]) if s < 7 else []
                        self.emit(weave([qk_mfma(0, t, s) for t in range(6)], nxq))
                else:
                    mf = [qk_mfma(i, t, s) for s in range(8) for t in range(6)]
                    self.emit(rd)
                    self.emit(weave(mf, merge(dm, mx), 2, 47))
            if cfg.fine and i < 7: self.emit(self.stamp())
        if cfg.code_pf >= 2: self.code_prefetch(vT[0], vT[2])
        self.emit(self.stamp())
        e("v_add_u32 v%d, 0x10000, v%d" % (vA0, vVr0)); e("v_add_u32 v%d, 0x10000, v%d" % (vA1, vVr1))
        self.emit(max_ops(7))
        seq = []
        for t in range(6):
            a = vT[0 + (t & 1)]
            seq += ["v_mov_b32 v%d, v%d" % (a, vM[t]), "v_permlane32_swap_b32 v%d, v%d" % (a, vM[t]), "v_max_f32 v%d, v%d, v%d" % (vM[t], vM[t], a),
                    "v_mov_b32 v%d, v%d" % (a, vM[t]), "v_permlane16_swap_b32 v%d, v%d" % (a, vM[t]), "v_max_f32 v%d, v%d, v%d" % (vM[t], vM[t], a),
                    "ds_write_b32 v%d, v%d offset:%d" % (vStW, vM[t], t * 256)]
        chains = [seq[7 * t:7 * t + 7] for t in range(6)]
        chains = []
        for t in range(6):
            a = vT[t]
            chains.append(["v_mov_b32 v%d, v%d" % (a, vM[t]), "v_permlane32_swap_b32 v%d, v%d" % (a, vM[t]), "v_max_f32 v%d, v%d, v%d" % (vM[t], vM[t], a),
                           "v_mov_b32 v%d, v%d" % (a, vM[t]), "v_permlane16_swap_b32 v%d, v%d" % (a, vM[t]), "v_max_f32 v%d, v%d, v%d" % (vM[t], vM[t], a),
                           "ds_write_b32 v%d, v%d offset:%d" % (vStW, vM[t], t * 256)])
        for k in range(7):
            for t in range(6): e(chains[t][k])
        e("s_waitcnt lgkmcnt(0)")
        e("s_barrier")
        for t in range(5): e("ds_read_b128 %s, v%d offset:%d" % (vr(44 + 4 * t, 4), vStR, t * 256))
        for t in range(6):
            b = 44 + 4 * (t % 5)
            if t == 5: e("ds_read_b128 %s, v%d offset:%d" % (vr(b, 4), vStR, t * 256))
            e("v_max3_f32 v%d, v%d, v%d, v%d" % (vM[t], b, b + 1, b + 2)); e("v_max_f32 v%d, v%d, v%d" % (vM[t], vM[t], b + 3))
        for t in range(6): e("v_mul_f32 v%d, s%d, v%d" % (vM[t], s_c, vM[t]))
        for j in range(4): e("v_add_u32 v%d, %d, v%d" % (vXr[j], (R - XB) & 0xffffffff, vXr[j]))
        e("s_mov_b32 s%d, 0x3f803f80" % s_ones)
        for t in range(6): e("v_mov_b32 v%d, 0" % vL[t])
        def exp_ops(i):
            us = []
            for t in range(6):
                b = S(i, t)
                tm = [vT[0], vT[1], vT[2], vT[3]] if t % 2 == 0 else [vT[4], vT[5], vT[6], vT[7]]
                pk = vT[8 + 2 * (t % 2)] if False else (vT[12] + 2 * (t % 2))
                for k in range(4): us.append("v_fma_f32 v%d, v%d, s%d, -v%d" % (tm[k], b + k, s_c, vM[t]))
                for k in range(4): us.append("v_exp_f32 v%d, v%d" % (tm[k], tm[k]))
                us.append("v_cvt_pk_bf16_f32 v%d, v%d, v%d" % (pk, tm[0], tm[1]))
                us.append("v_cvt_pk_bf16_f32 v%d, v%d, v%d" % (pk + 1, tm[2], tm[3]))
                us.append("v_dot2c_f32_bf16 v%d, s%d, v%d" % (vL[t], s_ones, pk))
                us.append("v_dot2c_f32_bf16 v%d, s%d, v%d" % (vL[t], s_ones, pk + 1))
                us.append("ds_write_b64 v%d, %s offset:%d" % (vPw, vr(pk, 2), (i & 1) * 12288 + t * 2048))
            return us
        self.emit(weave(exp_ops(0), self.kv_block(10)) if not cfg.kd3 else exp_ops(0))
        self.emit(self.stamp())
        OAa = lambda dt, qt: (dt * 3 + qt) * 16
        OAv = lambda dt, qt: vS + (dt * 3 + qt) * 16
        VF = lambda buf, dt: 96 + buf * 20 + dt * 4
        PF = lambda buf, qt: 96 + buf * 20 + 8 + qt * 4
        def v_reads(i, u, buf):
            slot = self.kv_slot(8 + i)
            rd = []
            for dt in range(2):
                for jj in range(2):
                    off = slot + (16 * u + 4 * jj) * 128
                    base = vVr1 if dt else vVr0
                    if off >= 65536:
                        base = vA1 if dt else vA0; off -= 65536
                    rd.append("ds_read_b64_tr_b16 %s, v%d offset:%d" % (ar(VF(buf, dt) + 2 * jj, 2), base, off))
            for qt in range(3):
                rd.append("ds_read_b128 %s, v%d offset:%d" % (ar(PF(buf, qt)), vXr[u], (i & 1) * 12288 + qt * 4096))
            return [rd[0], rd[1], rd[4], rd[2], rd[3], rd[5], rd[6]]
        def pv_mfmas(i, u, buf):
            out = []
            for qt in range(3):
                for dt in range(2):
                    d = ar(OAa(dt, qt), 16) if i < 4 else vr(OAv(dt, qt), 16)
                    c = "0" if (i == 0 and u == 0) else d
                    out.append("v_mfma_f32_32x32x16_bf16 %s, %s, %s, %s" % (d, ar(VF(buf, dt)), ar(PF(buf, qt)), c))
            return out
        wo_slot = lambda k: SLOT[(16 + k) % 3]
        def wo_block(k):
            slot = wo_slot(k)
            tag = "WO%d" % k
            us = [lambda: p.group(tag)]
            for i in range(8):
                m0 = (s_kvb, slot + i * 1024) if i % 4 == 0 else None
                us.append(self.dma(vWoD[i], SRD_O, (sWO[k], None), m0, tag, cfg.aux_wo, imm=(i & 3) * 1024))
            return us
        if cfg.rot:
            e("s_cmp_eq_u32 s%d, 7" % s_b); e("s_cselect_b32 s%d, 0, s%d" % (s_ng, s_b))
        else:
            e("s_mov_b32 s%d, 0" % s_ng)
        e("s_mov_b32 s4, s%d" % s_ng)
        for k in range(7):
            if k: e("s_add_u32 s4, s4, 1"); e("s_cmp_eq_u32 s4, 7"); e("s_cselect_b32 s4, 0, s4")
            e("s_lshl_b32 s%d, s4, 7" % sWO[k])
            e("s_lshl_b32 s6, s4, 2"); e("s_add_u32 s6, s6, s%d" % s_w); e("s_mul_i32 s%d, s6, 3072" % sST[k])
        def split_reads(i, u, buf):
            r = v_reads(i, u, buf)
            return [r[2], r[5], r[6]], [r[0], r[1], r[3], r[4]]
        e("s_waitcnt lgkmcnt(0)")
        e("s_barrier")
        p.wait_vm("B8")
        self.emit(v_reads(0, 0, 0))
        for i in range(8):
            fill = exp_ops(i + 1) if i + 1 < 8 else []
            dm = []
            late = []
            if 1 <= i <= 5: dm = self.kv_block(8 + i + 2)
            if i == 1 and cfg.fuse:
                dm = [["v_mov_b32 v%d, 0" % vT[19], lambda: p.group("NC"),
                       Ins("global_load_dword v%d, v%d, s[%d:%d] sc1" % (vNonce, vT[19], s_dbgp, s_dbgp + 1), "NC")]] + dm
            if i == 4:
                a0, a1, a2 = 168, 169, 170
                late += ["v_lshrrev_b32 v%d, 3, v0" % a0, "s_lshl_b32 s6, s%d, 6" % s_w, "v_add_u32 v%d, s6, v%d" % (a0, a0), "v_mul_u32_u24 v%d, 896, v%d" % (a0, a0)]
                late += ["v_lshrrev_b32 v%d, 4, v0" % a1, "v_and_b32 v%d, 1, v%d" % (a1, a1), "v_lshlrev_b32 v%d, 1, v%d" % (a1, a1), "v_and_b32 v%d, 7, v0" % a2, "v_xor_b32 v%d, v%d, v%d" % (a1, a1, a2),
                         "v_lshlrev_b32 v%d, 4, v%d" % (a1, a1)]
                late += ["v_add_u32 v%d, v%d, v%d" % (a2, a0, a1), "v_xor_b32 v%d, 64, v%d" % (a1, a1), "v_add_u32 v%d, v%d, v%d" % (a1, a0, a1)]
                for k in range(8):
                    late.append("v_add_u32 v%d, %d, v%d" % (vWoD[k], k * 7168 - (k & 3) * 1024, a1 if k & 1 else a2))
            if i == 6:
                dm = wo_block(0)
                ch = []
                for t in range(6):
                    a = vT[t]
                    ch.append(["v_mov_b32 v%d, v%d" % (a, vL[t]), "v_permlane32_swap_b32 v%d, v%d" % (a, vL[t]), "v_add_f32 v%d, v%d, v%d" % (vL[t], vL[t], a),
                               "v_mov_b32 v%d, v%d" % (a, vL[t]), "v_permlane16_swap_b32 v%d, v%d" % (a, vL[t]), "v_add_f32 v%d, v%d, v%d" % (vL[t], vL[t], a),
                               "ds_write_b32 v%d, v%d offset:%d" % (vStW, vL[t], 2048 + t * 256)])
                self.red_chain = [ch[t][k] for k in range(7) for t in range(6)]
            if i == 7:
                dm = wo_block(1)
                fill = self.red_chain
                for t in range(6):
                    b = 44 + 4 * (t % 4)
                    late += ["ds_read_b128 %s, v%d offset:%d" % (vr(b, 4), vStR, 2048 + t * 256),
                             ["v_add_f32 v%d, v%d, v%d" % (b, b, b + 1), "v_add_f32 v%d, v%d, v%d" % (b + 2, b + 2, b + 3),
                              "v_add_f32 v%d, v%d, v%d" % (b, b, b + 2), "v_rcp_f32 v%d, v%d" % (vM[t], b)]]
            if i == 4:
                mv = ["v_accvgpr_read_b32 v%d, a%d" % (vS + r, r) for r in range(96)]
                self.emit(weave(mv, dm[:5], 0, 96)); dm = dm[5:]
            mf = []
            for u in range(3):
                mf += weave(pv_mfmas(i, u, u & 1), v_reads(i, u + 1, (u + 1) & 1), 0, 4)
            self.emit(weave(mf, merge(fill, dm), 0, len(mf) - 1))
            e("s_waitcnt lgkmcnt(0)")
            e("s_barrier")
            m3 = pv_mfmas(i, 3, 1)
            if i < 7:
                pr, vrd = split_reads(i + 1, 0, 0)
                seq = [m3[0]] + pr + [m3[1], (lambda j=i + 1: p.wait_vm("B%d" % (8 + j)))] + vrd
                seq += weave(m3[2:], late)
            else:
                seq = weave(m3, late)
            self.emit(seq)
            if cfg.fine and i < 7: self.emit(self.stamp())
        self.emit(self.stamp())
        self.emit(exch_write(OAv))
        if cfg.fuse: self.get_nonce()
        p.wait_vm("WO0")
        e("s_waitcnt lgkmcnt(0)")
        e("s_barrier")
        self.emit(self.stamp())
        OF = QF
        WF = lambda b, s: 192 + 32 * b + s * 4
        ACC = lambda t: vS + t * 4
        def wo_reads(k):
            slot = wo_slot(k)
            base = vWor
            if slot >= 65536: base = vA0
            off0 = slot if slot < 65536 else slot - 65536
            return ["ds_read_b64_tr_b16 %s, v%d offset:%d" % (ar(WF(k & 1, s) + 2 * jj, 2), base, off0 + (32 * s + 4 * jj) * 128) for s in range(8) for jj in range(2)]
        def epi(t):
            b = ACC(t)
            pk = vT[8] + 4 * ((t >> 1) & 1) + 2 * (t & 1)
            u = ["v_mul_f32 v%d, v%d, v%d" % (b + k, vM[t], b + k) for k in range(4)]
            u += ["v_cvt_pk_bf16_f32 v%d, v%d, v%d" % (pk, b, b + 1), "v_cvt_pk_bf16_f32 v%d, v%d, v%d" % (pk + 1, b + 2, b + 3)]
            return u
        def st(pair, k):
            pk = vT[8] + 4 * (pair & 1)
            return [[lambda: p.group("ST%d_%d" % (k, pair)),
                     Ins("buffer_store_dwordx4 %s, v%d, %s, s%d offen offset:%d %s" % (vr(pk, 4), vStO, srd(SRD_P), sST[k], pair * 1024, cfg.aux_st), "ST%d_%d" % (k, pair))]]
        def tile(k, t):
            return ["v_mfma_f32_16x16x32_bf16 %s, %s, %s, %s" % (vr(ACC(t)), ar(WF(k & 1, s)), ar(OF(t, s)), "0" if s == 0 else vr(ACC(t))) for s in range(8)]
        e("v_add_u32 v%d, 0x10000, v%d" % (vA0, vWor))
        r0 = wo_reads(0)
        self.emit([x for s in range(8) for x in (r0[2 * s:2 * s + 2] + [q_read(0, s)])])
        self.emit(wo_block(2))
        for k in range(7):
            f = [[] for _ in range(6)]
            if k == 0:
                for t in range(5): f[t] += [q_read(t + 1, s) for s in range(8)]
            else:
                f[0] += epi(4); f[1] += epi(5) + st(2, k - 1)
            f[2] += epi(0); f[3] += epi(1) + st(0, k); f[4] += epi(2); f[5] += epi(3) + st(1, k)
            nx = wo_reads(k + 1) if k < 6 else []
            dm = wo_block(k + 3) if k + 3 <= 6 else []
            for t in range(6):
                if t == 2 and k < 6:
                    if k == 5 and cfg.fuse:
                        e("s_waitcnt vmcnt(0)")
                        e("s_barrier")
                        self.emit(self.flag_store(0))
                    else:
                        p.wait_vm("WO%d" % (k + 1))
                        e("s_barrier")
                ex = []
                if t >= 2:
                    ex = nx[4 * (t - 2):4 * (t - 1)]
                    dd = dm[0:1] + dm[1:3] if t == 2 else dm[1 + 2 * (t - 2):3 + 2 * (t - 2)]
                    ex = merge(ex, dd)
                self.emit(weave(tile(k, t), merge(f[t], ex), 0, 8))
        self.emit(epi(4)); self.emit(epi(5)); self.emit(st(2, 6))
        self.emit(self.stamp())
        if cfg.fuse:
            self.reduce_tail()
        elif cfg.stamps or cfg.dbg:
            e("s_waitcnt vmcnt(0)")
            self.emit(self.stamp())
        e("L_k1_end:")
        e("s_endpgm")
        p.resolve()
        return p.text()

    def get_nonce(self):
        cfg, p, e = self.cfg, self.p, self.p.e
        e("v_readfirstlane_b32 s%d, v%d" % (s_nonce, vNonce))
        e("s_cmp_lg_u32 s%d, 0" % s_nonce); e("s_cbranch_scc1 L_havenonce")
        e("L_pollnonce:")
        e("v_mov_b32 v44, 0")
        p.raw(Ins("global_load_dword v%d, v44, s[%d:%d] sc1" % (vNonce, s_dbgp, s_dbgp + 1), "nocount"))
        p.raw(Ins("s_waitcnt vmcnt(0)", "nocredit"))
        e("v_readfirstlane_b32 s%d, v%d" % (s_nonce, vNonce))
        e("s_cmp_eq_u32 s%d, 0" % s_nonce); e("s_cbranch_scc1 L_pollnonce")
        e("L_havenonce:")
        e("s_lshl_b32 s4, s%d, 8" % s_G); e("s_add_u32 s4, s4, %d" % FLAG_OFF)
        e("s_add_u32 s68, s58, s4"); e("s_addc_u32 s69, s59, 0")

    def flag_store(self, which):
        lab = "L_nofl%d" % which
        return ["s_cmp_lg_u32 s%d, 0" % s_w, "s_cbranch_scc1 %s" % lab,
                "v_mov_b32 v42, s%d" % s_nonce, "s_lshl_b32 s4, s%d, 2" % s_h, "s_add_u32 s4, s4, %d" % (128 * which), "v_mov_b32 v43, s4",
                "s_mov_b64 exec, 1",
                Ins("global_store_dword v43, v42, s[68:69] sc1", "nocount"),
                "s_mov_b64 exec, -1", "s_nop 4", lab + ":"]

    def poll(self, which):
        e, p = self.p.e, self.p
        e("s_mov_b64 exec, 0xffff")
        e("v_lshlrev_b32 v45, 2, v0")
        e("L_poll%d:" % which)
        p.raw(Ins("global_load_dword v46, v45, s[68:69] offset:%d sc1" % (128 * which), "nocount"))
        p.raw(Ins("s_waitcnt vmcnt(0)", "nocredit"))
        e("v_cmp_ne_u32 vcc, s%d, v46" % s_nonce)
        e("s_nop 4")
        e("s_cbranch_vccz L_polldone%d" % which)
        e("s_sleep 1")
        e("s_branch L_poll%d" % which)
        e("L_polldone%d:" % which)
        e("s_mov_b64 exec, -1")

    def unit(self, su, tagname):
        cfg, p, e = self.cfg, self.p, self.p.e
        SG = 64
        e("s_mul_hi_u32 s5, s%d, %d" % (su, (1 << 32) // 12 + 1)); e("s_mul_i32 s6, s5, 12"); e("s_sub_u32 s6, s%d, s6" % su)
        e("s_add_u32 s5, s5, s%d" % s_ng); e("s_cmp_ge_u32 s5, 7"); e("s_cselect_b32 s7, 7, 0"); e("s_sub_u32 s5, s5, s7")
        e("s_mul_i32 s72, s5, 12"); e("s_add_u32 s72, s72, s6"); e("s_lshl_b32 s72, s72, 10")
        e("s_mul_hi_u32 s7, s6, %d" % ((1 << 32) // 3 + 1)); e("s_mul_i32 s76, s7, 3"); e("s_sub_u32 s76, s6, s76")
        e("s_lshl_b32 s5, s5, 7"); e("s_lshl_b32 s7, s7, 5"); e("s_mul_i32 s76, s76, %d" % (32 * 1792))
        e("s_add_u32 s5, s5, s7"); e("s_add_u32 s5, s5, s76"); e("s_add_u32 s73, s5, s70")
        e("s_cmp_ge_u32 s%d, 84" % su)
        e("s_cselect_b32 s72, 0x40000000, s72"); e("s_cselect_b32 s73, 0x40000000, s73")
        for h in range(16):
            e("s_add_u32 s5, s72, %d" % (h * PART))
            p.raw(Ins("buffer_load_dwordx4 %s, v%d, %s, s5 offen %s" % (vr(64 + 4 * h, 4), vStO, srd(SG), cfg.aux_rd), tagname))
        acc = list(range(48, 56))
        for a in acc: e("v_mov_b32 v%d, 0" % a)
        for h in range(16):
            b = 64 + 4 * h
            for q in range(4):
                e("v_dot2c_f32_bf16 v%d, s74, v%d" % (acc[2 * q], b + q)); e("v_dot2c_f32_bf16 v%d, s75, v%d" % (acc[2 * q + 1], b + q))
        for q in range(4): e("v_cvt_pk_bf16_f32 v%d, v%d, v%d" % (56 + q, acc[2 * q], acc[2 * q + 1]))
        e("buffer_store_dwordx2 v[56:57], v41, %s, s73 offen" % srd(SRD_OUT))
        e("s_add_u32 s5, s73, %d" % (16 * 1792))
        e("buffer_store_dwordx2 v[58:59], v41, %s, s5 offen" % srd(SRD_OUT))

    def reduce_tail(self):
        cfg, p, e = self.cfg, self.p, self.p.e
        SG = 64
        e("s_mul_i32 s4, s%d, %d" % (s_G, PART * 16))
        e("s_add_u32 s%d, s58, s4" % SG); e("s_addc_u32 s%d, s59, 0" % (SG + 1)); e("s_mov_b32 s%d, %d" % (SG + 2, PART * 16)); e("s_mov_b32 s%d, 0x20000" % (SG + 3))
        e("s_mul_i32 s70, s%d, %d" % (s_b, 96 * 1792)); e("s_mul_i32 s4, s%d, 896" % s_br); e("s_add_u32 s70, s70, s4")
        e("v_and_b32 v41, 15, v0"); e("v_mul_u32_u24 v41, 1792, v41"); e("v_lshrrev_b32 v42, 4, v0"); e("v_lshlrev_b32 v42, 3, v42"); e("v_add_u32 v41, v41, v42")
        e("s_mov_b32 s74, 0x3f80"); e("s_mov_b32 s75, 0x3f800000")
        e("s_lshl_b32 s61, s%d, 2" % s_h); e("s_add_u32 s61, s61, s%d" % s_w)
        e("s_cmp_ge_u32 s61, 60"); e("s_cselect_b32 s61, 127, s61")
        e("s_lshl_b32 s62, s%d, 4" % s_w); e("s_add_u32 s62, s62, s%d" % s_h); e("s_add_u32 s62, s62, 60")
        e("s_cmp_eq_u32 s%d, 3" % s_w); e("s_cbranch_scc0 L_np1")
        self.poll(0)
        e("L_np1:")
        e("s_waitcnt vmcnt(0)")
        e("s_barrier")
        self.emit(self.stamp())
        self.emit(self.flag_store(1))
        self.unit(61, "RD1")
        e("s_cmp_eq_u32 s%d, 3" % s_w); e("s_cbranch_scc0 L_np2")
        self.poll(1)
        e("L_np2:")
        e("s_barrier")
        self.emit(self.stamp())
        e("s_cmp_ge_u32 s%d, 2" % s_w); e("s_cbranch_scc1 L_fin")
        self.unit(62, "RD2")
        e("L_fin:")
        if cfg.stamps or cfg.dbg:
            e("s_waitcnt vmcnt(0)")
            self.emit(self.stamp())

def desc(name, vg, acc, sg=102):
    return """.amdhsa_kernel %s
  .amdhsa_next_free_vgpr %d
  .amdhsa_next_free_sgpr %d
  .amdhsa_accum_offset %d
  .amdhsa_group_segment_fixed_size 0
  .amdhsa_kernarg_size 104
  .amdhsa_user_sgpr_count 2
  .amdhsa_user_sgpr_kernarg_segment_ptr 1
  .amdhsa_system_sgpr_workgroup_id_x 1
  .amdhsa_float_denorm_mode_32 3
.end_amdhsa_kernel
""" % (name, vg, sg, acc)

REF = "concat_heads__gqa_block_cached__mha_block_cached__near_ridge.s.ref"
HEAD = open(REF).read().split("; Override launch geometry")[0] if os.path.exists(REF) else ""

def generate(cfg):
    k1 = K1(cfg).build()
    out = HEAD
    out += "; @launch grid=(256,1,1) block=(256,1,1) lds=163840\n"
    out += '.amdgcn_target "amdgcn-amd-amdhsa--gfx950"\n.text\n'
    out += ".globl %s\n.p2align 8\n.type %s,@function\n%s:\n%s\n" % (KNAME, KNAME, KNAME, k1)
    out += '.section .rodata,"a"\n.p2align 6\n' + desc(KNAME, 512, 256)
    return out

if __name__ == "__main__":
    kw = {}
    for a in sys.argv[2:]:
        k, v = a.split("=", 1)
        kw[k] = eval(v)
    txt = generate(Cfg(**kw))
    open(sys.argv[1], "w").write(txt)
    print("wrote", sys.argv[1], len(txt), "bytes,", txt.count("\n"), "lines")
```

```python
import sys, os
from asmgen import Prog, Ins

KNAME = "concat_heads__gqa_block_cached__mha_block_cached__near_ridge_kernel"

class Cfg:
    aux_kv = "nt"
    aux_w = ""
    aux_x = ""
    aux_wo = ""
    aux_st = "sc1"
    aux_rd = "sc1"
    stamps = False
    dbg = False
    dbg_wg = 128
    rot = True
    fuse = True
    fine = False
    early_dma = True
    krow = True
    code_pf = 1
    code_bytes = 32768
    f1_drain = True
    exp_kpre = 4
    kstart = 22
    kd3 = False
    exp_nostore = False
    exp_nowodma = False
    exp_nobar = False
    epoll = True
    aux_out = ""
    pf_first = True
    defer = True
    t00 = False
    aswap = False
    kbar = False
    rot_hh = 0
    b0_first = False
    tlbwarm = True
    exp_nowx = False
    def __init__(self, **kw):
        for k, v in kw.items():
            assert hasattr(Cfg, k), k
            setattr(self, k, v)

SLOT = [0, 32768, 65536]
WB = 65536
XB = 114688
R = 98304
ST = 159744
PART = 86016
TS_OFF = 64 << 20
FLAG_OFF = 32 << 20

vK0, vK1, vV, vW, vX = 1, 2, 3, 4, 5
vVD = [3, 41, 42, 43]
vKr0, vKr1 = 6, 7
vVr0, vVr1 = 8, 9
vXr = [10, 11, 12, 13]
vQr = [14, 15, 16, 17]
vPw = 18
vQw = 19
vWor = 20
vStW, vStR = 21, 22
vStO = 23
vM = [24, 25, 26, 27, 28, 29]
vL = [30, 31, 32, 33, 34, 35]
vWoD = list(range(160, 168))
vA0, vA1 = 38, 39
vNonce = 40
vKT = 6
vT = list(range(44, 64))
vS = 64

def S(i, t): return vS + (i * 6 + t) * 4

s_w = 3
sT0, sSoff, sT1, sT2 = 4, 5, 6, 7
SRD_X, SRD_W, SRD_K, SRD_V, SRD_O, SRD_P = 8, 12, 16, 20, 24, 28
s_c = 32
s_kvb = 33
s_wrb = 34
s_w1k = 35
sCW = list(range(36, 43))
sCX = list(range(44, 51))
sWO = list(range(36, 43))
sST = list(range(44, 51))
s_ws = 58
s_cnt = 60
s_ng, s_ng2, s_slotR, s_slotN, s_slotD, s_stoff, s_stprev, s_wooff = 71, 72, 73, 74, 75, 76, 77, 78
s_b, s_hh, s_h, s_br = 79, 80, 81, 82
s_G = 83
s_tsoff = 88
s_nonce = 94
s_ones = 95
s_swap = 57
s_oob = 78
SRD_G, SRD_OUT = 64, 68
SRD_OUT = 52
s_dbgp = 96
s_outp = 98

def srd(n): return "s[%d:%d]" % (n, n + 3)
def vr(n, c=4): return "v[%d:%d]" % (n, n + c - 1)
def ar(n, c=4): return "a[%d:%d]" % (n, n + c - 1)

def weave(main, fill, lo=0, hi=None):
    if hi is None: hi = len(main)
    out = []
    n = hi - lo
    k = 0
    for i, m in enumerate(main):
        out.append(m)
        if lo <= i < hi:
            tgt = min(len(fill), -(-(len(fill) * (i - lo + 1)) // n))
            while k < tgt:
                out.append(fill[k]); k += 1
    while k < len(fill):
        out.append(fill[k]); k += 1
    return out

def merge(a, b):
    if not a: return list(b)
    if not b: return list(a)
    return weave(a, b) if len(a) >= len(b) else weave(b, a)

class K1:
    def __init__(self, cfg):
        self.cfg = cfg
        self.p = Prog()
        self.nstamp = 0
        self.vTs = 62
        self.npf = 0

    def emit(self, seq):
        for u in seq:
            if isinstance(u, (list, tuple)): self.emit(u)
            elif callable(u): u()
            elif isinstance(u, Ins): self.p.raw(u)
            else: self.p.e(u)

    def dma(self, vaddr, srdn, soff, m0, tag, aux, imm=0):
        u = []
        if m0 is not None:
            if isinstance(m0, int): u.append("s_mov_b32 m0, %d" % m0)
            else: u.append("s_add_u32 m0, s%d, %d" % m0 if m0[1] else "s_mov_b32 m0, s%d" % m0[0])
        if isinstance(soff, int) and self.cfg.aswap and srdn in (SRD_K, SRD_V):
            u.append("s_xor_b32 s%d, s%d, %d" % (sSoff, s_swap, soff)); sreg = sSoff
        elif isinstance(soff, int):
            u.append("s_mov_b32 s%d, %d" % (sSoff, soff)); sreg = sSoff
        elif soff[1] is None:
            sreg = soff[0]
            if m0 is not None: u.append("s_nop 0")
        else:
            u.append("s_add_u32 s%d, s%d, %d" % (sSoff, soff[0], soff[1])); sreg = sSoff
        u.append(Ins("buffer_load_dwordx4 v%d, %s, s%d offen %s%s lds" % (vaddr, srd(srdn), sreg, ("offset:%d " % imm) if imm else "", aux), tag))
        return u

    def stamp(self):
        cfg = self.cfg
        if cfg.dbg:
            i = self.nstamp; self.nstamp += 1
            lab = "L_st%d" % i
            return ["s_cmp_lg_u32 s89, 0", "s_cbranch_scc1 %s" % lab,
                    Ins("s_memrealtime s[86:87]", "nocount"), Ins("s_waitcnt lgkmcnt(0)", "nocredit"),
                    "v_mov_b32 v%d, s86" % self.vTs, "v_mov_b32 v%d, %d" % (self.vTs + 1, 4 * (i + 1)),
                    Ins("global_store_dword v%d, v%d, s[100:101]" % (self.vTs + 1, self.vTs), 'nocount'), lab + ":"]
        if not cfg.stamps: return []
        i = self.nstamp; self.nstamp += 1
        return ["s_memrealtime s[86:87]", "s_memtime s[92:93]", "s_waitcnt lgkmcnt(0)",
                "v_mov_b32 v%d, s86" % self.vTs, "v_mov_b32 v%d, s%d" % (self.vTs + 1, s_tsoff),
                Ins("global_store_dword v%d, v%d, s[84:85] offset:%d" % (self.vTs + 1, self.vTs, 4 * i), 'nocount'),
                "v_mov_b32 v%d, s92" % self.vTs,
                Ins("global_store_dword v%d, v%d, s[84:85] offset:%d" % (self.vTs + 1, self.vTs, 128 + 4 * i), 'nocount')]

    def code_prefetch(self, t0, t2):
        e, p = self.p.e, self.p
        i = self.npf; self.npf += 1
        e("s_cmp_lg_u32 s%d, 0" % s_w); e("s_cbranch_scc1 L_nopf%d" % i)
        e("s_getpc_b64 s[90:91]")
        e("L_pc%d:" % i)
        e("s_sub_u32 s90, s90, L_pc%d-%s" % (i, KNAME)); e("s_subb_u32 s91, s91, 0")
        e("s_lshr_b32 s4, s2, 3"); e("s_lshl_b32 s4, s4, 11")
        e("v_lshlrev_b32 v%d, 7, v0" % t0); e("v_add_u32 v%d, s4, v%d" % (t0, t0))
        e("v_mov_b32 v%d, s91" % (t2 + 1))
        e("v_add_co_u32 v%d, vcc, s90, v%d" % (t2, t0)); e("v_addc_co_u32 v%d, vcc, 0, v%d, vcc" % (t2 + 1, t2 + 1))
        e("v_cmp_gt_u32 vcc, L_k1_end-%s, v%d" % (KNAME, t0))
        e("s_and_b64 exec, vcc, 0xffff")
        e("s_cbranch_execz L_nopfx%d" % i)
        p.raw(Ins("global_load_dword v%d, v[%d:%d], off" % (vNonce, t2, t2 + 1), "nocount"))
        e("L_nopfx%d:" % i)
        e("s_mov_b64 exec, -1")
        e("s_nop 4")
        e("L_nopf%d:" % i)

    @staticmethod
    def kv_slot(n):
        return SLOT[n % 3]
    def kv_block(self, n):
        cfg = self.cfg
        slot = self.kv_slot(n)
        tag = "B%d" % n
        us = [lambda: self.p.group(tag)]
        if n < 8 and cfg.krow:
            for m in range(8):
                tmp = vK1 if m & 1 else vKT
                u = ["v_xor_b32 v%d, %d, v%d" % (tmp, 32 * m, vK0)]
                if m % 4 == 0:
                    u += self.dma(tmp, SRD_K, n * 32768 + m * 1024, (s_kvb, slot + m * 1024), tag, cfg.aux_kv)
                else:
                    u += self.dma(tmp, SRD_K, (sSoff, None), None, tag, cfg.aux_kv, imm=(m % 4) * 1024)
                us.append(u)
        elif n < 8:
            for m in range(4):
                for kh in range(2):
                    us.append(self.dma(vK1 if kh else vK0, SRD_K, n * 32768 + m * 128, (s_kvb, slot + (m * 2 + kh) * 1024), tag, cfg.aux_kv))
        else:
            for m in range(8):
                if m % 4 == 0:
                    us.append(self.dma(vVD[0], SRD_V, (n - 8) * 32768 + m * 4096, (s_kvb, slot + m * 1024), tag, cfg.aux_kv))
                else:
                    us.append(self.dma(vVD[m % 4], SRD_V, (sSoff, None), None, tag, cfg.aux_kv, imm=(m % 4) * 1024))
        return us

    def build(self):
        cfg, p, e = self.cfg, self.p, self.p.e
        if cfg.stamps and cfg.t00: p.raw(Ins("s_memrealtime s[76:77]", "nocount"))
        e("s_cmp_ge_u32 s2, 256")
        e("s_cbranch_scc1 L_k1_end")
        e("s_load_dwordx8 s[36:43], s[0:1], 0")
        e("s_load_dwordx2 s[44:45], s[0:1], 32")
        e("s_load_dwordx8 s[48:55], s[0:1], 40")
        e("s_load_dwordx2 s[56:57], s[0:1], 72")
        e("s_load_dwordx2 s[58:59], s[0:1], 96")
        e("s_load_dwordx4 s[96:99], s[0:1], 80")
        e("v_lshrrev_b32 v60, 6, v0")
        e("v_and_b32 v0, 63, v0")
        e("v_readfirstlane_b32 s%d, v60" % s_w)
        if cfg.code_pf and cfg.pf_first: self.code_prefetch(vT[0], vT[2])
        e("s_and_b32 s4, s2, 7")
        e("s_lshr_b32 s6, s2, 3")
        e("s_lshr_b32 s%d, s6, 4" % s_br)
        e("s_lshr_b32 s%d, s6, 1" % s_b)
        e("s_and_b32 s%d, s%d, 7" % (s_b, s_b))
        e("s_and_b32 s%d, s6, 1" % s_hh)
        e("s_lshl_b32 s%d, s4, 1" % s_h)
        e("s_add_u32 s%d, s%d, s%d" % (s_h, s_h, s_hh))
        e("s_lshl_b32 s6, s%d, 3" % s_b); e("s_add_u32 s6, s6, s4")
        e("s_lshl_b32 s7, s%d, 4" % s_b); e("s_add_u32 s7, s7, s%d" % s_h)
        e("s_cmp_eq_u32 s%d, 0" % s_br)
        e("s_cselect_b32 s6, s6, s7")
        e("s_lshl_b32 s61, s6, 18")
        e("s_lshl_b32 s%d, s%d, 13" % (s_kvb, s_w))
        e("s_mul_i32 s%d, s%d, 12288" % (s_wrb, s_w)); e("s_add_u32 s%d, s%d, %d" % (s_wrb, s_wrb, WB))
        e("s_lshl_b32 s%d, s%d, 10" % (s_w1k, s_w))
        e("s_mov_b32 s%d, 0x3db8aa3b" % s_c)
        e("s_lshl_b32 s%d, s%d, 3" % (s_G, s_br)); e("s_add_u32 s%d, s%d, s%d" % (s_G, s_G, s_b))
        if cfg.rot:
            e("s_mul_i32 s62, s%d, %d" % (s_hh, cfg.rot_hh)); e("s_add_u32 s62, s62, s%d" % s_b)
            e("s_cmp_ge_u32 s62, 7"); e("s_cselect_b32 s6, 7, 0"); e("s_sub_u32 s62, s62, s6")
        else:
            e("s_mov_b32 s62, 0")
        t0, t1, t2, t3, t4 = vT[:5]
        l3, l7, l4, i15 = vT[5:9]
        e("v_lshrrev_b32 v%d, 3, v0" % l3)
        e("v_and_b32 v%d, 7, v0" % l7)
        e("v_lshrrev_b32 v%d, 4, v0" % l4)
        e("v_and_b32 v%d, 15, v0" % i15)
        e("v_and_b32 v%d, 1, v%d" % (t0, l4)); e("v_lshlrev_b32 v%d, 2, v%d" % (t0, t0))
        e("v_xor_b32 v%d, v%d, v%d" % (t0, l7, t0)); e("v_lshlrev_b32 v%d, 4, v%d" % (t0, t0))
        e("s_lshl_b32 s6, s%d, 7" % s_w)
        e("v_add_u32 v%d, s6, v%d" % (t0, t0))
        e("v_lshlrev_b32 v%d, 13, v%d" % (t1, l3)); e("v_add_u32 v%d, v%d, v%d" % (vW, t0, t1))
        e("v_lshlrev_b32 v%d, 9, v%d" % (t1, l3)); e("v_add_u32 v%d, v%d, v%d" % (vV, t0, t1))
        e("s_lshl_b32 s6, s%d, 3" % s_w); e("v_add_u32 v%d, s6, v%d" % (t2, l3)); e("v_mul_u32_u24 v%d, 896, v%d" % (t2, t2))
        e("s_and_b32 s7, s%d, 1" % s_w); e("s_lshl_b32 s7, s7, 2")
        e("v_add_u32 v%d, s7, v%d" % (t3, l4)); e("v_xor_b32 v%d, v%d, v%d" % (t3, l7, t3)); e("v_lshlrev_b32 v%d, 4, v%d" % (t3, t3))
        e("v_add_u32 v%d, v%d, v%d" % (vX, t2, t3))
        e("s_waitcnt lgkmcnt(0)")
        if cfg.stamps:
            e("s_mov_b32 s84, s58"); e("s_mov_b32 s85, s59")
            e("s_lshl_b32 s%d, s2, 2" % s_tsoff); e("s_add_u32 s%d, s%d, s%d" % (s_tsoff, s_tsoff, s_w))
            e("s_lshl_b32 s%d, s%d, 8" % (s_tsoff, s_tsoff)); e("s_add_u32 s%d, s%d, %d" % (s_tsoff, s_tsoff, TS_OFF))
        if cfg.dbg:
            e("s_sub_u32 s89, s2, %d" % cfg.dbg_wg); e("s_or_b32 s89, s89, s%d" % s_w)
            e("s_mov_b32 s100, s98"); e("s_mov_b32 s101, s99")
        if cfg.stamps and cfg.t00:
            i = self.nstamp; self.nstamp += 1
            e("v_mov_b32 v62, s76"); e("v_mov_b32 v63, s%d" % s_tsoff)
            p.raw(Ins("global_store_dword v63, v62, s[84:85] offset:%d" % (4 * i), "nocount"))
        self.emit(self.stamp())
        e("s_cmp_eq_u32 s%d, 0" % s_br)
        for (dst, a, b) in ((SRD_X, 36, 48), (SRD_K, 38, 50), (SRD_V, 40, 52), (SRD_W, 42, 54), (SRD_O, 44, 56)):
            e("s_cselect_b32 s%d, s%d, s%d" % (dst, a, b)); e("s_cselect_b32 s%d, s%d, s%d" % (dst + 1, a + 1, b + 1))
        e("s_mul_i32 s4, s%d, %d" % (s_b, PART))
        e("s_add_u32 s%d, s%d, s4" % (SRD_X, SRD_X)); e("s_addc_u32 s%d, s%d, 0" % (SRD_X + 1, SRD_X + 1))
        e("s_mov_b32 s%d, %d" % (SRD_X + 2, PART)); e("s_mov_b32 s%d, 0x20000" % (SRD_X + 3))
        e("s_lshl_b32 s4, s%d, 9" % s_h)
        e("s_add_u32 s%d, s%d, s4" % (SRD_W, SRD_W)); e("s_addc_u32 s%d, s%d, 0" % (SRD_W + 1, SRD_W + 1))
        e("s_sub_u32 s%d, %d, s4" % (SRD_W + 2, 448 * 8192)); e("s_mov_b32 s%d, 0x20000" % (SRD_W + 3))
        def chunk_offsets(cs):
            for c in cs:
                if c == 0: e("s_mov_b32 s63, s62")
                else:
                    e("s_add_u32 s63, s63, 1"); e("s_cmp_eq_u32 s63, 7"); e("s_cselect_b32 s63, 0, s63")
                e("s_lshl_b32 s%d, s63, 7" % sCX[c]); e("s_lshl_b32 s%d, s63, 19" % sCW[c])
        chunk_offsets([0])
        def xdma(c):
            us = [lambda: p.group("X%d" % c)]
            for i in range(3):
                us.append(self.dma(vX, SRD_X, (sCX[c], i * 32 * 896), (s_w1k, XB + (c % 3) * 12288 + i * 4096), "X%d" % c, cfg.aux_x))
            return us
        def wdma(n):
            us = [lambda: p.group("W%d" % n)]
            for m in range(2):
                us.append(self.dma(vW, SRD_W, (sCW[n >> 2], ((n & 3) * 16 + 8 * m) * 8192), (s_wrb, (n % 6) * 2048 + m * 1024), "W%d" % n, cfg.aux_w))
            return us
        self.emit(xdma(0)); self.emit(wdma(0)); self.emit(wdma(1))
        if cfg.b0_first:
            e("s_add_u32 s%d, s%d, s61" % (SRD_K, SRD_K)); e("s_addc_u32 s%d, s%d, 0" % (SRD_K + 1, SRD_K + 1))
            e("s_mov_b32 s%d, 262144" % (SRD_K + 2)); e("s_mov_b32 s%d, 0x20000" % (SRD_K + 3))
            e("v_lshrrev_b32 v%d, 5, v0" % t0); e("v_and_b32 v%d, 31, v0" % t1); e("v_xor_b32 v%d, v%d, v%d" % (t1, t1, t0))
            e("v_lshlrev_b32 v%d, 4, v%d" % (t1, t1)); e("v_lshlrev_b32 v%d, 9, v%d" % (t0, t0)); e("v_add_u32 v%d, v%d, v%d" % (t0, t0, t1))
            e("v_add_u32 v%d, s%d, v%d" % (vK0, s_kvb, t0))
            self.emit(self.kv_block(0))
        if cfg.code_pf and not cfg.pf_first: self.code_prefetch(t0, t2)
        if cfg.aswap:
            e("s_cmp_eq_u32 s%d, 0" % s_br); e("s_cselect_b32 s%d, s%d, 0" % (s_swap, s_hh)); e("s_lshl_b32 s%d, s%d, 15" % (s_swap, s_swap))
        chunk_offsets(range(1, 7))
        e("v_lshrrev_b32 v%d, 5, v0" % t0); e("v_lshlrev_b32 v%d, 3, v%d" % (t0, t0)); e("v_lshrrev_b32 v%d, 2, v%d" % (t1, i15))
        e("v_add_u32 v%d, v%d, v%d" % (t0, t0, t1)); e("v_lshlrev_b32 v%d, 7, v%d" % (t0, t0))
        e("v_and_b32 v%d, 1, v%d" % (t1, l4)); e("v_lshlrev_b32 v%d, 1, v%d" % (t1, t1))
        e("v_and_b32 v%d, 3, v%d" % (t4, i15)); e("v_lshrrev_b32 v%d, 1, v%d" % (t4, t4)); e("v_add_u32 v%d, v%d, v%d" % (t1, t1, t4))
        e("v_lshrrev_b32 v%d, 3, v%d" % (t4, i15)); e("v_lshlrev_b32 v%d, 2, v%d" % (t4, t4)); e("v_xor_b32 v%d, v%d, v%d" % (t1, t1, t4))
        e("v_lshlrev_b32 v%d, 4, v%d" % (t1, t1)); e("v_add_u32 v%d, v%d, v%d" % (t0, t0, t1))
        e("v_and_b32 v%d, 1, v%d" % (t1, i15)); e("v_lshlrev_b32 v%d, 3, v%d" % (t1, t1)); e("v_add_u32 v%d, v%d, v%d" % (t0, t0, t1))
        e("v_add_u32 v%d, s%d, v%d" % (vVr0, s_kvb, t0)); e("v_xor_b32 v%d, 64, v%d" % (vVr1, vVr0))
        e("v_add_u32 v%d, s%d, v%d" % (vA0, s_wrb, t0)); e("v_xor_b32 v%d, 64, v%d" % (vA1, vA0))
        e("v_and_b32 v%d, 31, v0" % t0); e("v_lshrrev_b32 v%d, 1, v%d" % (t1, t0)); e("v_and_b32 v%d, 7, v%d" % (t1, t1))
        e("v_lshrrev_b32 v%d, 5, v0" % t4); e("v_xor_b32 v%d, v%d, v%d" % (t1, t1, t4)); e("v_lshlrev_b32 v%d, 4, v%d" % (t1, t1))
        e("v_lshlrev_b32 v%d, 7, v%d" % (t0, t0)); e("v_add_u32 v%d, v%d, v%d" % (t0, t0, t1)); e("v_add_u32 v%d, %d, v%d" % (vXr[0], XB, t0))
        for j in range(1, 4): e("v_xor_b32 v%d, %d, v%d" % (vXr[j], 32 * j, vXr[0]))
        D = []
        d = D.append
        d("s_add_u32 s%d, s%d, s61" % (SRD_K, SRD_K)); d("s_addc_u32 s%d, s%d, 0" % (SRD_K + 1, SRD_K + 1))
        D[-2:] = [D[-2:]]
        d("s_mov_b32 s%d, 262144" % (SRD_K + 2)); d("s_mov_b32 s%d, 0x20000" % (SRD_K + 3))
        d(["s_add_u32 s%d, s%d, s61" % (SRD_V, SRD_V), "s_addc_u32 s%d, s%d, 0" % (SRD_V + 1, SRD_V + 1)])
        d("s_mov_b32 s%d, 262144" % (SRD_V + 2)); d("s_mov_b32 s%d, 0x20000" % (SRD_V + 3))
        d(["s_mul_i32 s4, s%d, %d" % (s_h, 256 * 896), "s_add_u32 s%d, s%d, s4" % (SRD_O, SRD_O), "s_addc_u32 s%d, s%d, 0" % (SRD_O + 1, SRD_O + 1)])
        d("s_mov_b32 s%d, %d" % (SRD_O + 2, 256 * 896)); d("s_mov_b32 s%d, 0x20000" % (SRD_O + 3))
        d(["s_lshl_b32 s4, s%d, 4" % s_G, "s_add_u32 s4, s4, s%d" % s_h, "s_mul_i32 s4, s4, %d" % PART,
           "s_add_u32 s%d, s58, s4" % SRD_P, "s_addc_u32 s%d, s59, 0" % (SRD_P + 1)])
        d("s_mov_b32 s%d, %d" % (SRD_P + 2, PART)); d("s_mov_b32 s%d, 0x20000" % (SRD_P + 3))
        d("s_mov_b32 s%d, s96" % SRD_OUT); d("s_mov_b32 s%d, s97" % (SRD_OUT + 1))
        d("s_mov_b32 s%d, %d" % (SRD_OUT + 2, 8 * 96 * 1792)); d("s_mov_b32 s%d, 0x20000" % (SRD_OUT + 3))
        d("s_mov_b32 s%d, s98" % s_dbgp); d("s_mov_b32 s%d, s99" % (s_dbgp + 1))
        if cfg.aswap:
            d(["s_cmp_eq_u32 s%d, 0" % s_br, "s_cselect_b32 s%d, s%d, 0" % (s_swap, s_hh), "s_lshl_b32 s%d, s%d, 15" % (s_swap, s_swap)])
        assert cfg.krow
        for x in ("v_lshrrev_b32 v%d, 5, v0" % t0, "v_and_b32 v%d, 31, v0" % t1, "v_xor_b32 v%d, v%d, v%d" % (t1, t1, t0),
                  "v_lshlrev_b32 v%d, 4, v%d" % (t1, t1), "v_lshlrev_b32 v%d, 9, v%d" % (t0, t0), "v_add_u32 v%d, v%d, v%d" % (t0, t0, t1),
                  "v_add_u32 v%d, s%d, v%d" % (vK0, s_kvb, t0)): d(x)
        for x in ("v_xor_b32 v%d, v%d, v%d" % (t1, l4, i15), "v_lshlrev_b32 v%d, 4, v%d" % (t1, t1), "v_lshlrev_b32 v%d, 9, v%d" % (t0, i15),
                  "v_add_u32 v%d, v%d, v%d" % (t0, t0, t1), "v_add_u32 v%d, %d, v%d" % (vQr[0], R, t0)): d(x)
        for j in range(1, 4): d("v_xor_b32 v%d, %d, v%d" % (vQr[j], 64 * j, vQr[0]))
        d(["s_lshl_b32 s6, s%d, 1" % s_w, "v_lshrrev_b32 v%d, 1, v%d" % (t0, l4), "v_add_u32 v%d, s6, v%d" % (t0, t0)])
        for x in ("v_lshrrev_b32 v%d, 1, v%d" % (t1, i15), "v_xor_b32 v%d, v%d, v%d" % (t0, t0, t1), "v_lshlrev_b32 v%d, 4, v%d" % (t0, t0),
                  "v_lshlrev_b32 v%d, 7, v%d" % (t1, i15), "v_add_u32 v%d, v%d, v%d" % (t0, t0, t1),
                  "v_and_b32 v%d, 1, v%d" % (t1, l4), "v_lshlrev_b32 v%d, 3, v%d" % (t1, t1), "v_add_u32 v%d, v%d, v%d" % (t0, t0, t1),
                  "v_add_u32 v%d, %d, v%d" % (vPw, R, t0)): d(x)
        d(["s_lshl_b32 s6, s%d, 3" % s_w, "v_xor_b32 v%d, s6, v%d" % (t0, i15)])
        for x in ("v_lshlrev_b32 v%d, 4, v%d" % (t0, t0), "v_and_b32 v%d, 31, v0" % t1, "v_lshlrev_b32 v%d, 9, v%d" % (t1, t1), "v_add_u32 v%d, v%d, v%d" % (t0, t0, t1),
                  "v_lshrrev_b32 v%d, 5, v0" % t1, "v_lshlrev_b32 v%d, 3, v%d" % (t1, t1), "v_add_u32 v%d, v%d, v%d" % (t0, t0, t1),
                  "v_add_u32 v%d, %d, v%d" % (vQw, R, t0)): d(x)
        for x in ("v_lshlrev_b32 v%d, 3, v%d" % (t0, l4), "v_lshrrev_b32 v%d, 2, v%d" % (t1, i15), "v_add_u32 v%d, v%d, v%d" % (t0, t0, t1), "v_lshlrev_b32 v%d, 7, v%d" % (t0, t0)): d(x)
        d(["v_and_b32 v%d, 3, v%d" % (t1, i15), "v_lshrrev_b32 v%d, 1, v%d" % (t1, t1), "s_lshl_b32 s6, s%d, 1" % s_w, "v_add_u32 v%d, s6, v%d" % (t1, t1)])
        for x in ("v_lshrrev_b32 v%d, 3, v%d" % (t4, i15), "v_and_b32 v%d, 1, v%d" % (t3, l4), "v_lshlrev_b32 v%d, 1, v%d" % (t3, t3), "v_or_b32 v%d, v%d, v%d" % (t4, t4, t3),
                  "v_lshlrev_b32 v%d, 1, v%d" % (t4, t4), "v_xor_b32 v%d, v%d, v%d" % (t1, t1, t4), "v_lshlrev_b32 v%d, 4, v%d" % (t1, t1), "v_add_u32 v%d, v%d, v%d" % (t0, t0, t1),
                  "v_and_b32 v%d, 1, v%d" % (t1, i15), "v_lshlrev_b32 v%d, 3, v%d" % (t1, t1), "v_add_u32 v%d, v%d, v%d" % (vWor, t0, t1)): d(x)
        for x in ("v_lshlrev_b32 v%d, 4, v%d" % (t0, i15), "v_add_u32 v%d, %d, v%d" % (vStR, ST, t0)): d(x)
        d(["s_lshl_b32 s6, s%d, 2" % s_w, "v_add_u32 v%d, s6, v%d" % (vStW, vStR)])
        d("v_lshlrev_b32 v%d, 4, v0" % vStO)
        def nonce_pub():
            e("s_or_b32 s4, s2, s%d" % s_w); e("s_cmp_lg_u32 s4, 0"); e("s_cbranch_scc1 L_nononce")
            p.raw(Ins("s_memrealtime s[90:91]", "nocount")); p.raw(Ins("s_waitcnt lgkmcnt(0)", "nocredit")); e("s_or_b32 s90, s90, 1")
            e("v_mov_b32 v%d, s90" % t2); e("v_mov_b32 v%d, 0" % t3)
            p.raw(Ins("global_store_dword v%d, v%d, s[%d:%d] sc1" % (t3, t2, s_dbgp, s_dbgp + 1), 'nocount'))
            e("L_nononce:")
        if not cfg.defer:
            self.emit(D); D = []
            if cfg.fuse: nonce_pub()

        def qacc(dt, qt): return vS + (dt * 3 + qt) * 16
        FA = lambda buf, dt: buf * 20 + dt * 4
        FB = lambda buf, qt: buf * 20 + 8 + qt * 4
        def q_reads(n):
            buf = n & 3; sl = (n % 6) * 2048; xs = ((n >> 2) % 3) * 12288
            rd = []
            for dt in range(2):
                va = vA0 if dt == 0 else vA1
                for jj in range(2):
                    rd.append("ds_read_b64_tr_b16 %s, v%d offset:%d" % (ar(FA(buf, dt) + 2 * jj, 2), va, sl + jj * 512))
            for qt in range(3):
                rd.append("ds_read_b128 %s, v%d offset:%d" % (ar(FB(buf, qt)), vXr[n & 3], xs + qt * 4096))
            return [rd[0], rd[1], rd[4], rd[2], rd[3], rd[5], rd[6]]
        def q_mfmas(n):
            buf = n & 3
            return ["v_mfma_f32_32x32x16_bf16 %s, %s, %s, %s" % (vr(qacc(dt, qt), 16), ar(FA(buf, dt)), ar(FB(buf, qt)), "0" if n == 0 else vr(qacc(dt, qt), 16))
                    for qt in range(3) for dt in range(2)]
        def KFr(i, s): return ar(192 + (i & 1) * 32 + s * 4)
        vKa = [vT[8], vT[9], vT[10], vT[11]]
        def k_addr(i):
            if not cfg.krow: return []
            d = self.kv_slot(i) - R
            return ["s_add_u32 s4, s%d, %d" % (s_kvb, d & 0xffffffff)] + ["v_add_u32 v%d, s4, v%d" % (vKa[j], vQr[j]) for j in range(4)]
        def k_read(i, s):
            if cfg.krow:
                return "ds_read_b128 %s, v%d offset:%d" % (KFr(i, s), vKa[s & 3], (s >> 2) * 256)
            slot = self.kv_slot(i)
            base = (vKr1 if s & 1 else vKr0)
            off = slot + (s >> 1) * 2048
            if off >= 65536:
                base = (vT[11] if s & 1 else vT[10]); off -= 65536
            return "ds_read_b128 %s, v%d offset:%d" % (KFr(i, s), base, off)
        self.emit(wdma(2)); self.emit(wdma(3)); self.emit(xdma(1)); self.emit(wdma(4)); self.emit(wdma(5))
        p.wait_vm("X0"); p.wait_vm("W1")
        e("s_barrier")
        self.emit(self.stamp())
        self.emit(q_reads(0)); self.emit(q_reads(1))
        kb01 = (self.kv_block(0) if not cfg.b0_first else []) + self.kv_block(1)
        k0 = cfg.kstart
        for n in range(28):
            pre = []
            rd = []
            if n + 2 < 28:
                p.wait_vm("W%d" % (n + 2))
                if (n + 2) % 4 == 0:
                    p.wait_vm("X%d" % ((n + 2) >> 2))
                    e("s_waitcnt lgkmcnt(0)")
                    e("s_barrier")
                rd = q_reads(n + 2)
            dm = []
            if n + 6 < 28 and not cfg.exp_nowx: dm += wdma(n + 6)
            if n == 1 and not cfg.exp_nowx: dm += xdma(2)
            if (n + 2) % 4 == 0 and ((n + 2) >> 2) + 2 <= 6 and not cfg.exp_nowx: dm += xdma(((n + 2) >> 2) + 2)
            if k0 <= n < k0 + 6: dm += kb01[(len(kb01) * (n - k0)) // 6:(len(kb01) * (n - k0 + 1)) // 6]
            mf = q_mfmas(n)
            if cfg.defer and n < 16:
                dm = merge(dm, D[(len(D) * n) // 16:(len(D) * (n + 1)) // 16]) if dm else D[(len(D) * n) // 16:(len(D) * (n + 1)) // 16]
            if cfg.defer and n == 17 and cfg.fuse: dm = dm + [nonce_pub]
            seq = []
            nr = len(rd)
            rpos = [min(3, (4 * k) // max(nr, 1)) for k in range(nr)]
            dpos = [2 + (4 * k) // max(len(dm), 1) for k in range(len(dm))]
            for i, m in enumerate(mf):
                seq.append(m)
                seq += [rd[k] for k in range(nr) if rpos[k] == i]
                seq += [dm[k] for k in range(len(dm)) if min(dpos[k], 5) == i]
            self.emit(seq)
        if cfg.code_pf >= 2: self.code_prefetch(vT[0], vT[2])
        self.emit(self.stamp())
        e("s_waitcnt lgkmcnt(0)")
        e("s_barrier")
        blk4 = self.kv_block(2)
        def exch_write(src_of):
            seq = []
            for dt in range(2):
                for rg in range(4):
                    va = vT[12 + ((dt * 4 + rg) & 1)]
                    seq.append("v_xor_b32 v%d, %d, v%d" % (va, (4 * dt + rg) * 16, vQw))
                    for qt in range(3):
                        b = src_of(dt, qt) + rg * 4
                        ta = vT[14 + 2 * qt]
                        seq.append(["v_cvt_pk_bf16_f32 v%d, v%d, v%d" % (ta, b, b + 1), "v_cvt_pk_bf16_f32 v%d, v%d, v%d" % (ta + 1, b + 2, b + 3),
                                    "ds_write_b64 v%d, %s offset:%d" % (va, vr(ta, 2), qt * 16384)])
            return seq
        if cfg.kd3:
            self.emit(k_addr(0))
            pre0 = [lambda: p.wait_vm("B0")] + [k_read(0, s) for s in range(8)]
            self.emit(weave(exch_write(qacc), blk4 + pre0))
        else:
            self.emit(weave(exch_write(qacc), blk4))
        if not cfg.krow:
            e("v_add_u32 v%d, 0x10000, v%d" % (vT[10], vKr0)); e("v_add_u32 v%d, 0x10000, v%d" % (vT[11], vKr1))
        e("s_waitcnt lgkmcnt(0)")
        e("s_barrier")
        self.emit(self.stamp())
        QF = lambda t, s: (s * 6 + t) * 4
        def q_read(t, s):
            return "ds_read_b128 %s, v%d offset:%d" % (ar(QF(t, s)), vQr[s & 3], t * 8192 + (s >> 2) * 256)
        def qk_mfma(i, t, s):
            c = "0" if s == 0 else vr(S(i, t))
            return "v_mfma_f32_16x16x32_bf16 %s, %s, %s, %s" % (vr(S(i, t)), KFr(i, s), ar(QF(t, s)), c)
        def max_ops(i):
            r = []
            for t in range(6):
                b = S(i, t)
                if i == 0:
                    r.append("v_max3_f32 v%d, v%d, v%d, v%d" % (vM[t], b, b + 1, b + 2))
                    r.append("v_max_f32 v%d, v%d, v%d" % (vM[t], vM[t], b + 3))
                else:
                    r.append("v_max3_f32 v%d, v%d, v%d, v%d" % (vM[t], vM[t], b, b + 1))
                    r.append("v_max3_f32 v%d, v%d, v%d, v%d" % (vM[t], vM[t], b + 2, b + 3))
            return r
        for j in range(1, 4): e("v_add_u32 v%d, %d, v%d" % (vVD[j], j * 3072, vV))
        for i in range(8):
            if cfg.kd3 and i == 0:
                dm = self.kv_block(3)
                self.emit([q_read(t, 0) for t in range(6)])
                seq = []
                for s in range(8):
                    nxq = [q_read(t, s + 1) for t in range(6)] if s < 7 else []
                    seq += weave([qk_mfma(0, t, s) for t in range(6)], nxq)
                self.emit(weave(seq, dm, 6, len(seq)))
                if cfg.fine: self.emit(self.stamp())
                continue
            self.emit(k_addr(i))
            p.wait_vm("B%d" % i)
            rd = [k_read(i, s) for s in range(8)]
            mx = max_ops(i - 1) if i >= 1 else []
            if cfg.kd3:
                dm = self.kv_block(i + 3)
                mf = [qk_mfma(i, t, s) for s in range(8) for t in range(6)]
                self.emit(rd)
                self.emit(mf[:6])
                e("s_waitcnt lgkmcnt(0)")
                self.emit(weave(mf[6:], merge(dm, mx), 0, 41))
            else:
                dm = self.kv_block(i + 2) if i >= 1 else []
                if i == 0:
                    self.emit([rd[0]] + [q_read(t, 0) for t in range(6)])
                    for s in range(8):
                        nxq = ([rd[s + 1]] + [q_read(t, s + 1) for t in range(6)]) if s < 7 else []
                        self.emit(weave([qk_mfma(0, t, s) for t in range(6)], nxq))
                else:
                    mf = [qk_mfma(i, t, s) for s in range(8) for t in range(6)]
                    self.emit(rd)
                    self.emit(weave(mf, merge(dm, mx), 2, 47))
            if cfg.fine and i < 7: self.emit(self.stamp())
        if cfg.code_pf >= 2: self.code_prefetch(vT[0], vT[2])
        self.emit(self.stamp())
        e("v_add_u32 v%d, 0x10000, v%d" % (vA0, vVr0)); e("v_add_u32 v%d, 0x10000, v%d" % (vA1, vVr1))
        self.emit(max_ops(7))
        seq = []
        for t in range(6):
            a = vT[0 + (t & 1)]
            seq += ["v_mov_b32 v%d, v%d" % (a, vM[t]), "v_permlane32_swap_b32 v%d, v%d" % (a, vM[t]), "v_max_f32 v%d, v%d, v%d" % (vM[t], vM[t], a),
                    "v_mov_b32 v%d, v%d" % (a, vM[t]), "v_permlane16_swap_b32 v%d, v%d" % (a, vM[t]), "v_max_f32 v%d, v%d, v%d" % (vM[t], vM[t], a),
                    "ds_write_b32 v%d, v%d offset:%d" % (vStW, vM[t], t * 256)]
        chains = [seq[7 * t:7 * t + 7] for t in range(6)]
        chains = []
        for t in range(6):
            a = vT[t]
            chains.append(["v_mov_b32 v%d, v%d" % (a, vM[t]), "v_permlane32_swap_b32 v%d, v%d" % (a, vM[t]), "v_max_f32 v%d, v%d, v%d" % (vM[t], vM[t], a),
                           "v_mov_b32 v%d, v%d" % (a, vM[t]), "v_permlane16_swap_b32 v%d, v%d" % (a, vM[t]), "v_max_f32 v%d, v%d, v%d" % (vM[t], vM[t], a),
                           "ds_write_b32 v%d, v%d offset:%d" % (vStW, vM[t], t * 256)])
        for k in range(7):
            for t in range(6): e(chains[t][k])
        e("s_waitcnt lgkmcnt(0)")
        e("s_barrier")
        for t in range(5): e("ds_read_b128 %s, v%d offset:%d" % (vr(44 + 4 * t, 4), vStR, t * 256))
        for t in range(6):
            b = 44 + 4 * (t % 5)
            if t == 5: e("ds_read_b128 %s, v%d offset:%d" % (vr(b, 4), vStR, t * 256))
            e("v_max3_f32 v%d, v%d, v%d, v%d" % (vM[t], b, b + 1, b + 2)); e("v_max_f32 v%d, v%d, v%d" % (vM[t], vM[t], b + 3))
        for t in range(6): e("v_mul_f32 v%d, s%d, v%d" % (vM[t], s_c, vM[t]))
        for j in range(4): e("v_add_u32 v%d, %d, v%d" % (vXr[j], (R - XB) & 0xffffffff, vXr[j]))
        e("s_mov_b32 s%d, 0x3f803f80" % s_ones)
        for t in range(6): e("v_mov_b32 v%d, 0" % vL[t])
        def exp_ops(i):
            us = []
            for t in range(6):
                b = S(i, t)
                tm = [vT[0], vT[1], vT[2], vT[3]] if t % 2 == 0 else [vT[4], vT[5], vT[6], vT[7]]
                pk = vT[8 + 2 * (t % 2)] if False else (vT[12] + 2 * (t % 2))
                for k in range(4): us.append("v_fma_f32 v%d, v%d, s%d, -v%d" % (tm[k], b + k, s_c, vM[t]))
                for k in range(4): us.append("v_exp_f32 v%d, v%d" % (tm[k], tm[k]))
                us.append("v_cvt_pk_bf16_f32 v%d, v%d, v%d" % (pk, tm[0], tm[1]))
                us.append("v_cvt_pk_bf16_f32 v%d, v%d, v%d" % (pk + 1, tm[2], tm[3]))
                us.append("v_dot2c_f32_bf16 v%d, s%d, v%d" % (vL[t], s_ones, pk))
                us.append("v_dot2c_f32_bf16 v%d, s%d, v%d" % (vL[t], s_ones, pk + 1))
                us.append("ds_write_b64 v%d, %s offset:%d" % (vPw, vr(pk, 2), (i & 1) * 12288 + t * 2048))
            return us
        self.emit(weave(exp_ops(0), self.kv_block(10)) if not cfg.kd3 else exp_ops(0))
        self.emit(self.stamp())
        OAa = lambda dt, qt: (dt * 3 + qt) * 16
        OAv = lambda dt, qt: vS + (dt * 3 + qt) * 16
        VF = lambda buf, dt: 96 + buf * 20 + dt * 4
        PF = lambda buf, qt: 96 + buf * 20 + 8 + qt * 4
        def v_reads(i, u, buf):
            slot = self.kv_slot(8 + i)
            rd = []
            for dt in range(2):
                for jj in range(2):
                    off = slot + (16 * u + 4 * jj) * 128
                    base = vVr1 if dt else vVr0
                    if off >= 65536:
                        base = vA1 if dt else vA0; off -= 65536
                    rd.append("ds_read_b64_tr_b16 %s, v%d offset:%d" % (ar(VF(buf, dt) + 2 * jj, 2), base, off))
            for qt in range(3):
                rd.append("ds_read_b128 %s, v%d offset:%d" % (ar(PF(buf, qt)), vXr[u], (i & 1) * 12288 + qt * 4096))
            return [rd[0], rd[1], rd[4], rd[2], rd[3], rd[5], rd[6]]
        def pv_mfmas(i, u, buf):
            out = []
            for qt in range(3):
                for dt in range(2):
                    d = ar(OAa(dt, qt), 16) if i < 4 else vr(OAv(dt, qt), 16)
                    c = "0" if (i == 0 and u == 0) else d
                    out.append("v_mfma_f32_32x32x16_bf16 %s, %s, %s, %s" % (d, ar(VF(buf, dt)), ar(PF(buf, qt)), c))
            return out
        wo_slot = lambda k: SLOT[(16 + k) % 3]
        def wo_block(k):
            slot = wo_slot(k)
            tag = "WO%d" % k
            us = [lambda: p.group(tag)]
            for i in range(8):
                m0 = (s_kvb, slot + i * 1024) if i % 4 == 0 else None
                us.append(self.dma(vWoD[i], SRD_O, (sWO[k], None), m0, tag, cfg.aux_wo, imm=(i & 3) * 1024))
            return us
        if cfg.rot:
            e("s_cmp_eq_u32 s%d, 7" % s_b); e("s_cselect_b32 s%d, 0, s%d" % (s_ng, s_b))
        else:
            e("s_mov_b32 s%d, 0" % s_ng)
        e("s_mov_b32 s4, s%d" % s_ng)
        for k in range(7):
            if k: e("s_add_u32 s4, s4, 1"); e("s_cmp_eq_u32 s4, 7"); e("s_cselect_b32 s4, 0, s4")
            e("s_lshl_b32 s%d, s4, 7" % sWO[k])
            e("s_lshl_b32 s6, s4, 2"); e("s_add_u32 s6, s6, s%d" % s_w); e("s_mul_i32 s%d, s6, 3072" % sST[k])
        def split_reads(i, u, buf):
            r = v_reads(i, u, buf)
            return [r[2], r[5], r[6]], [r[0], r[1], r[3], r[4]]
        e("s_waitcnt lgkmcnt(0)")
        e("s_barrier")
        p.wait_vm("B8")
        self.emit(v_reads(0, 0, 0))
        for i in range(8):
            fill = exp_ops(i + 1) if i + 1 < 8 else []
            dm = []
            late = []
            if 1 <= i <= 5: dm = self.kv_block(8 + i + 2)
            if i == 1 and cfg.fuse:
                dm = [["v_mov_b32 v%d, 0" % vT[19], lambda: p.group("NC"),
                       Ins("global_load_dword v%d, v%d, s[%d:%d] sc1" % (vNonce, vT[19], s_dbgp, s_dbgp + 1), "NC")]] + dm
            if i == 4:
                a0, a1, a2 = 168, 169, 170
                late += ["v_lshrrev_b32 v%d, 3, v0" % a0, "s_lshl_b32 s6, s%d, 6" % s_w, "v_add_u32 v%d, s6, v%d" % (a0, a0), "v_mul_u32_u24 v%d, 896, v%d" % (a0, a0)]
                late += ["v_lshrrev_b32 v%d, 4, v0" % a1, "v_and_b32 v%d, 1, v%d" % (a1, a1), "v_lshlrev_b32 v%d, 1, v%d" % (a1, a1), "v_and_b32 v%d, 7, v0" % a2, "v_xor_b32 v%d, v%d, v%d" % (a1, a1, a2),
                         "v_lshlrev_b32 v%d, 4, v%d" % (a1, a1)]
                late += ["v_add_u32 v%d, v%d, v%d" % (a2, a0, a1), "v_xor_b32 v%d, 64, v%d" % (a1, a1), "v_add_u32 v%d, v%d, v%d" % (a1, a0, a1)]
                for k in range(8):
                    late.append("v_add_u32 v%d, %d, v%d" % (vWoD[k], k * 7168 - (k & 3) * 1024, a1 if k & 1 else a2))
            if i == 6:
                dm = wo_block(0)
                ch = []
                for t in range(6):
                    a = vT[t]
                    ch.append(["v_mov_b32 v%d, v%d" % (a, vL[t]), "v_permlane32_swap_b32 v%d, v%d" % (a, vL[t]), "v_add_f32 v%d, v%d, v%d" % (vL[t], vL[t], a),
                               "v_mov_b32 v%d, v%d" % (a, vL[t]), "v_permlane16_swap_b32 v%d, v%d" % (a, vL[t]), "v_add_f32 v%d, v%d, v%d" % (vL[t], vL[t], a),
                               "ds_write_b32 v%d, v%d offset:%d" % (vStW, vL[t], 2048 + t * 256)])
                self.red_chain = [ch[t][k] for k in range(7) for t in range(6)]
            if i == 7:
                dm = wo_block(1)
                fill = self.red_chain
                for t in range(6):
                    b = 44 + 4 * (t % 4)
                    late += ["ds_read_b128 %s, v%d offset:%d" % (vr(b, 4), vStR, 2048 + t * 256),
                             ["v_add_f32 v%d, v%d, v%d" % (b, b, b + 1), "v_add_f32 v%d, v%d, v%d" % (b + 2, b + 2, b + 3),
                              "v_add_f32 v%d, v%d, v%d" % (b, b, b + 2), "v_rcp_f32 v%d, v%d" % (vM[t], b)]]
            if i == 4:
                mv = ["v_accvgpr_read_b32 v%d, a%d" % (vS + r, r) for r in range(96)]
                self.emit(weave(mv, dm[:5], 0, 96)); dm = dm[5:]
            mf = []
            for u in range(3):
                mf += weave(pv_mfmas(i, u, u & 1), v_reads(i, u + 1, (u + 1) & 1), 0, 4)
            self.emit(weave(mf, merge(fill, dm), 0, len(mf) - 1))
            e("s_waitcnt lgkmcnt(0)")
            e("s_barrier")
            m3 = pv_mfmas(i, 3, 1)
            if i < 7:
                pr, vrd = split_reads(i + 1, 0, 0)
                seq = [m3[0]] + pr + [m3[1], (lambda j=i + 1: p.wait_vm("B%d" % (8 + j)))] + vrd
                seq += weave(m3[2:], late)
            else:
                seq = weave(m3, late)
            self.emit(seq)
            if cfg.fine and i < 7: self.emit(self.stamp())
        self.emit(self.stamp())
        self.emit(exch_write(OAv))
        if cfg.fuse: self.get_nonce()
        p.wait_vm("WO0")
        e("s_waitcnt lgkmcnt(0)")
        e("s_barrier")
        self.emit(self.stamp())
        OF = QF
        WF = lambda b, s: 192 + 32 * b + s * 4
        ACC = lambda t: vS + t * 4
        def wo_reads(k):
            slot = wo_slot(k)
            base = vWor
            if slot >= 65536: base = vA0
            off0 = slot if slot < 65536 else slot - 65536
            return ["ds_read_b64_tr_b16 %s, v%d offset:%d" % (ar(WF(k & 1, s) + 2 * jj, 2), base, off0 + (32 * s + 4 * jj) * 128) for s in range(8) for jj in range(2)]
        def epi(t):
            b = ACC(t)
            pk = vT[8] + 4 * ((t >> 1) & 1) + 2 * (t & 1)
            u = ["v_mul_f32 v%d, v%d, v%d" % (b + k, vM[t], b + k) for k in range(4)]
            u += ["v_cvt_pk_bf16_f32 v%d, v%d, v%d" % (pk, b, b + 1), "v_cvt_pk_bf16_f32 v%d, v%d, v%d" % (pk + 1, b + 2, b + 3)]
            return u
        def st(pair, k):
            pk = vT[8] + 4 * (pair & 1)
            if cfg.exp_nostore: return []
            return [[lambda: p.group("ST%d_%d" % (k, pair)),
                     Ins("buffer_store_dwordx4 %s, v%d, %s, s%d offen offset:%d %s" % (vr(pk, 4), vStO, srd(SRD_P), sST[k], pair * 1024, cfg.aux_st), "ST%d_%d" % (k, pair))]]
        def tile(k, t):
            return ["v_mfma_f32_16x16x32_bf16 %s, %s, %s, %s" % (vr(ACC(t)), ar(WF(k & 1, s)), ar(OF(t, s)), "0" if s == 0 else vr(ACC(t))) for s in range(8)]
        e("v_add_u32 v%d, 0x10000, v%d" % (vA0, vWor))
        r0 = wo_reads(0)
        self.emit([x for s in range(8) for x in (r0[2 * s:2 * s + 2] + [q_read(0, s)])])
        self.emit(wo_block(2))
        for k in range(7):
            f = [[] for _ in range(6)]
            if k == 0:
                for t in range(5): f[t] += [q_read(t + 1, s) for s in range(8)]
            else:
                f[0] += epi(4); f[1] += epi(5) + st(2, k - 1)
            f[2] += epi(0); f[3] += epi(1) + st(0, k); f[4] += epi(2); f[5] += epi(3) + st(1, k)
            nx = wo_reads(k + 1) if k < 6 else []
            dm = wo_block(k + 3) if (k + 3 <= 6 and not cfg.exp_nowodma) else []
            for t in range(6):
                if t == 2 and k < 6:
                    if k == 5 and cfg.fuse:
                        e("s_waitcnt vmcnt(0)")
                        e("s_barrier")
                        self.emit(self.flag_store(0))
                    else:
                        p.wait_vm("WO%d" % (k + 1))
                        if not cfg.exp_nobar: e("s_barrier")
                ex = []
                if t >= 2:
                    ex = nx[4 * (t - 2):4 * (t - 1)]
                    dd = dm[0:1] + dm[1:3] if t == 2 else dm[1 + 2 * (t - 2):3 + 2 * (t - 2)]
                    ex = merge(ex, dd)
                if cfg.fuse and cfg.epoll and k == 6 and t == 2:
                    ex = ex + [["s_mov_b32 s%d, 0x40000000" % s_oob], self.early_poll_issue(0, 46, 0)]
                self.emit(weave(tile(k, t), merge(f[t], ex), 0, 8))
        self.emit(epi(4)); self.emit(epi(5)); self.emit(st(2, 6))
        self.emit(self.stamp())
        if cfg.fuse:
            self.reduce_tail()
        elif cfg.stamps or cfg.dbg:
            e("s_waitcnt vmcnt(0)")
            self.emit(self.stamp())
        e("L_k1_end:")
        e("s_endpgm")
        p.resolve()
        return p.text()

    def get_nonce(self):
        cfg, p, e = self.cfg, self.p, self.p.e
        e("v_readfirstlane_b32 s%d, v%d" % (s_nonce, vNonce))
        e("s_cmp_lg_u32 s%d, 0" % s_nonce); e("s_cbranch_scc1 L_havenonce")
        e("L_pollnonce:")
        e("v_mov_b32 v44, 0")
        p.raw(Ins("global_load_dword v%d, v44, s[%d:%d] sc1" % (vNonce, s_dbgp, s_dbgp + 1), "nocount"))
        p.raw(Ins("s_waitcnt vmcnt(0)", "nocredit"))
        e("v_readfirstlane_b32 s%d, v%d" % (s_nonce, vNonce))
        e("s_cmp_eq_u32 s%d, 0" % s_nonce); e("s_cbranch_scc1 L_pollnonce")
        e("L_havenonce:")
        e("s_lshl_b32 s4, s%d, 8" % s_G); e("s_add_u32 s4, s4, %d" % FLAG_OFF)
        e("s_add_u32 s68, s58, s4"); e("s_addc_u32 s69, s59, 0")

    def flag_store(self, which):
        lab = "L_nofl%d" % which
        return ["s_cmp_lg_u32 s%d, 0" % s_w, "s_cbranch_scc1 %s" % lab,
                "v_mov_b32 v42, s%d" % s_nonce, "s_lshl_b32 s4, s%d, 2" % s_h, "s_add_u32 s4, s4, %d" % (128 * which), "v_mov_b32 v43, s4",
                "s_mov_b64 exec, 1",
                Ins("global_store_dword v43, v42, s[68:69] sc1", "nocount"),
                "s_mov_b64 exec, -1", "s_nop 4", lab + ":"]

    def poll(self, which):
        e, p = self.p.e, self.p
        e("s_mov_b64 exec, 0xffff")
        e("v_lshlrev_b32 v45, 2, v0")
        e("L_poll%d:" % which)
        p.raw(Ins("global_load_dword v46, v45, s[68:69] offset:%d sc1" % (128 * which), "nocount"))
        p.raw(Ins("s_waitcnt vmcnt(0)", "nocredit"))
        e("v_cmp_ne_u32 vcc, s%d, v46" % s_nonce)
        e("s_nop 4")
        e("s_cbranch_vccz L_polldone%d" % which)
        e("s_sleep 2")
        e("s_branch L_poll%d" % which)
        e("L_polldone%d:" % which)
        e("s_mov_b64 exec, -1")

    def early_poll_issue(self, which, dst, ndummy):
        p = self.p
        u = ["v_and_b32 v45, 15, v0", "v_lshlrev_b32 v45, 2, v45", lambda: p.group("PL%d" % which),
             Ins("global_load_dword v%d, v45, s[68:69] offset:%d sc1" % (dst, 128 * which), "PL%d" % which)]
        for k in range(ndummy):
            u.append(Ins("buffer_load_dword v%d, v%d, %s, s%d offen" % (192 + 8 * which + k, vStO, srd(SRD_P), s_oob), "DUM"))
        return u

    def early_poll_check(self, which, dst):
        e = self.p.e
        e("v_cmp_ne_u32 vcc, s%d, v%d" % (s_nonce, dst))
        e("s_nop 4")
        e("s_cbranch_vccz L_ep%d" % which)
        self.poll(which)
        e("L_ep%d:" % which)

    def unit(self, su, tagname, after_loads=None, before_stores=None):
        cfg, p, e = self.cfg, self.p, self.p.e
        SG = 64
        e("s_mul_hi_u32 s5, s%d, %d" % (su, (1 << 32) // 12 + 1)); e("s_mul_i32 s6, s5, 12"); e("s_sub_u32 s6, s%d, s6" % su)
        e("s_add_u32 s5, s5, s%d" % s_ng); e("s_cmp_ge_u32 s5, 7"); e("s_cselect_b32 s7, 7, 0"); e("s_sub_u32 s5, s5, s7")
        e("s_mul_i32 s72, s5, 12"); e("s_add_u32 s72, s72, s6"); e("s_lshl_b32 s72, s72, 10")
        e("s_mul_hi_u32 s7, s6, %d" % ((1 << 32) // 3 + 1)); e("s_mul_i32 s76, s7, 3"); e("s_sub_u32 s76, s6, s76")
        e("s_lshl_b32 s5, s5, 7"); e("s_lshl_b32 s7, s7, 5"); e("s_mul_i32 s76, s76, %d" % (32 * 1792))
        e("s_add_u32 s5, s5, s7"); e("s_add_u32 s5, s5, s76"); e("s_add_u32 s73, s5, s70")
        e("s_cmp_ge_u32 s%d, 84" % su)
        e("s_cselect_b32 s72, 0x40000000, s72"); e("s_cselect_b32 s73, 0x40000000, s73")
        for h in range(16):
            e("s_add_u32 s5, s72, %d" % (h * PART))
            p.raw(Ins("buffer_load_dwordx4 %s, v%d, %s, s5 offen %s" % (vr(64 + 4 * h, 4), vStO, srd(SG), cfg.aux_rd), tagname))
        if after_loads: self.emit(after_loads)
        acc = list(range(48, 56))
        for a in acc: e("v_mov_b32 v%d, 0" % a)
        for h in range(16):
            b = 64 + 4 * h
            for q in range(4):
                e("v_dot2c_f32_bf16 v%d, s74, v%d" % (acc[2 * q], b + q)); e("v_dot2c_f32_bf16 v%d, s75, v%d" % (acc[2 * q + 1], b + q))
        for q in range(4): e("v_cvt_pk_bf16_f32 v%d, v%d, v%d" % (56 + q, acc[2 * q], acc[2 * q + 1]))
        if before_stores: before_stores()
        e("buffer_store_dwordx2 v[56:57], v41, %s, s73 offen %s" % (srd(SRD_OUT), cfg.aux_out))
        e("s_add_u32 s5, s73, %d" % (16 * 1792))
        e("buffer_store_dwordx2 v[58:59], v41, %s, s5 offen %s" % (srd(SRD_OUT), cfg.aux_out))

    def reduce_tail(self):
        cfg, p, e = self.cfg, self.p, self.p.e
        SG = 64
        e("s_mul_i32 s4, s%d, %d" % (s_G, PART * 16))
        e("s_add_u32 s%d, s58, s4" % SG); e("s_addc_u32 s%d, s59, 0" % (SG + 1)); e("s_mov_b32 s%d, %d" % (SG + 2, PART * 16)); e("s_mov_b32 s%d, 0x20000" % (SG + 3))
        e("s_mul_i32 s70, s%d, %d" % (s_b, 96 * 1792)); e("s_mul_i32 s4, s%d, 896" % s_br); e("s_add_u32 s70, s70, s4")
        e("v_and_b32 v41, 15, v0"); e("v_mul_u32_u24 v41, 1792, v41"); e("v_lshrrev_b32 v42, 4, v0"); e("v_lshlrev_b32 v42, 3, v42"); e("v_add_u32 v41, v41, v42")
        e("s_mov_b32 s74, 0x3f80"); e("s_mov_b32 s75, 0x3f800000")
        e("s_lshl_b32 s61, s%d, 2" % s_h); e("s_add_u32 s61, s61, s%d" % s_w)
        e("s_cmp_ge_u32 s61, 60"); e("s_cselect_b32 s61, 127, s61")
        e("s_lshl_b32 s62, s%d, 4" % s_w); e("s_add_u32 s62, s62, s%d" % s_h); e("s_add_u32 s62, s62, 60")
        if cfg.epoll:
            e("s_waitcnt vmcnt(0)")
            self.early_poll_check(0, 46)
            e("s_barrier")
            self.emit(self.stamp())
            self.emit(self.flag_store(1))
            self.unit(61, "RD1", after_loads=self.early_poll_issue(1, 60, 0), before_stores=lambda: self.early_poll_check(1, 60))
            self.emit(self.stamp())
        else:
            e("s_cmp_eq_u32 s%d, 3" % s_w); e("s_cbranch_scc0 L_np1")
            self.poll(0)
            e("L_np1:")
            e("s_waitcnt vmcnt(0)")
            e("s_barrier")
            self.emit(self.stamp())
            self.emit(self.flag_store(1))
            self.unit(61, "RD1")
            e("s_cmp_eq_u32 s%d, 3" % s_w); e("s_cbranch_scc0 L_np2")
            self.poll(1)
            e("L_np2:")
            e("s_barrier")
            self.emit(self.stamp())
        e("s_cmp_ge_u32 s%d, 2" % s_w); e("s_cbranch_scc1 L_fin")
        self.unit(62, "RD2")
        e("L_fin:")
        if cfg.stamps or cfg.dbg:
            e("s_waitcnt vmcnt(0)")
            self.emit(self.stamp())

def desc(name, vg, acc, sg=102):
    return """.amdhsa_kernel %s
  .amdhsa_next_free_vgpr %d
  .amdhsa_next_free_sgpr %d
  .amdhsa_accum_offset %d
  .amdhsa_group_segment_fixed_size 0
  .amdhsa_kernarg_size 104
  .amdhsa_user_sgpr_count 2
  .amdhsa_user_sgpr_kernarg_segment_ptr 1
  .amdhsa_system_sgpr_workgroup_id_x 1
  .amdhsa_float_denorm_mode_32 3
.end_amdhsa_kernel
""" % (name, vg, sg, acc)

REF = "concat_heads__gqa_block_cached__mha_block_cached__near_ridge.s.ref"
HEAD = open(REF).read().split("; Override launch geometry")[0] if os.path.exists(REF) else ""

def generate(cfg):
    k1 = K1(cfg).build()
    out = HEAD
    out += "; @launch grid=(256,1,1) block=(256,1,1) lds=163840\n"
    out += '.amdgcn_target "amdgcn-amd-amdhsa--gfx950"\n.text\n'
    out += ".globl %s\n.p2align 8\n.type %s,@function\n%s:\n%s\n" % (KNAME, KNAME, KNAME, k1)
    out += '.section .rodata,"a"\n.p2align 6\n' + desc(KNAME, 512, 256)
    return out

if __name__ == "__main__":
    kw = {}
    for a in sys.argv[2:]:
        k, v = a.split("=", 1)
        kw[k] = eval(v)
    txt = generate(Cfg(**kw))
    open(sys.argv[1], "w").write(txt)
    print("wrote", sys.argv[1], len(txt), "bytes,", txt.count("\n"), "lines")
```

```python
import sys, os
from asmgen import Prog, Ins

KNAME = "concat_heads__gqa_block_cached__mha_block_cached__near_ridge_kernel"

class Cfg:
    aux_kv = "nt"
    aux_w = ""
    aux_x = ""
    aux_wo = ""
    aux_st = "sc1"
    aux_rd = "sc1"
    stamps = False
    dbg = False
    dbg_wg = 128
    rot = True
    fuse = True
    fine = False
    early_dma = True
    krow = True
    code_pf = 1
    code_bytes = 32768
    f1_drain = True
    exp_kpre = 4
    kstart = 22
    kd3 = False
    h5 = 2
    wpro = 6
    wsched = {0: [6], 1: [7], 2: [8], 3: [9], 4: [10], 5: [11, 12], 6: [13, 14], 7: [15, 16], 8: [17, 18], 9: [19, 20], 10: [21, 22], 11: [23], 12: [24, 25], 13: [26], 14: [27]}
    h5_plan = {17: (0, 4), 18: (4, 7), 22: (7, 11), 23: (11, 14), 27: (14, 16)}
    kfirst = 0
    wo1_late = 1
    mv_weave = False
    prescale = True
    sumadd = True
    exp_v = ''
    s4 = False
    b2s0 = True
    kpace = True
    xlate = False
    exp_nostore = False
    exp_nowodma = False
    exp_nobar = False
    epoll = True
    aux_out = ""
    pf_first = True
    defer = True
    t00 = False
    aswap = False
    kbar = False
    rot_hh = 0
    b0_first = False
    tlbwarm = True
    exp_nowx = False
    def __init__(self, **kw):
        for k, v in kw.items():
            assert hasattr(Cfg, k), k
            setattr(self, k, v)

SLOT = [0, 32768, 65536, 122880]
WB = 65536
XB = 114688
R = 98304
ST = 159744
PART = 86016
TS_OFF = 64 << 20
FLAG_OFF = 32 << 20

vK0, vK1, vV, vW, vX = 1, 2, 3, 4, 5
vVD = [3, 41, 42, 43]
vKr0, vKr1 = 6, 7
vVr0, vVr1 = 8, 9
vXr = [10, 11, 12, 13]
vQr = [14, 15, 16, 17]
vPw = 18
vQw = 19
vWor = 20
vStW, vStR = 21, 22
vStO = 23
vM = [24, 25, 26, 27, 28, 29]
vL = [30, 31, 32, 33, 34, 35]
vWoD = list(range(160, 168))
vA0, vA1 = 38, 39
vNonce = 40
vKT = 6
vT = list(range(44, 64))
vS = 64

def S(i, t): return vS + (i * 6 + t) * 4

s_w = 3
sT0, sSoff, sT1, sT2 = 4, 5, 6, 7
SRD_X, SRD_W, SRD_K, SRD_V, SRD_O, SRD_P = 8, 12, 16, 20, 24, 28
s_c = 32
s_kvb = 33
s_wrb = 34
s_w1k = 35
sCW = list(range(36, 43))
sCX = list(range(44, 51))
sWO = list(range(36, 43))
sST = list(range(44, 51))
s_ws = 58
s_cnt = 60
s_ng, s_ng2, s_slotR, s_slotN, s_slotD, s_stoff, s_stprev, s_wooff = 71, 72, 73, 74, 75, 76, 77, 78
s_b, s_hh, s_h, s_br = 79, 80, 81, 82
s_G = 83
s_tsoff = 88
s_nonce = 94
s_ones = 95
s_swap = 57
s_oob = 78
SRD_G, SRD_OUT = 64, 68
SRD_OUT = 52
s_dbgp = 96
s_outp = 98

def srd(n): return "s[%d:%d]" % (n, n + 3)
def vr(n, c=4): return "v[%d:%d]" % (n, n + c - 1)
def ar(n, c=4): return "a[%d:%d]" % (n, n + c - 1)

def weave(main, fill, lo=0, hi=None):
    if hi is None: hi = len(main)
    out = []
    n = hi - lo
    k = 0
    for i, m in enumerate(main):
        out.append(m)
        if lo <= i < hi:
            tgt = min(len(fill), -(-(len(fill) * (i - lo + 1)) // n))
            while k < tgt:
                out.append(fill[k]); k += 1
    while k < len(fill):
        out.append(fill[k]); k += 1
    return out

def merge(a, b):
    if not a: return list(b)
    if not b: return list(a)
    return weave(a, b) if len(a) >= len(b) else weave(b, a)

class K1:
    def __init__(self, cfg):
        self.cfg = cfg
        self.p = Prog()
        self.nstamp = 0
        self.vTs = 62
        self.npf = 0

    def emit(self, seq):
        for u in seq:
            if isinstance(u, (list, tuple)): self.emit(u)
            elif callable(u): u()
            elif isinstance(u, Ins): self.p.raw(u)
            else: self.p.e(u)

    def dma(self, vaddr, srdn, soff, m0, tag, aux, imm=0):
        u = []
        if m0 is not None:
            if isinstance(m0, int): u.append("s_mov_b32 m0, %d" % m0)
            else: u.append("s_add_u32 m0, s%d, %d" % m0 if m0[1] else "s_mov_b32 m0, s%d" % m0[0])
        if isinstance(soff, int) and self.cfg.aswap and srdn in (SRD_K, SRD_V):
            u.append("s_xor_b32 s%d, s%d, %d" % (sSoff, s_swap, soff)); sreg = sSoff
        elif isinstance(soff, int):
            u.append("s_mov_b32 s%d, %d" % (sSoff, soff)); sreg = sSoff
        elif soff[1] is None:
            sreg = soff[0]
            if m0 is not None: u.append("s_nop 0")
        else:
            u.append("s_add_u32 s%d, s%d, %d" % (sSoff, soff[0], soff[1])); sreg = sSoff
        u.append(Ins("buffer_load_dwordx4 v%d, %s, s%d offen %s%s lds" % (vaddr, srd(srdn), sreg, ("offset:%d " % imm) if imm else "", aux), tag))
        return u

    def stamp(self):
        cfg = self.cfg
        if cfg.dbg:
            i = self.nstamp; self.nstamp += 1
            lab = "L_st%d" % i
            return ["s_cmp_lg_u32 s89, 0", "s_cbranch_scc1 %s" % lab,
                    Ins("s_memrealtime s[86:87]", "nocount"), Ins("s_waitcnt lgkmcnt(0)", "nocredit"),
                    "v_mov_b32 v%d, s86" % self.vTs, "v_mov_b32 v%d, %d" % (self.vTs + 1, 4 * (i + 1)),
                    Ins("global_store_dword v%d, v%d, s[100:101]" % (self.vTs + 1, self.vTs), 'nocount'), lab + ":"]
        if not cfg.stamps: return []
        i = self.nstamp; self.nstamp += 1
        return ["s_memrealtime s[86:87]", "s_memtime s[92:93]", "s_waitcnt lgkmcnt(0)",
                "v_mov_b32 v%d, s86" % self.vTs, "v_mov_b32 v%d, s%d" % (self.vTs + 1, s_tsoff),
                Ins("global_store_dword v%d, v%d, s[84:85] offset:%d" % (self.vTs + 1, self.vTs, 4 * i), 'nocount'),
                "v_mov_b32 v%d, s92" % self.vTs,
                Ins("global_store_dword v%d, v%d, s[84:85] offset:%d" % (self.vTs + 1, self.vTs, 128 + 4 * i), 'nocount')]

    def code_prefetch(self, t0, t2):
        e, p = self.p.e, self.p
        i = self.npf; self.npf += 1
        e("s_cmp_lg_u32 s%d, 0" % s_w); e("s_cbranch_scc1 L_nopf%d" % i)
        e("s_getpc_b64 s[90:91]")
        e("L_pc%d:" % i)
        e("s_sub_u32 s90, s90, L_pc%d-%s" % (i, KNAME)); e("s_subb_u32 s91, s91, 0")
        e("s_lshr_b32 s4, s2, 3"); e("s_lshl_b32 s4, s4, 11")
        e("v_lshlrev_b32 v%d, 7, v0" % t0); e("v_add_u32 v%d, s4, v%d" % (t0, t0))
        e("v_mov_b32 v%d, s91" % (t2 + 1))
        e("v_add_co_u32 v%d, vcc, s90, v%d" % (t2, t0)); e("v_addc_co_u32 v%d, vcc, 0, v%d, vcc" % (t2 + 1, t2 + 1))
        e("v_cmp_gt_u32 vcc, L_k1_end-%s, v%d" % (KNAME, t0))
        e("s_and_b64 exec, vcc, 0xffff")
        e("s_cbranch_execz L_nopfx%d" % i)
        p.raw(Ins("global_load_dword v%d, v[%d:%d], off" % (vNonce, t2, t2 + 1), "nocount"))
        e("L_nopfx%d:" % i)
        e("s_mov_b64 exec, -1")
        e("s_nop 4")
        e("L_nopf%d:" % i)

    def kv_slot(self, n):
        if self.cfg.h5 == 1: return SLOT[n] if n < 2 else SLOT[(0, 2, 1)[(n - 2) % 3]]
        return SLOT[n % 4] if self.cfg.s4 else SLOT[n % 3]
    def kv_block(self, n):
        cfg = self.cfg
        slot = self.kv_slot(n)
        tag = "B%d" % n
        us = [lambda: self.p.group(tag)]
        if n < 8 and cfg.krow:
            for m in range(8):
                tmp = vK1 if m & 1 else vKT
                u = ["v_xor_b32 v%d, %d, v%d" % (tmp, 32 * m, vK0)]
                if m % 4 == 0:
                    u += self.dma(tmp, SRD_K, n * 32768 + m * 1024, (s_kvb, slot + m * 1024), tag, cfg.aux_kv)
                else:
                    u += self.dma(tmp, SRD_K, (sSoff, None), None, tag, cfg.aux_kv, imm=(m % 4) * 1024)
                us.append(u)
        elif n < 8:
            for m in range(4):
                for kh in range(2):
                    us.append(self.dma(vK1 if kh else vK0, SRD_K, n * 32768 + m * 128, (s_kvb, slot + (m * 2 + kh) * 1024), tag, cfg.aux_kv))
        else:
            for m in range(8):
                if m % 4 == 0:
                    us.append(self.dma(vVD[0], SRD_V, (n - 8) * 32768 + m * 4096, (s_kvb, slot + m * 1024), tag, cfg.aux_kv))
                else:
                    us.append(self.dma(vVD[m % 4], SRD_V, (sSoff, None), None, tag, cfg.aux_kv, imm=(m % 4) * 1024))
        return us

    def build(self):
        cfg, p, e = self.cfg, self.p, self.p.e
        if cfg.stamps and cfg.t00: p.raw(Ins("s_memrealtime s[76:77]", "nocount"))
        e("s_cmp_ge_u32 s2, 256")
        e("s_cbranch_scc1 L_k1_end")
        e("s_load_dwordx8 s[36:43], s[0:1], 0")
        e("s_load_dwordx2 s[44:45], s[0:1], 32")
        e("s_load_dwordx8 s[48:55], s[0:1], 40")
        e("s_load_dwordx2 s[56:57], s[0:1], 72")
        e("s_load_dwordx2 s[58:59], s[0:1], 96")
        e("s_load_dwordx4 s[96:99], s[0:1], 80")
        e("v_lshrrev_b32 v60, 6, v0")
        e("v_and_b32 v0, 63, v0")
        e("v_readfirstlane_b32 s%d, v60" % s_w)
        if cfg.code_pf and cfg.pf_first: self.code_prefetch(vT[0], vT[2])
        e("s_and_b32 s4, s2, 7")
        e("s_lshr_b32 s6, s2, 3")
        e("s_lshr_b32 s%d, s6, 4" % s_br)
        e("s_lshr_b32 s%d, s6, 1" % s_b)
        e("s_and_b32 s%d, s%d, 7" % (s_b, s_b))
        e("s_and_b32 s%d, s6, 1" % s_hh)
        e("s_lshl_b32 s%d, s4, 1" % s_h)
        e("s_add_u32 s%d, s%d, s%d" % (s_h, s_h, s_hh))
        e("s_lshl_b32 s6, s%d, 3" % s_b); e("s_add_u32 s6, s6, s4")
        e("s_lshl_b32 s7, s%d, 4" % s_b); e("s_add_u32 s7, s7, s%d" % s_h)
        e("s_cmp_eq_u32 s%d, 0" % s_br)
        e("s_cselect_b32 s6, s6, s7")
        e("s_lshl_b32 s61, s6, 18")
        e("s_lshl_b32 s%d, s%d, 13" % (s_kvb, s_w))
        e("s_mul_i32 s%d, s%d, 12288" % (s_wrb, s_w)); e("s_add_u32 s%d, s%d, %d" % (s_wrb, s_wrb, WB))
        e("s_lshl_b32 s%d, s%d, 10" % (s_w1k, s_w))
        e("s_mov_b32 s%d, 0x3db8aa3b" % s_c)
        e("s_lshl_b32 s%d, s%d, 3" % (s_G, s_br)); e("s_add_u32 s%d, s%d, s%d" % (s_G, s_G, s_b))
        if cfg.rot:
            e("s_mul_i32 s62, s%d, %d" % (s_hh, cfg.rot_hh)); e("s_add_u32 s62, s62, s%d" % s_b)
            e("s_cmp_ge_u32 s62, 7"); e("s_cselect_b32 s6, 7, 0"); e("s_sub_u32 s62, s62, s6")
        else:
            e("s_mov_b32 s62, 0")
        t0, t1, t2, t3, t4 = vT[:5]
        l3, l7, l4, i15 = vT[5:9]
        e("v_lshrrev_b32 v%d, 3, v0" % l3)
        e("v_and_b32 v%d, 7, v0" % l7)
        e("v_lshrrev_b32 v%d, 4, v0" % l4)
        e("v_and_b32 v%d, 15, v0" % i15)
        e("v_and_b32 v%d, 1, v%d" % (t0, l4)); e("v_lshlrev_b32 v%d, 2, v%d" % (t0, t0))
        e("v_xor_b32 v%d, v%d, v%d" % (t0, l7, t0)); e("v_lshlrev_b32 v%d, 4, v%d" % (t0, t0))
        e("s_lshl_b32 s6, s%d, 7" % s_w)
        e("v_add_u32 v%d, s6, v%d" % (t0, t0))
        e("v_lshlrev_b32 v%d, 13, v%d" % (t1, l3)); e("v_add_u32 v%d, v%d, v%d" % (vW, t0, t1))
        e("v_lshlrev_b32 v%d, 9, v%d" % (t1, l3)); e("v_add_u32 v%d, v%d, v%d" % (vV, t0, t1))
        e("s_lshl_b32 s6, s%d, 3" % s_w); e("v_add_u32 v%d, s6, v%d" % (t2, l3)); e("v_mul_u32_u24 v%d, 896, v%d" % (t2, t2))
        e("s_and_b32 s7, s%d, 1" % s_w); e("s_lshl_b32 s7, s7, 2")
        e("v_add_u32 v%d, s7, v%d" % (t3, l4)); e("v_xor_b32 v%d, v%d, v%d" % (t3, l7, t3)); e("v_lshlrev_b32 v%d, 4, v%d" % (t3, t3))
        e("v_add_u32 v%d, v%d, v%d" % (vX, t2, t3))
        e("s_waitcnt lgkmcnt(0)")
        if cfg.stamps:
            e("s_mov_b32 s84, s58"); e("s_mov_b32 s85, s59")
            e("s_lshl_b32 s%d, s2, 2" % s_tsoff); e("s_add_u32 s%d, s%d, s%d" % (s_tsoff, s_tsoff, s_w))
            e("s_lshl_b32 s%d, s%d, 8" % (s_tsoff, s_tsoff)); e("s_add_u32 s%d, s%d, %d" % (s_tsoff, s_tsoff, TS_OFF))
        if cfg.dbg:
            e("s_sub_u32 s89, s2, %d" % cfg.dbg_wg); e("s_or_b32 s89, s89, s%d" % s_w)
            e("s_mov_b32 s100, s98"); e("s_mov_b32 s101, s99")
        if cfg.stamps and cfg.t00:
            i = self.nstamp; self.nstamp += 1
            e("v_mov_b32 v62, s76"); e("v_mov_b32 v63, s%d" % s_tsoff)
            p.raw(Ins("global_store_dword v63, v62, s[84:85] offset:%d" % (4 * i), "nocount"))
        self.emit(self.stamp())
        e("s_cmp_eq_u32 s%d, 0" % s_br)
        for (dst, a, b) in ((SRD_X, 36, 48), (SRD_K, 38, 50), (SRD_V, 40, 52), (SRD_W, 42, 54), (SRD_O, 44, 56)):
            e("s_cselect_b32 s%d, s%d, s%d" % (dst, a, b)); e("s_cselect_b32 s%d, s%d, s%d" % (dst + 1, a + 1, b + 1))
        e("s_mul_i32 s4, s%d, %d" % (s_b, PART))
        e("s_add_u32 s%d, s%d, s4" % (SRD_X, SRD_X)); e("s_addc_u32 s%d, s%d, 0" % (SRD_X + 1, SRD_X + 1))
        e("s_mov_b32 s%d, %d" % (SRD_X + 2, PART)); e("s_mov_b32 s%d, 0x20000" % (SRD_X + 3))
        e("s_lshl_b32 s4, s%d, 9" % s_h)
        e("s_add_u32 s%d, s%d, s4" % (SRD_W, SRD_W)); e("s_addc_u32 s%d, s%d, 0" % (SRD_W + 1, SRD_W + 1))
        e("s_sub_u32 s%d, %d, s4" % (SRD_W + 2, 448 * 8192)); e("s_mov_b32 s%d, 0x20000" % (SRD_W + 3))
        def chunk_offsets(cs):
            for c in cs:
                if c == 0: e("s_mov_b32 s63, s62")
                else:
                    e("s_add_u32 s63, s63, 1"); e("s_cmp_eq_u32 s63, 7"); e("s_cselect_b32 s63, 0, s63")
                e("s_lshl_b32 s%d, s63, 7" % sCX[c]); e("s_lshl_b32 s%d, s63, 19" % sCW[c])
        chunk_offsets([0])
        def xdma(c):
            us = [lambda: p.group("X%d" % c)]
            for i in range(3):
                us.append(self.dma(vX, SRD_X, (sCX[c], i * 32 * 896), (s_w1k, XB + (c % 3) * 12288 + i * 4096), "X%d" % c, cfg.aux_x))
            return us
        def wslot(n):
            if not cfg.h5: return (True, (n % 6) * 2048)
            j = n % 14
            if j < 4: return (False, SLOT[0] + j * 2048)
            if j < 8: return (False, SLOT[1] + (j - 4) * 2048)
            return (True, (j - 8) * 2048)
        def wdma(n):
            us = [lambda: p.group("W%d" % n)]
            ring, off = wslot(n)
            for m in range(2):
                us.append(self.dma(vW, SRD_W, (sCW[n >> 2], ((n & 3) * 16 + 8 * m) * 8192), (s_wrb if ring else s_kvb, off + m * 1024), "W%d" % n, cfg.aux_w))
            return us
        self.emit(xdma(0)); self.emit(wdma(0)); self.emit(wdma(1))
        if cfg.b0_first:
            e("s_add_u32 s%d, s%d, s61" % (SRD_K, SRD_K)); e("s_addc_u32 s%d, s%d, 0" % (SRD_K + 1, SRD_K + 1))
            e("s_mov_b32 s%d, 262144" % (SRD_K + 2)); e("s_mov_b32 s%d, 0x20000" % (SRD_K + 3))
            e("v_lshrrev_b32 v%d, 5, v0" % t0); e("v_and_b32 v%d, 31, v0" % t1); e("v_xor_b32 v%d, v%d, v%d" % (t1, t1, t0))
            e("v_lshlrev_b32 v%d, 4, v%d" % (t1, t1)); e("v_lshlrev_b32 v%d, 9, v%d" % (t0, t0)); e("v_add_u32 v%d, v%d, v%d" % (t0, t0, t1))
            e("v_add_u32 v%d, s%d, v%d" % (vK0, s_kvb, t0))
            self.emit(self.kv_block(0))
        if cfg.code_pf and not cfg.pf_first: self.code_prefetch(t0, t2)
        if cfg.aswap:
            e("s_cmp_eq_u32 s%d, 0" % s_br); e("s_cselect_b32 s%d, s%d, 0" % (s_swap, s_hh)); e("s_lshl_b32 s%d, s%d, 15" % (s_swap, s_swap))
        if cfg.kfirst:
            e("s_add_u32 s%d, s%d, s61" % (SRD_K, SRD_K)); e("s_addc_u32 s%d, s%d, 0" % (SRD_K + 1, SRD_K + 1))
            e("s_mov_b32 s%d, 262144" % (SRD_K + 2)); e("s_mov_b32 s%d, 0x20000" % (SRD_K + 3))
            for x in ("v_lshrrev_b32 v%d, 5, v0" % t0, "v_and_b32 v%d, 31, v0" % t1, "v_xor_b32 v%d, v%d, v%d" % (t1, t1, t0),
                      "v_lshlrev_b32 v%d, 4, v%d" % (t1, t1), "v_lshlrev_b32 v%d, 9, v%d" % (t0, t0), "v_add_u32 v%d, v%d, v%d" % (t0, t0, t1),
                      "v_add_u32 v%d, s%d, v%d" % (vK0, s_kvb, t0)): e(x)
            for b in range(cfg.kfirst): self.emit(self.kv_block(b))
        chunk_offsets(range(1, 7))
        e("v_lshrrev_b32 v%d, 5, v0" % t0); e("v_lshlrev_b32 v%d, 3, v%d" % (t0, t0)); e("v_lshrrev_b32 v%d, 2, v%d" % (t1, i15))
        e("v_add_u32 v%d, v%d, v%d" % (t0, t0, t1)); e("v_lshlrev_b32 v%d, 7, v%d" % (t0, t0))
        e("v_and_b32 v%d, 1, v%d" % (t1, l4)); e("v_lshlrev_b32 v%d, 1, v%d" % (t1, t1))
        e("v_and_b32 v%d, 3, v%d" % (t4, i15)); e("v_lshrrev_b32 v%d, 1, v%d" % (t4, t4)); e("v_add_u32 v%d, v%d, v%d" % (t1, t1, t4))
        e("v_lshrrev_b32 v%d, 3, v%d" % (t4, i15)); e("v_lshlrev_b32 v%d, 2, v%d" % (t4, t4)); e("v_xor_b32 v%d, v%d, v%d" % (t1, t1, t4))
        e("v_lshlrev_b32 v%d, 4, v%d" % (t1, t1)); e("v_add_u32 v%d, v%d, v%d" % (t0, t0, t1))
        e("v_and_b32 v%d, 1, v%d" % (t1, i15)); e("v_lshlrev_b32 v%d, 3, v%d" % (t1, t1)); e("v_add_u32 v%d, v%d, v%d" % (t0, t0, t1))
        e("v_add_u32 v%d, s%d, v%d" % (vVr0, s_kvb, t0)); e("v_xor_b32 v%d, 64, v%d" % (vVr1, vVr0))
        e("v_add_u32 v%d, s%d, v%d" % (vA0, s_wrb, t0)); e("v_xor_b32 v%d, 64, v%d" % (vA1, vA0))
        e("v_and_b32 v%d, 31, v0" % t0); e("v_lshrrev_b32 v%d, 1, v%d" % (t1, t0)); e("v_and_b32 v%d, 7, v%d" % (t1, t1))
        e("v_lshrrev_b32 v%d, 5, v0" % t4); e("v_xor_b32 v%d, v%d, v%d" % (t1, t1, t4)); e("v_lshlrev_b32 v%d, 4, v%d" % (t1, t1))
        e("v_lshlrev_b32 v%d, 7, v%d" % (t0, t0)); e("v_add_u32 v%d, v%d, v%d" % (t0, t0, t1)); e("v_add_u32 v%d, %d, v%d" % (vXr[0], XB, t0))
        for j in range(1, 4): e("v_xor_b32 v%d, %d, v%d" % (vXr[j], 32 * j, vXr[0]))
        D = []
        d = D.append
        if not cfg.kfirst:
            d(["s_add_u32 s%d, s%d, s61" % (SRD_K, SRD_K), "s_addc_u32 s%d, s%d, 0" % (SRD_K + 1, SRD_K + 1)])
            d("s_mov_b32 s%d, 262144" % (SRD_K + 2)); d("s_mov_b32 s%d, 0x20000" % (SRD_K + 3))
        d(["s_add_u32 s%d, s%d, s61" % (SRD_V, SRD_V), "s_addc_u32 s%d, s%d, 0" % (SRD_V + 1, SRD_V + 1)])
        d("s_mov_b32 s%d, 262144" % (SRD_V + 2)); d("s_mov_b32 s%d, 0x20000" % (SRD_V + 3))
        d(["s_mul_i32 s4, s%d, %d" % (s_h, 256 * 896), "s_add_u32 s%d, s%d, s4" % (SRD_O, SRD_O), "s_addc_u32 s%d, s%d, 0" % (SRD_O + 1, SRD_O + 1)])
        d("s_mov_b32 s%d, %d" % (SRD_O + 2, 256 * 896)); d("s_mov_b32 s%d, 0x20000" % (SRD_O + 3))
        d(["s_lshl_b32 s4, s%d, 4" % s_G, "s_add_u32 s4, s4, s%d" % s_h, "s_mul_i32 s4, s4, %d" % PART,
           "s_add_u32 s%d, s58, s4" % SRD_P, "s_addc_u32 s%d, s59, 0" % (SRD_P + 1)])
        d("s_mov_b32 s%d, %d" % (SRD_P + 2, PART)); d("s_mov_b32 s%d, 0x20000" % (SRD_P + 3))
        d("s_mov_b32 s%d, s96" % SRD_OUT); d("s_mov_b32 s%d, s97" % (SRD_OUT + 1))
        d("s_mov_b32 s%d, %d" % (SRD_OUT + 2, 8 * 96 * 1792)); d("s_mov_b32 s%d, 0x20000" % (SRD_OUT + 3))
        d("s_mov_b32 s%d, s98" % s_dbgp); d("s_mov_b32 s%d, s99" % (s_dbgp + 1))
        if cfg.aswap:
            d(["s_cmp_eq_u32 s%d, 0" % s_br, "s_cselect_b32 s%d, s%d, 0" % (s_swap, s_hh), "s_lshl_b32 s%d, s%d, 15" % (s_swap, s_swap)])
        assert cfg.krow
        if not cfg.kfirst:
            for x in ("v_lshrrev_b32 v%d, 5, v0" % t0, "v_and_b32 v%d, 31, v0" % t1, "v_xor_b32 v%d, v%d, v%d" % (t1, t1, t0),
                      "v_lshlrev_b32 v%d, 4, v%d" % (t1, t1), "v_lshlrev_b32 v%d, 9, v%d" % (t0, t0), "v_add_u32 v%d, v%d, v%d" % (t0, t0, t1),
                      "v_add_u32 v%d, s%d, v%d" % (vK0, s_kvb, t0)): d(x)
        for x in ("v_xor_b32 v%d, v%d, v%d" % (t1, l4, i15), "v_lshlrev_b32 v%d, 4, v%d" % (t1, t1), "v_lshlrev_b32 v%d, 9, v%d" % (t0, i15),
                  "v_add_u32 v%d, v%d, v%d" % (t0, t0, t1), "v_add_u32 v%d, %d, v%d" % (vQr[0], R, t0)): d(x)
        for j in range(1, 4): d("v_xor_b32 v%d, %d, v%d" % (vQr[j], 64 * j, vQr[0]))
        d(["s_lshl_b32 s6, s%d, 1" % s_w, "v_lshrrev_b32 v%d, 1, v%d" % (t0, l4), "v_add_u32 v%d, s6, v%d" % (t0, t0)])
        for x in ("v_lshrrev_b32 v%d, 1, v%d" % (t1, i15), "v_xor_b32 v%d, v%d, v%d" % (t0, t0, t1), "v_lshlrev_b32 v%d, 4, v%d" % (t0, t0),
                  "v_lshlrev_b32 v%d, 7, v%d" % (t1, i15), "v_add_u32 v%d, v%d, v%d" % (t0, t0, t1),
                  "v_and_b32 v%d, 1, v%d" % (t1, l4), "v_lshlrev_b32 v%d, 3, v%d" % (t1, t1), "v_add_u32 v%d, v%d, v%d" % (t0, t0, t1),
                  "v_add_u32 v%d, %d, v%d" % (vPw, R, t0)): d(x)
        d(["s_lshl_b32 s6, s%d, 3" % s_w, "v_xor_b32 v%d, s6, v%d" % (t0, i15)])
        for x in ("v_lshlrev_b32 v%d, 4, v%d" % (t0, t0), "v_and_b32 v%d, 31, v0" % t1, "v_lshlrev_b32 v%d, 9, v%d" % (t1, t1), "v_add_u32 v%d, v%d, v%d" % (t0, t0, t1),
                  "v_lshrrev_b32 v%d, 5, v0" % t1, "v_lshlrev_b32 v%d, 3, v%d" % (t1, t1), "v_add_u32 v%d, v%d, v%d" % (t0, t0, t1),
                  "v_add_u32 v%d, %d, v%d" % (vQw, R, t0)): d(x)
        for x in ("v_lshlrev_b32 v%d, 3, v%d" % (t0, l4), "v_lshrrev_b32 v%d, 2, v%d" % (t1, i15), "v_add_u32 v%d, v%d, v%d" % (t0, t0, t1), "v_lshlrev_b32 v%d, 7, v%d" % (t0, t0)): d(x)
        d(["v_and_b32 v%d, 3, v%d" % (t1, i15), "v_lshrrev_b32 v%d, 1, v%d" % (t1, t1), "s_lshl_b32 s6, s%d, 1" % s_w, "v_add_u32 v%d, s6, v%d" % (t1, t1)])
        for x in ("v_lshrrev_b32 v%d, 3, v%d" % (t4, i15), "v_and_b32 v%d, 1, v%d" % (t3, l4), "v_lshlrev_b32 v%d, 1, v%d" % (t3, t3), "v_or_b32 v%d, v%d, v%d" % (t4, t4, t3),
                  "v_lshlrev_b32 v%d, 1, v%d" % (t4, t4), "v_xor_b32 v%d, v%d, v%d" % (t1, t1, t4), "v_lshlrev_b32 v%d, 4, v%d" % (t1, t1), "v_add_u32 v%d, v%d, v%d" % (t0, t0, t1),
                  "v_and_b32 v%d, 1, v%d" % (t1, i15), "v_lshlrev_b32 v%d, 3, v%d" % (t1, t1), "v_add_u32 v%d, v%d, v%d" % (vWor, t0, t1)): d(x)
        for x in ("v_lshlrev_b32 v%d, 4, v%d" % (t0, i15), "v_add_u32 v%d, %d, v%d" % (vStR, ST, t0)): d(x)
        d(["s_lshl_b32 s6, s%d, 2" % s_w, "v_add_u32 v%d, s6, v%d" % (vStW, vStR)])
        d("v_lshlrev_b32 v%d, 4, v0" % vStO)
        def nonce_pub():
            e("s_or_b32 s4, s2, s%d" % s_w); e("s_cmp_lg_u32 s4, 0"); e("s_cbranch_scc1 L_nononce")
            p.raw(Ins("s_memrealtime s[90:91]", "nocount")); p.raw(Ins("s_waitcnt lgkmcnt(0)", "nocredit")); e("s_or_b32 s90, s90, 1")
            e("v_mov_b32 v%d, s90" % t2); e("v_mov_b32 v%d, 0" % t3)
            p.raw(Ins("global_store_dword v%d, v%d, s[%d:%d] sc1" % (t3, t2, s_dbgp, s_dbgp + 1), 'nocount'))
            e("L_nononce:")
        if not cfg.defer:
            self.emit(D); D = []
            if cfg.fuse: nonce_pub()

        def qacc(dt, qt): return vS + (dt * 3 + qt) * 16
        FA = lambda buf, dt: buf * 20 + dt * 4
        FB = lambda buf, qt: buf * 20 + 8 + qt * 4
        def q_reads(n):
            buf = n & 3; xs = ((n >> 2) % 3) * 12288
            ring, sl = wslot(n)
            rd = []
            for dt in range(2):
                va = (vA0 if dt == 0 else vA1) if ring else (vVr0 if dt == 0 else vVr1)
                for jj in range(2):
                    rd.append("ds_read_b64_tr_b16 %s, v%d offset:%d" % (ar(FA(buf, dt) + 2 * jj, 2), va, sl + jj * 512))
            for qt in range(3):
                rd.append("ds_read_b128 %s, v%d offset:%d" % (ar(FB(buf, qt)), vXr[n & 3], xs + qt * 4096))
            return [rd[0], rd[1], rd[4], rd[2], rd[3], rd[5], rd[6]]
        def q_mfmas(n):
            buf = n & 3
            return ["v_mfma_f32_32x32x16_bf16 %s, %s, %s, %s" % (vr(qacc(dt, qt), 16), ar(FA(buf, dt)), ar(FB(buf, qt)), "0" if n == 0 else vr(qacc(dt, qt), 16))
                    for qt in range(3) for dt in range(2)]
        def KFr(i, s): return ar(192 + (i & 1) * 32 + s * 4)
        vKa = [vT[8], vT[9], vT[10], vT[11]]
        def k_addr(i):
            if not cfg.krow: return []
            d = self.kv_slot(i) - R
            return ["s_add_u32 s4, s%d, %d" % (s_kvb, d & 0xffffffff)] + ["v_add_u32 v%d, s4, v%d" % (vKa[j], vQr[j]) for j in range(4)]
        def k_read(i, s):
            if cfg.krow:
                return "ds_read_b128 %s, v%d offset:%d" % (KFr(i, s), vKa[s & 3], (s >> 2) * 256)
            slot = self.kv_slot(i)
            base = (vKr1 if s & 1 else vKr0)
            off = slot + (s >> 1) * 2048
            if off >= 65536:
                base = (vT[11] if s & 1 else vT[10]); off -= 65536
            return "ds_read_b128 %s, v%d offset:%d" % (KFr(i, s), base, off)
        self.emit(wdma(2)); self.emit(wdma(3)); self.emit(xdma(1))
        if not cfg.h5 or cfg.wpro == 6: self.emit(wdma(4)); self.emit(wdma(5))
        p.wait_vm("X0"); p.wait_vm("W1")
        e("s_barrier")
        self.emit(self.stamp())
        self.emit(q_reads(0)); self.emit(q_reads(1))
        wsched = {}
        kread = {}
        if cfg.h5:
            wsched = dict(cfg.wsched)
            for st_, ks in wsched.items():
                for k_ in ks: assert k_ - 14 <= st_ and k_ - 2 > st_
            kb0, kb1 = self.kv_block(0), self.kv_block(1)
            g = [[kb0[0], kb0[1]]] + kb0[2:9] + [[kb1[0], kb1[1]]] + kb1[2:9]
            kplan = {}
            for st_, (lo, hi) in cfg.h5_plan.items(): kplan[st_] = g[lo:hi]
            done = max(hi for (lo, hi) in cfg.h5_plan.values())
            self.k_rest = g[done:]
            assert min(st_ for st_, (lo, hi) in cfg.h5_plan.items() if lo < 8) >= 17 and min([99] + [st_ for st_, (lo, hi) in cfg.h5_plan.items() if hi > 8]) >= 21
        elif cfg.kfirst == 2:
            kplan = {}; self.k_rest = []
        elif cfg.kfirst == 1:
            kb1 = self.kv_block(1)
            kplan = {22: kb1[0:5], 23: kb1[5:8], 26: kb1[8:9]}; self.k_rest = []
        else:
            kb0 = self.kv_block(0); kb1 = self.kv_block(1)
            if cfg.kpace:
                kplan = {22: kb0[0:5], 23: kb0[5:8], 26: kb0[8:9] + kb1[0:4], 27: kb1[4:7]}
                self.k_rest = kb1[7:9]
            else:
                kb01 = kb0 + kb1
                kplan = dict((cfg.kstart + j, kb01[(len(kb01) * j) // 6:(len(kb01) * (j + 1)) // 6]) for j in range(6))
                self.k_rest = []
        for n in range(28):
            pre = []
            rd = []
            if n + 2 < 28:
                p.wait_vm("W%d" % (n + 2))
                if (n + 2) % 4 == 0:
                    p.wait_vm("X%d" % ((n + 2) >> 2))
                    if not cfg.xlate: e("s_waitcnt lgkmcnt(0)")
                    e("s_barrier")
                rd = q_reads(n + 2)
            if n in kread:
                b_ = kread[n]
                rd = rd + [k_addr(b_), (lambda b_=b_: p.wait_vm("B%d" % b_))] + [k_read(b_, s) for s in range(8)]
            dm = []
            if cfg.h5:
                for k_ in wsched.get(n, []): dm += wdma(k_)
            elif n + 6 < 28 and not cfg.exp_nowx: dm += wdma(n + 6)
            if cfg.xlate:
                if (n + 2) % 4 == 0 and 2 <= ((n + 2) >> 2) + 1 <= 6: dm += xdma(((n + 2) >> 2) + 1)
            else:
                if n == 1 and not cfg.exp_nowx: dm += xdma(2)
                if (n + 2) % 4 == 0 and ((n + 2) >> 2) + 2 <= 6 and not cfg.exp_nowx: dm += xdma(((n + 2) >> 2) + 2)
            dm += kplan.get(n, [])
            mf = q_mfmas(n)
            if cfg.defer and n < 16:
                dm = merge(dm, D[(len(D) * n) // 16:(len(D) * (n + 1)) // 16]) if dm else D[(len(D) * n) // 16:(len(D) * (n + 1)) // 16]
            if cfg.defer and n == 17 and cfg.fuse: dm = dm + [nonce_pub]
            seq = []
            nr = len(rd)
            rpos = [min(3, (4 * k) // max(nr, 1)) for k in range(nr)]
            dpos = [2 + (4 * k) // max(len(dm), 1) for k in range(len(dm))]
            for i, m in enumerate(mf):
                seq.append(m)
                seq += [rd[k] for k in range(nr) if rpos[k] == i]
                seq += [dm[k] for k in range(len(dm)) if min(dpos[k], 5) == i]
            self.emit(seq)
        if cfg.code_pf >= 2: self.code_prefetch(vT[0], vT[2])
        self.emit(self.stamp())
        e("s_waitcnt lgkmcnt(0)")
        e("s_barrier")
        blk4 = self.kv_block(2)
        def exch_write(src_of):
            seq = []
            for dt in range(2):
                for rg in range(4):
                    va = vT[12 + ((dt * 4 + rg) & 1)]
                    seq.append("v_xor_b32 v%d, %d, v%d" % (va, (4 * dt + rg) * 16, vQw))
                    for qt in range(3):
                        b = src_of(dt, qt) + rg * 4
                        ta = vT[14 + 2 * qt]
                        seq.append(["v_cvt_pk_bf16_f32 v%d, v%d, v%d" % (ta, b, b + 1), "v_cvt_pk_bf16_f32 v%d, v%d, v%d" % (ta + 1, b + 2, b + 3),
                                    "ds_write_b64 v%d, %s offset:%d" % (va, vr(ta, 2), qt * 16384)])
            return seq
        if cfg.kd3:
            self.emit(k_addr(0))
            pre0 = [lambda: p.wait_vm("B0")] + [k_read(0, s) for s in range(8)]
            self.emit(weave(exch_write(qacc), blk4 + pre0))
        elif cfg.h5 == 1:
            self.emit(k_addr(0))
            pre0 = self.k_rest + [lambda: p.wait_vm("B0")] + [k_read(0, s) for s in range(8)]
            self.emit(weave(exch_write(qacc), pre0, 0, 20))
        else:
            self.emit(weave(exch_write(qacc), self.k_rest + ([] if cfg.b2s0 else blk4), 8 if cfg.kpace else 0))
        if not cfg.krow:
            e("v_add_u32 v%d, 0x10000, v%d" % (vT[10], vKr0)); e("v_add_u32 v%d, 0x10000, v%d" % (vT[11], vKr1))
        e("s_waitcnt lgkmcnt(0)")
        e("s_barrier")
        self.emit(self.stamp())
        QF = lambda t, s: (s * 6 + t) * 4
        def q_read(t, s):
            return "ds_read_b128 %s, v%d offset:%d" % (ar(QF(t, s)), vQr[s & 3], t * 8192 + (s >> 2) * 256)
        def qk_mfma(i, t, s):
            c = "0" if s == 0 else vr(S(i, t))
            return "v_mfma_f32_16x16x32_bf16 %s, %s, %s, %s" % (vr(S(i, t)), KFr(i, s), ar(QF(t, s)), c)
        def max_ops(i):
            r = []
            for t in range(6):
                b = S(i, t)
                if cfg.prescale:
                    for k in range(4): r.append("v_mul_f32 v%d, s%d, v%d" % (b + k, s_c, b + k))
                if i == 0:
                    r.append("v_max3_f32 v%d, v%d, v%d, v%d" % (vM[t], b, b + 1, b + 2))
                    r.append("v_max_f32 v%d, v%d, v%d" % (vM[t], vM[t], b + 3))
                else:
                    r.append("v_max3_f32 v%d, v%d, v%d, v%d" % (vM[t], vM[t], b, b + 1))
                    r.append("v_max3_f32 v%d, v%d, v%d, v%d" % (vM[t], vM[t], b + 2, b + 3))
            return r
        for j in range(1, 4): e("v_add_u32 v%d, %d, v%d" % (vVD[j], j * 3072, vV))
        for i in range(8):
            if cfg.h5 == 1:
                mx = max_ops(i - 1) if i >= 1 else []
                if i == 0:
                    dm = self.kv_block(2) + self.kv_block(3)
                    self.emit([q_read(t, 0) for t in range(6)])
                    seq = []
                    for s in range(8):
                        nxq = [q_read(t, s + 1) for t in range(6)] if s < 7 else []
                        seq += weave([qk_mfma(0, t, s) for t in range(6)], nxq)
                    self.emit(weave(seq, dm[:9]))
                    self.k_b4 = dm[9:]
                else:
                    self.emit(k_addr(i))
                    p.wait_vm("B%d" % i)
                    self.emit([k_read(i, s) for s in range(8)])
                    mf = [qk_mfma(i, t, s) for s in range(8) for t in range(6)]
                    self.emit(mf[:6])
                    e("s_waitcnt lgkmcnt(0)")
                    dm = self.kv_block(i + 3)
                    if i == 1: dm = self.k_b4 + dm
                    self.emit(weave(mf[6:], merge(dm, mx), 0, 41))
                if cfg.fine and i < 7: self.emit(self.stamp())
                continue
            if cfg.kd3 and i == 0:
                dm = self.kv_block(3)
                self.emit([q_read(t, 0) for t in range(6)])
                seq = []
                for s in range(8):
                    nxq = [q_read(t, s + 1) for t in range(6)] if s < 7 else []
                    seq += weave([qk_mfma(0, t, s) for t in range(6)], nxq)
                self.emit(weave(seq, dm, 6, len(seq)))
                if cfg.fine: self.emit(self.stamp())
                continue
            if cfg.s4 and i == 1:
                e("s_waitcnt lgkmcnt(0)")
                e("s_barrier")
            self.emit(k_addr(i))
            p.wait_vm("B%d" % i)
            rd = [k_read(i, s) for s in range(8)]
            mx = max_ops(i - 1) if i >= 1 else []
            if cfg.kd3:
                dm = self.kv_block(i + 3)
                mf = [qk_mfma(i, t, s) for s in range(8) for t in range(6)]
                self.emit(rd)
                self.emit(mf[:6])
                e("s_waitcnt lgkmcnt(0)")
                self.emit(weave(mf[6:], merge(dm, mx), 0, 41))
            else:
                if cfg.s4:
                    dm = (self.kv_block(3) + self.kv_block(4)) if i == 1 else (self.kv_block(i + 3) if i >= 2 else [])
                else:
                    dm = self.kv_block(i + 2) if i >= 1 else []
                if i == 0:
                    self.emit([rd[0]] + [q_read(t, 0) for t in range(6)])
                    seq = []
                    for s in range(8):
                        nxq = ([rd[s + 1]] + [q_read(t, s + 1) for t in range(6)]) if s < 7 else []
                        seq += weave([qk_mfma(0, t, s) for t in range(6)], nxq)
                    self.emit(weave(seq, blk4) if cfg.b2s0 else seq)
                else:
                    mf = [qk_mfma(i, t, s) for s in range(8) for t in range(6)]
                    self.emit(rd)
                    self.emit(weave(mf, merge(dm, mx), 2, 47))
            if cfg.fine and i < 7: self.emit(self.stamp())
        if cfg.code_pf >= 2: self.code_prefetch(vT[0], vT[2])
        self.emit(self.stamp())
        e("v_add_u32 v%d, 0x10000, v%d" % (vA0, vVr0)); e("v_add_u32 v%d, 0x10000, v%d" % (vA1, vVr1))
        vB0, vB1 = vKr0, vKr1
        e("v_add_u32 v%d, %d, v%d" % (vB0, SLOT[3], vVr0)); e("v_add_u32 v%d, %d, v%d" % (vB1, SLOT[3], vVr1))
        self.emit(max_ops(7))
        seq = []
        for t in range(6):
            a = vT[0 + (t & 1)]
            seq += ["v_mov_b32 v%d, v%d" % (a, vM[t]), "v_permlane32_swap_b32 v%d, v%d" % (a, vM[t]), "v_max_f32 v%d, v%d, v%d" % (vM[t], vM[t], a),
                    "v_mov_b32 v%d, v%d" % (a, vM[t]), "v_permlane16_swap_b32 v%d, v%d" % (a, vM[t]), "v_max_f32 v%d, v%d, v%d" % (vM[t], vM[t], a),
                    "ds_write_b32 v%d, v%d offset:%d" % (vStW, vM[t], t * 256)]
        chains = [seq[7 * t:7 * t + 7] for t in range(6)]
        chains = []
        for t in range(6):
            a = vT[t]
            chains.append(["v_mov_b32 v%d, v%d" % (a, vM[t]), "v_permlane32_swap_b32 v%d, v%d" % (a, vM[t]), "v_max_f32 v%d, v%d, v%d" % (vM[t], vM[t], a),
                           "v_mov_b32 v%d, v%d" % (a, vM[t]), "v_permlane16_swap_b32 v%d, v%d" % (a, vM[t]), "v_max_f32 v%d, v%d, v%d" % (vM[t], vM[t], a),
                           "ds_write_b32 v%d, v%d offset:%d" % (vStW, vM[t], t * 256)])
        for k in range(7):
            for t in range(6): e(chains[t][k])
        e("s_waitcnt lgkmcnt(0)")
        e("s_barrier")
        for t in range(5): e("ds_read_b128 %s, v%d offset:%d" % (vr(44 + 4 * t, 4), vStR, t * 256))
        for t in range(6):
            b = 44 + 4 * (t % 5)
            if t == 5: e("ds_read_b128 %s, v%d offset:%d" % (vr(b, 4), vStR, t * 256))
            e("v_max3_f32 v%d, v%d, v%d, v%d" % (vM[t], b, b + 1, b + 2)); e("v_max_f32 v%d, v%d, v%d" % (vM[t], vM[t], b + 3))
        if not cfg.prescale:
            for t in range(6): e("v_mul_f32 v%d, s%d, v%d" % (vM[t], s_c, vM[t]))
        for j in range(4): e("v_add_u32 v%d, %d, v%d" % (vXr[j], (R - XB) & 0xffffffff, vXr[j]))
        e("s_mov_b32 s%d, 0x3f803f80" % s_ones)
        for t in range(6): e("v_mov_b32 v%d, 0" % vL[t])
        def exp_ops(i):
            us = []
            for t in range(6):
                b = S(i, t)
                tm = [vT[0], vT[1], vT[2], vT[3]] if t % 2 == 0 else [vT[4], vT[5], vT[6], vT[7]]
                pk = vT[8 + 2 * (t % 2)] if False else (vT[12] + 2 * (t % 2))
                for k in range(4):
                    if cfg.prescale: us.append("v_sub_f32 v%d, v%d, v%d" % (tm[k], b + k, vM[t]))
                    else: us.append("v_fma_f32 v%d, v%d, s%d, -v%d" % (tm[k], b + k, s_c, vM[t]))
                for k in range(4): us.append("v_exp_f32 v%d, v%d" % (tm[k], tm[k]))
                if cfg.sumadd:
                    us.append("v_add_f32 v%d, v%d, v%d" % (vL[t], vL[t], tm[0]))
                    us.append("v_cvt_pk_bf16_f32 v%d, v%d, v%d" % (pk, tm[0], tm[1]))
                    us.append("v_add_f32 v%d, v%d, v%d" % (vL[t], vL[t], tm[1]))
                    us.append("v_cvt_pk_bf16_f32 v%d, v%d, v%d" % (pk + 1, tm[2], tm[3]))
                    us.append("v_add_f32 v%d, v%d, v%d" % (vL[t], vL[t], tm[2]))
                    us.append("v_add_f32 v%d, v%d, v%d" % (vL[t], vL[t], tm[3]))
                else:
                    us.append("v_cvt_pk_bf16_f32 v%d, v%d, v%d" % (pk, tm[0], tm[1]))
                    us.append("v_cvt_pk_bf16_f32 v%d, v%d, v%d" % (pk + 1, tm[2], tm[3]))
                    us.append("v_dot2c_f32_bf16 v%d, s%d, v%d" % (vL[t], s_ones, pk))
                    us.append("v_dot2c_f32_bf16 v%d, s%d, v%d" % (vL[t], s_ones, pk + 1))
                us.append("ds_write_b64 v%d, %s offset:%d" % (vPw, vr(pk, 2), (i & 1) * 12288 + t * 2048))
            return us
        self.emit(weave(exp_ops(0), self.kv_block(11 if cfg.s4 else 10)) if not (cfg.kd3 or cfg.h5 == 1) else exp_ops(0))
        self.emit(self.stamp())
        OAa = lambda dt, qt: (dt * 3 + qt) * 16
        OAv = lambda dt, qt: vS + (dt * 3 + qt) * 16
        VF = lambda buf, dt: 96 + buf * 20 + dt * 4
        PF = lambda buf, qt: 96 + buf * 20 + 8 + qt * 4
        def v_reads(i, u, buf):
            slot = self.kv_slot(8 + i)
            rd = []
            for dt in range(2):
                for jj in range(2):
                    off = slot + (16 * u + 4 * jj) * 128
                    base = vVr1 if dt else vVr0
                    if slot == SLOT[3]:
                        base = vB1 if dt else vB0; off -= SLOT[3]
                    elif off >= 65536:
                        base = vA1 if dt else vA0; off -= 65536
                    rd.append("ds_read_b64_tr_b16 %s, v%d offset:%d" % (ar(VF(buf, dt) + 2 * jj, 2), base, off))
            for qt in range(3):
                rd.append("ds_read_b128 %s, v%d offset:%d" % (ar(PF(buf, qt)), vXr[u], (i & 1) * 12288 + qt * 4096))
            return [rd[0], rd[1], rd[4], rd[2], rd[3], rd[5], rd[6]]
        def pv_mfmas(i, u, buf):
            out = []
            for qt in range(3):
                for dt in range(2):
                    d = ar(OAa(dt, qt), 16) if i < 4 else vr(OAv(dt, qt), 16)
                    c = "0" if (i == 0 and u == 0) else d
                    out.append("v_mfma_f32_32x32x16_bf16 %s, %s, %s, %s" % (d, ar(VF(buf, dt)), ar(PF(buf, qt)), c))
            return out
        wo_slot = (lambda k: SLOT[(0, 2, 1)[(11 + k) % 3]]) if cfg.h5 == 1 else ((lambda k: SLOT[k % 3]) if cfg.s4 else (lambda k: SLOT[(16 + k) % 3]))
        def wo_block(k):
            slot = wo_slot(k)
            tag = "WO%d" % k
            us = [lambda: p.group(tag)]
            for i in range(8):
                m0 = (s_kvb, slot + i * 1024) if i % 4 == 0 else None
                us.append(self.dma(vWoD[i], SRD_O, (sWO[k], None), m0, tag, cfg.aux_wo, imm=(i & 3) * 1024))
            return us
        if cfg.rot:
            e("s_cmp_eq_u32 s%d, 7" % s_b); e("s_cselect_b32 s%d, 0, s%d" % (s_ng, s_b))
        else:
            e("s_mov_b32 s%d, 0" % s_ng)
        e("s_mov_b32 s4, s%d" % s_ng)
        for k in range(7):
            if k: e("s_add_u32 s4, s4, 1"); e("s_cmp_eq_u32 s4, 7"); e("s_cselect_b32 s4, 0, s4")
            e("s_lshl_b32 s%d, s4, 7" % sWO[k])
            e("s_lshl_b32 s6, s4, 2"); e("s_add_u32 s6, s6, s%d" % s_w); e("s_mul_i32 s%d, s6, 3072" % sST[k])
        def split_reads(i, u, buf):
            r = v_reads(i, u, buf)
            return [r[2], r[5], r[6]], [r[0], r[1], r[3], r[4]]
        e("s_waitcnt lgkmcnt(0)")
        e("s_barrier")
        p.wait_vm("B8")
        self.emit(v_reads(0, 0, 0))
        for i in range(8):
            fill = exp_ops(i + 1) if i + 1 < 8 else []
            dm = []
            late = []
            if cfg.s4:
                if 1 <= i <= 4: dm = self.kv_block(8 + i + 3)
            elif 1 <= i <= 5: dm = self.kv_block(8 + i + 2)
            if i == 1 and cfg.fuse:
                dm = [["v_mov_b32 v%d, 0" % vT[19], lambda: p.group("NC"),
                       Ins("global_load_dword v%d, v%d, s[%d:%d] sc1" % (vNonce, vT[19], s_dbgp, s_dbgp + 1), "NC")]] + dm
            if i == (3 if cfg.s4 else 4):
                a0, a1, a2 = 168, 169, 170
                late += ["v_lshrrev_b32 v%d, 3, v0" % a0, "s_lshl_b32 s6, s%d, 6" % s_w, "v_add_u32 v%d, s6, v%d" % (a0, a0), "v_mul_u32_u24 v%d, 896, v%d" % (a0, a0)]
                late += ["v_lshrrev_b32 v%d, 4, v0" % a1, "v_and_b32 v%d, 1, v%d" % (a1, a1), "v_lshlrev_b32 v%d, 1, v%d" % (a1, a1), "v_and_b32 v%d, 7, v0" % a2, "v_xor_b32 v%d, v%d, v%d" % (a1, a1, a2),
                         "v_lshlrev_b32 v%d, 4, v%d" % (a1, a1)]
                late += ["v_add_u32 v%d, v%d, v%d" % (a2, a0, a1), "v_xor_b32 v%d, 64, v%d" % (a1, a1), "v_add_u32 v%d, v%d, v%d" % (a1, a0, a1)]
                for k in range(8):
                    late.append("v_add_u32 v%d, %d, v%d" % (vWoD[k], k * 7168 - (k & 3) * 1024, a1 if k & 1 else a2))
            if cfg.s4 and i == 5: dm = wo_block(0)
            if i == 6:
                dm = wo_block(1 if cfg.s4 else 0)
                ch = []
                for t in range(6):
                    a = vT[t]
                    ch.append(["v_mov_b32 v%d, v%d" % (a, vL[t]), "v_permlane32_swap_b32 v%d, v%d" % (a, vL[t]), "v_add_f32 v%d, v%d, v%d" % (vL[t], vL[t], a),
                               "v_mov_b32 v%d, v%d" % (a, vL[t]), "v_permlane16_swap_b32 v%d, v%d" % (a, vL[t]), "v_add_f32 v%d, v%d, v%d" % (vL[t], vL[t], a),
                               "ds_write_b32 v%d, v%d offset:%d" % (vStW, vL[t], 2048 + t * 256)])
                self.red_chain = [ch[t][k] for k in range(7) for t in range(6)]
            if i == 7:
                dm = wo_block(2 if cfg.s4 else 1) if not cfg.wo1_late else []
                fill = self.red_chain
                for t in range(6):
                    b = 44 + 4 * (t % 4)
                    late += ["ds_read_b128 %s, v%d offset:%d" % (vr(b, 4), vStR, 2048 + t * 256),
                             ["v_add_f32 v%d, v%d, v%d" % (b, b, b + 1), "v_add_f32 v%d, v%d, v%d" % (b + 2, b + 2, b + 3),
                              "v_add_f32 v%d, v%d, v%d" % (b, b, b + 2), "v_rcp_f32 v%d, v%d" % (vM[t], b)]]
            if 'nodma' in cfg.exp_v: dm = [x for x in dm if callable(x)]
            if 'noexp' in cfg.exp_v: fill = [x for x in fill if 'v_exp' not in str(x)]
            if 'nodot' in cfg.exp_v: fill = [x for x in fill if 'v_dot2c' not in str(x)]
            if 'nofill' in cfg.exp_v: fill = [x for x in fill if 'ds_write' in str(x)]
            mf = []
            if i == 4 and not cfg.mv_weave:
                mv = ["v_accvgpr_read_b32 v%d, a%d" % (vS + r, r) for r in range(96)]
                self.emit(weave(mv, dm[:5], 0, 96)); dm = dm[5:]
            for u in range(3):
                m = pv_mfmas(i, u, u & 1)
                if i == 4 and u == 0 and cfg.mv_weave:
                    rd = v_reads(i, 1, 1)
                    k = 0
                    seq = []
                    for qt in range(3):
                        for dt in range(2):
                            seq.append(["v_accvgpr_read_b32 v%d, a%d" % (OAv(dt, qt) + r, OAa(dt, qt) + r) for r in range(16)])
                            seq.append(m[k])
                            seq += rd[k:k + 1] + (rd[6:7] if k == 5 else [])
                            k += 1
                    self.emit(weave(seq, dm[:4], 0, len(seq))); dm = dm[4:]
                    continue
                mf += weave(m, v_reads(i, u + 1, (u + 1) & 1), 0, 4)
            self.emit(weave(mf, merge(fill, dm), 0, len(mf) - 1))
            e("s_waitcnt lgkmcnt(0)")
            if 'nobar' not in cfg.exp_v: e("s_barrier")
            m3 = pv_mfmas(i, 3, 1)
            if i < 7:
                pr, vrd = split_reads(i + 1, 0, 0)
                seq = [m3[0]] + pr + [m3[1], (lambda j=i + 1: p.wait_vm("B%d" % (8 + j)))] + vrd
                seq += weave(m3[2:], late)
            else:
                seq = weave(m3, late)
            self.emit(seq)
            if cfg.fine and i < 7: self.emit(self.stamp())
        self.emit(self.stamp())
        self.emit(weave(exch_write(OAv), wo_block(1) if cfg.wo1_late == 1 else []))
        if cfg.fuse: self.get_nonce()
        p.wait_vm("WO0")
        e("s_waitcnt lgkmcnt(0)")
        e("s_barrier")
        self.emit(self.stamp())
        OF = QF
        WF = lambda b, s: 192 + 32 * b + s * 4
        ACC = lambda t: vS + t * 4
        def wo_reads(k):
            slot = wo_slot(k)
            base = vWor
            if slot >= 65536: base = vA0
            off0 = slot if slot < 65536 else slot - 65536
            return ["ds_read_b64_tr_b16 %s, v%d offset:%d" % (ar(WF(k & 1, s) + 2 * jj, 2), base, off0 + (32 * s + 4 * jj) * 128) for s in range(8) for jj in range(2)]
        def epi(t):
            b = ACC(t)
            pk = vT[8] + 4 * ((t >> 1) & 1) + 2 * (t & 1)
            u = ["v_mul_f32 v%d, v%d, v%d" % (b + k, vM[t], b + k) for k in range(4)]
            u += ["v_cvt_pk_bf16_f32 v%d, v%d, v%d" % (pk, b, b + 1), "v_cvt_pk_bf16_f32 v%d, v%d, v%d" % (pk + 1, b + 2, b + 3)]
            return u
        def st(pair, k):
            pk = vT[8] + 4 * (pair & 1)
            if cfg.exp_nostore: return []
            return [[lambda: p.group("ST%d_%d" % (k, pair)),
                     Ins("buffer_store_dwordx4 %s, v%d, %s, s%d offen offset:%d %s" % (vr(pk, 4), vStO, srd(SRD_P), sST[k], pair * 1024, cfg.aux_st), "ST%d_%d" % (k, pair))]]
        def tile(k, t):
            return ["v_mfma_f32_16x16x32_bf16 %s, %s, %s, %s" % (vr(ACC(t)), ar(WF(k & 1, s)), ar(OF(t, s)), "0" if s == 0 else vr(ACC(t))) for s in range(8)]
        e("v_add_u32 v%d, 0x10000, v%d" % (vA0, vWor))
        r0 = wo_reads(0)
        self.emit([x for s in range(8) for x in (r0[2 * s:2 * s + 2] + [q_read(0, s)])])
        if cfg.wo1_late == 2: self.emit(wo_block(1))
        elif not cfg.s4: self.emit(wo_block(2))
        for k in range(7):
            f = [[] for _ in range(6)]
            if k == 0:
                for t in range(5): f[t] += [q_read(t + 1, s) for s in range(8)]
                if cfg.wo1_late == 2:
                    w2 = wo_block(2)
                    f[0] = merge(f[0], w2[:5]); f[1] = merge(f[1], w2[5:])
            else:
                f[0] += epi(4); f[1] += epi(5) + st(2, k - 1)
            f[2] += epi(0); f[3] += epi(1) + st(0, k); f[4] += epi(2); f[5] += epi(3) + st(1, k)
            nx = wo_reads(k + 1) if k < 6 else []
            dm = wo_block(k + 3) if (k + 3 <= 6 and not cfg.exp_nowodma) else []
            for t in range(6):
                if t == 2 and k < 6:
                    if k == 5 and cfg.fuse:
                        e("s_waitcnt vmcnt(0)")
                        e("s_barrier")
                        self.emit(self.flag_store(0))
                    else:
                        p.wait_vm("WO%d" % (k + 1))
                        if not cfg.exp_nobar: e("s_barrier")
                ex = []
                if t >= 2:
                    ex = nx[4 * (t - 2):4 * (t - 1)]
                    dd = dm[0:1] + dm[1:3] if t == 2 else dm[1 + 2 * (t - 2):3 + 2 * (t - 2)]
                    ex = merge(ex, dd)
                if cfg.fuse and cfg.epoll and k == 6 and t == 2:
                    ex = ex + [["s_mov_b32 s%d, 0x40000000" % s_oob], self.early_poll_issue(0, 46, 0)]
                self.emit(weave(tile(k, t), merge(f[t], ex), 0, 8))
        self.emit(epi(4)); self.emit(epi(5)); self.emit(st(2, 6))
        self.emit(self.stamp())
        if cfg.fuse:
            self.reduce_tail()
        elif cfg.stamps or cfg.dbg:
            e("s_waitcnt vmcnt(0)")
            self.emit(self.stamp())
        e("L_k1_end:")
        e("s_endpgm")
        p.resolve()
        return p.text()

    def get_nonce(self):
        cfg, p, e = self.cfg, self.p, self.p.e
        e("v_readfirstlane_b32 s%d, v%d" % (s_nonce, vNonce))
        e("s_cmp_lg_u32 s%d, 0" % s_nonce); e("s_cbranch_scc1 L_havenonce")
        e("s_mov_b32 s63, 0x100000")
        e("L_pollnonce:")
        e("s_sub_u32 s63, s63, 1"); e("s_cbranch_scc1 L_havenonce")
        e("v_mov_b32 v44, 0")
        p.raw(Ins("global_load_dword v%d, v44, s[%d:%d] sc1" % (vNonce, s_dbgp, s_dbgp + 1), "nocount"))
        p.raw(Ins("s_waitcnt vmcnt(0)", "nocredit"))
        e("v_readfirstlane_b32 s%d, v%d" % (s_nonce, vNonce))
        e("s_cmp_eq_u32 s%d, 0" % s_nonce); e("s_cbranch_scc1 L_pollnonce")
        e("L_havenonce:")
        e("s_lshl_b32 s4, s%d, 8" % s_G); e("s_add_u32 s4, s4, %d" % FLAG_OFF)
        e("s_add_u32 s68, s58, s4"); e("s_addc_u32 s69, s59, 0")

    def flag_store(self, which):
        lab = "L_nofl%d" % which
        return ["s_cmp_lg_u32 s%d, 0" % s_w, "s_cbranch_scc1 %s" % lab,
                "v_mov_b32 v42, s%d" % s_nonce, "s_lshl_b32 s4, s%d, 2" % s_h, "s_add_u32 s4, s4, %d" % (128 * which), "v_mov_b32 v43, s4",
                "s_mov_b64 exec, 1",
                Ins("global_store_dword v43, v42, s[68:69] sc1", "nocount"),
                "s_mov_b64 exec, -1", "s_nop 4", lab + ":"]

    def poll(self, which):
        e, p = self.p.e, self.p
        e("s_mov_b64 exec, 0xffff")
        e("v_lshlrev_b32 v45, 2, v0")
        e("s_mov_b32 s60, 0x100000")
        e("L_poll%d:" % which)
        p.raw(Ins("global_load_dword v46, v45, s[68:69] offset:%d sc1" % (128 * which), "nocount"))
        p.raw(Ins("s_waitcnt vmcnt(0)", "nocredit"))
        e("v_cmp_ne_u32 vcc, s%d, v46" % s_nonce)
        e("s_nop 4")
        e("s_cbranch_vccz L_polldone%d" % which)
        e("s_sub_u32 s60, s60, 1"); e("s_cbranch_scc1 L_polldone%d" % which)
        e("s_sleep 2")
        e("s_branch L_poll%d" % which)
        e("L_polldone%d:" % which)
        e("s_mov_b64 exec, -1")

    def early_poll_issue(self, which, dst, ndummy):
        p = self.p
        u = ["v_and_b32 v45, 15, v0", "v_lshlrev_b32 v45, 2, v45", lambda: p.group("PL%d" % which),
             Ins("global_load_dword v%d, v45, s[68:69] offset:%d sc1" % (dst, 128 * which), "PL%d" % which)]
        for k in range(ndummy):
            u.append(Ins("buffer_load_dword v%d, v%d, %s, s%d offen" % (192 + 8 * which + k, vStO, srd(SRD_P), s_oob), "DUM"))
        return u

    def early_poll_check(self, which, dst):
        e = self.p.e
        e("v_cmp_ne_u32 vcc, s%d, v%d" % (s_nonce, dst))
        e("s_nop 4")
        e("s_cbranch_vccz L_ep%d" % which)
        self.poll(which)
        e("L_ep%d:" % which)

    def unit(self, su, tagname, after_loads=None, before_stores=None):
        cfg, p, e = self.cfg, self.p, self.p.e
        SG = 64
        e("s_mul_hi_u32 s5, s%d, %d" % (su, (1 << 32) // 12 + 1)); e("s_mul_i32 s6, s5, 12"); e("s_sub_u32 s6, s%d, s6" % su)
        e("s_add_u32 s5, s5, s%d" % s_ng); e("s_cmp_ge_u32 s5, 7"); e("s_cselect_b32 s7, 7, 0"); e("s_sub_u32 s5, s5, s7")
        e("s_mul_i32 s72, s5, 12"); e("s_add_u32 s72, s72, s6"); e("s_lshl_b32 s72, s72, 10")
        e("s_mul_hi_u32 s7, s6, %d" % ((1 << 32) // 3 + 1)); e("s_mul_i32 s76, s7, 3"); e("s_sub_u32 s76, s6, s76")
        e("s_lshl_b32 s5, s5, 7"); e("s_lshl_b32 s7, s7, 5"); e("s_mul_i32 s76, s76, %d" % (32 * 1792))
        e("s_add_u32 s5, s5, s7"); e("s_add_u32 s5, s5, s76"); e("s_add_u32 s73, s5, s70")
        e("s_cmp_ge_u32 s%d, 84" % su)
        e("s_cselect_b32 s72, 0x40000000, s72"); e("s_cselect_b32 s73, 0x40000000, s73")
        for h in range(16):
            e("s_add_u32 s5, s72, %d" % (h * PART))
            p.raw(Ins("buffer_load_dwordx4 %s, v%d, %s, s5 offen %s" % (vr(64 + 4 * h, 4), vStO, srd(SG), cfg.aux_rd), tagname))
        if after_loads: self.emit(after_loads)
        acc = list(range(48, 56))
        for a in acc: e("v_mov_b32 v%d, 0" % a)
        for h in range(16):
            b = 64 + 4 * h
            for q in range(4):
                e("v_dot2c_f32_bf16 v%d, s74, v%d" % (acc[2 * q], b + q)); e("v_dot2c_f32_bf16 v%d, s75, v%d" % (acc[2 * q + 1], b + q))
        for q in range(4): e("v_cvt_pk_bf16_f32 v%d, v%d, v%d" % (56 + q, acc[2 * q], acc[2 * q + 1]))
        if before_stores: before_stores()
        e("buffer_store_dwordx2 v[56:57], v41, %s, s73 offen %s" % (srd(SRD_OUT), cfg.aux_out))
        e("s_add_u32 s5, s73, %d" % (16 * 1792))
        e("buffer_store_dwordx2 v[58:59], v41, %s, s5 offen %s" % (srd(SRD_OUT), cfg.aux_out))

    def reduce_tail(self):
        cfg, p, e = self.cfg, self.p, self.p.e
        SG = 64
        e("s_mul_i32 s4, s%d, %d" % (s_G, PART * 16))
        e("s_add_u32 s%d, s58, s4" % SG); e("s_addc_u32 s%d, s59, 0" % (SG + 1)); e("s_mov_b32 s%d, %d" % (SG + 2, PART * 16)); e("s_mov_b32 s%d, 0x20000" % (SG + 3))
        e("s_mul_i32 s70, s%d, %d" % (s_b, 96 * 1792)); e("s_mul_i32 s4, s%d, 896" % s_br); e("s_add_u32 s70, s70, s4")
        e("v_and_b32 v41, 15, v0"); e("v_mul_u32_u24 v41, 1792, v41"); e("v_lshrrev_b32 v42, 4, v0"); e("v_lshlrev_b32 v42, 3, v42"); e("v_add_u32 v41, v41, v42")
        e("s_mov_b32 s74, 0x3f80"); e("s_mov_b32 s75, 0x3f800000")
        e("s_lshl_b32 s61, s%d, 2" % s_h); e("s_add_u32 s61, s61, s%d" % s_w)
        e("s_cmp_ge_u32 s61, 60"); e("s_cselect_b32 s61, 127, s61")
        e("s_lshl_b32 s62, s%d, 4" % s_w); e("s_add_u32 s62, s62, s%d" % s_h); e("s_add_u32 s62, s62, 60")
        if cfg.epoll:
            e("s_waitcnt vmcnt(0)")
            self.early_poll_check(0, 46)
            e("s_barrier")
            self.emit(self.stamp())
            self.emit(self.flag_store(1))
            self.unit(61, "RD1", after_loads=self.early_poll_issue(1, 60, 0), before_stores=lambda: self.early_poll_check(1, 60))
            self.emit(self.stamp())
        else:
            e("s_cmp_eq_u32 s%d, 3" % s_w); e("s_cbranch_scc0 L_np1")
            self.poll(0)
            e("L_np1:")
            e("s_waitcnt vmcnt(0)")
            e("s_barrier")
            self.emit(self.stamp())
            self.emit(self.flag_store(1))
            self.unit(61, "RD1")
            e("s_cmp_eq_u32 s%d, 3" % s_w); e("s_cbranch_scc0 L_np2")
            self.poll(1)
            e("L_np2:")
            e("s_barrier")
            self.emit(self.stamp())
        e("s_cmp_ge_u32 s%d, 2" % s_w); e("s_cbranch_scc1 L_fin")
        self.unit(62, "RD2")
        e("L_fin:")
        if cfg.stamps or cfg.dbg:
            e("s_waitcnt vmcnt(0)")
            self.emit(self.stamp())

def desc(name, vg, acc, sg=102):
    return """.amdhsa_kernel %s
  .amdhsa_next_free_vgpr %d
  .amdhsa_next_free_sgpr %d
  .amdhsa_accum_offset %d
  .amdhsa_group_segment_fixed_size 0
  .amdhsa_kernarg_size 104
  .amdhsa_user_sgpr_count 2
  .amdhsa_user_sgpr_kernarg_segment_ptr 1
  .amdhsa_system_sgpr_workgroup_id_x 1
  .amdhsa_float_denorm_mode_32 3
.end_amdhsa_kernel
""" % (name, vg, sg, acc)

REF = "concat_heads__gqa_block_cached__mha_block_cached__near_ridge.s.ref"
HEAD = open(REF).read().split("; Override launch geometry")[0] if os.path.exists(REF) else ""

def generate(cfg):
    k1 = K1(cfg).build()
    out = HEAD
    out += "; @launch grid=(256,1,1) block=(256,1,1) lds=163840\n"
    out += '.amdgcn_target "amdgcn-amd-amdhsa--gfx950"\n.text\n'
    out += ".globl %s\n.p2align 8\n.type %s,@function\n%s:\n%s\n" % (KNAME, KNAME, KNAME, k1)
    out += '.section .rodata,"a"\n.p2align 6\n' + desc(KNAME, 512, 256)
    return out

if __name__ == "__main__":
    kw = {}
    for a in sys.argv[2:]:
        k, v = a.split("=", 1)
        kw[k] = eval(v)
    txt = generate(Cfg(**kw))
    open(sys.argv[1], "w").write(txt)
    print("wrote", sys.argv[1], len(txt), "bytes,", txt.count("\n"), "lines")
```

```python
import sys, os
from asmgen import Prog, Ins

KNAME = "concat_heads__gqa_block_cached__mha_block_cached__near_ridge_kernel"

class Cfg:
    aux_kv = "nt"
    aux_w = ""
    aux_x = ""
    aux_wo = ""
    aux_st = "sc1"
    aux_rd = "sc1"
    stamps = False
    dbg = False
    dbg_wg = 128
    rot = True
    fuse = True
    fine = False
    early_dma = True
    krow = True
    code_pf = 1
    code_bytes = 32768
    f1_drain = True
    exp_kpre = 4
    kstart = 22
    kd3 = False
    h5 = 2
    part_off = 0
    tlb2 = False
    trickle = ()
    trickle_aux = ""
    wpro = 6
    wsched = {0: [6], 1: [7], 2: [8], 3: [9], 4: [10], 5: [11, 12], 6: [13, 14], 7: [15, 16], 8: [17, 18], 9: [19, 20], 10: [21, 22], 11: [23], 12: [24, 25], 13: [26], 14: [27]}
    h5_plan = {17: (0, 4), 18: (4, 7), 22: (7, 11), 23: (11, 14), 27: (14, 16)}
    kfirst = 0
    wo1_late = 1
    mv_weave = False
    prescale = True
    sumadd = True
    exp_v = ''
    s4 = False
    b2s0 = True
    kpace = True
    xlate = False
    exp_nostore = False
    exp_nowodma = False
    exp_nobar = False
    epoll = True
    aux_out = ""
    pf_first = True
    defer = True
    t00 = False
    aswap = False
    kbar = False
    rot_hh = 0
    b0_first = False
    tlbwarm = True
    exp_nowx = False
    def __init__(self, **kw):
        for k, v in kw.items():
            assert hasattr(Cfg, k), k
            setattr(self, k, v)

SLOT = [0, 32768, 65536, 122880]
WB = 65536
XB = 114688
R = 98304
ST = 159744
PART = 86016
TS_OFF = 64 << 20
FLAG_OFF = 32 << 20

vK0, vK1, vV, vW, vX = 1, 2, 3, 4, 5
vVD = [3, 41, 42, 43]
vKr0, vKr1 = 6, 7
vVr0, vVr1 = 8, 9
vXr = [10, 11, 12, 13]
vQr = [14, 15, 16, 17]
vPw = 18
vQw = 19
vWor = 20
vStW, vStR = 21, 22
vStO = 23
vM = [24, 25, 26, 27, 28, 29]
vL = [30, 31, 32, 33, 34, 35]
vWoD = list(range(160, 168))
vA0, vA1 = 38, 39
vNonce = 40
vKT = 6
vT = list(range(44, 64))
vS = 64

def S(i, t): return vS + (i * 6 + t) * 4

s_w = 3
sT0, sSoff, sT1, sT2 = 4, 5, 6, 7
SRD_X, SRD_W, SRD_K, SRD_V, SRD_O, SRD_P = 8, 12, 16, 20, 24, 28
s_c = 32
s_kvb = 33
s_wrb = 34
s_w1k = 35
sCW = list(range(36, 43))
sCX = list(range(44, 51))
sWO = list(range(36, 43))
sST = list(range(44, 51))
s_ws = 58
s_cnt = 60
s_ng, s_ng2, s_slotR, s_slotN, s_slotD, s_stoff, s_stprev, s_wooff = 71, 72, 73, 74, 75, 76, 77, 78
s_b, s_hh, s_h, s_br = 79, 80, 81, 82
s_G = 83
s_tsoff = 88
s_nonce = 94
s_ones = 95
s_swap = 57
s_oob = 78
SRD_G, SRD_OUT = 64, 68
SRD_OUT = 52
s_dbgp = 96
s_outp = 98

def srd(n): return "s[%d:%d]" % (n, n + 3)
def vr(n, c=4): return "v[%d:%d]" % (n, n + c - 1)
def ar(n, c=4): return "a[%d:%d]" % (n, n + c - 1)

def weave(main, fill, lo=0, hi=None):
    if hi is None: hi = len(main)
    out = []
    n = hi - lo
    k = 0
    for i, m in enumerate(main):
        out.append(m)
        if lo <= i < hi:
            tgt = min(len(fill), -(-(len(fill) * (i - lo + 1)) // n))
            while k < tgt:
                out.append(fill[k]); k += 1
    while k < len(fill):
        out.append(fill[k]); k += 1
    return out

def merge(a, b):
    if not a: return list(b)
    if not b: return list(a)
    return weave(a, b) if len(a) >= len(b) else weave(b, a)

class K1:
    def __init__(self, cfg):
        self.cfg = cfg
        self.p = Prog()
        self.nstamp = 0
        self.vTs = 62
        self.npf = 0

    def emit(self, seq):
        for u in seq:
            if isinstance(u, (list, tuple)): self.emit(u)
            elif callable(u): u()
            elif isinstance(u, Ins): self.p.raw(u)
            else: self.p.e(u)

    def dma(self, vaddr, srdn, soff, m0, tag, aux, imm=0):
        u = []
        if m0 is not None:
            if isinstance(m0, int): u.append("s_mov_b32 m0, %d" % m0)
            else: u.append("s_add_u32 m0, s%d, %d" % m0 if m0[1] else "s_mov_b32 m0, s%d" % m0[0])
        if isinstance(soff, int) and self.cfg.aswap and srdn in (SRD_K, SRD_V):
            u.append("s_xor_b32 s%d, s%d, %d" % (sSoff, s_swap, soff)); sreg = sSoff
        elif isinstance(soff, int):
            u.append("s_mov_b32 s%d, %d" % (sSoff, soff)); sreg = sSoff
        elif soff[1] is None:
            sreg = soff[0]
            if m0 is not None: u.append("s_nop 0")
        else:
            u.append("s_add_u32 s%d, s%d, %d" % (sSoff, soff[0], soff[1])); sreg = sSoff
        u.append(Ins("buffer_load_dwordx4 v%d, %s, s%d offen %s%s lds" % (vaddr, srd(srdn), sreg, ("offset:%d " % imm) if imm else "", aux), tag))
        return u

    def stamp(self):
        cfg = self.cfg
        if cfg.dbg:
            i = self.nstamp; self.nstamp += 1
            lab = "L_st%d" % i
            return ["s_cmp_lg_u32 s89, 0", "s_cbranch_scc1 %s" % lab,
                    Ins("s_memrealtime s[86:87]", "nocount"), Ins("s_waitcnt lgkmcnt(0)", "nocredit"),
                    "v_mov_b32 v%d, s86" % self.vTs, "v_mov_b32 v%d, %d" % (self.vTs + 1, 4 * (i + 1)),
                    Ins("global_store_dword v%d, v%d, s[100:101]" % (self.vTs + 1, self.vTs), 'nocount'), lab + ":"]
        if not cfg.stamps: return []
        i = self.nstamp; self.nstamp += 1
        return ["s_memrealtime s[86:87]", "s_memtime s[92:93]", "s_waitcnt lgkmcnt(0)",
                "v_mov_b32 v%d, s86" % self.vTs, "v_mov_b32 v%d, s%d" % (self.vTs + 1, s_tsoff),
                Ins("global_store_dword v%d, v%d, s[84:85] offset:%d" % (self.vTs + 1, self.vTs, 4 * i), 'nocount'),
                "v_mov_b32 v%d, s92" % self.vTs,
                Ins("global_store_dword v%d, v%d, s[84:85] offset:%d" % (self.vTs + 1, self.vTs, 128 + 4 * i), 'nocount')]

    def code_prefetch(self, t0, t2):
        e, p = self.p.e, self.p
        i = self.npf; self.npf += 1
        e("s_cmp_lg_u32 s%d, 0" % s_w); e("s_cbranch_scc1 L_nopf%d" % i)
        e("s_getpc_b64 s[90:91]")
        e("L_pc%d:" % i)
        e("s_sub_u32 s90, s90, L_pc%d-%s" % (i, KNAME)); e("s_subb_u32 s91, s91, 0")
        e("s_lshr_b32 s4, s2, 3"); e("s_lshl_b32 s4, s4, 11")
        e("v_lshlrev_b32 v%d, 7, v0" % t0); e("v_add_u32 v%d, s4, v%d" % (t0, t0))
        e("v_mov_b32 v%d, s91" % (t2 + 1))
        e("v_add_co_u32 v%d, vcc, s90, v%d" % (t2, t0)); e("v_addc_co_u32 v%d, vcc, 0, v%d, vcc" % (t2 + 1, t2 + 1))
        e("v_cmp_gt_u32 vcc, L_k1_end-%s, v%d" % (KNAME, t0))
        e("s_and_b64 exec, vcc, 0xffff")
        e("s_cbranch_execz L_nopfx%d" % i)
        p.raw(Ins("global_load_dword v%d, v[%d:%d], off" % (vNonce, t2, t2 + 1), "nocount"))
        e("L_nopfx%d:" % i)
        e("s_mov_b64 exec, -1")
        e("s_nop 4")
        e("L_nopf%d:" % i)

    def kv_slot(self, n):
        if self.cfg.h5 == 1: return SLOT[n] if n < 2 else SLOT[(0, 2, 1)[(n - 2) % 3]]
        return SLOT[n % 4] if self.cfg.s4 else SLOT[n % 3]
    def kv_block(self, n):
        cfg = self.cfg
        slot = self.kv_slot(n)
        tag = "B%d" % n
        us = [lambda: self.p.group(tag)]
        if n < 8 and cfg.krow:
            for m in range(8):
                tmp = vK1 if m & 1 else vKT
                u = ["v_xor_b32 v%d, %d, v%d" % (tmp, 32 * m, vK0)]
                if m % 4 == 0:
                    u += self.dma(tmp, SRD_K, n * 32768 + m * 1024, (s_kvb, slot + m * 1024), tag, cfg.aux_kv)
                else:
                    u += self.dma(tmp, SRD_K, (sSoff, None), None, tag, cfg.aux_kv, imm=(m % 4) * 1024)
                us.append(u)
        elif n < 8:
            for m in range(4):
                for kh in range(2):
                    us.append(self.dma(vK1 if kh else vK0, SRD_K, n * 32768 + m * 128, (s_kvb, slot + (m * 2 + kh) * 1024), tag, cfg.aux_kv))
        else:
            for m in range(8):
                if m % 4 == 0:
                    us.append(self.dma(vVD[0], SRD_V, (n - 8) * 32768 + m * 4096, (s_kvb, slot + m * 1024), tag, cfg.aux_kv))
                else:
                    us.append(self.dma(vVD[m % 4], SRD_V, (sSoff, None), None, tag, cfg.aux_kv, imm=(m % 4) * 1024))
        return us

    def build(self):
        cfg, p, e = self.cfg, self.p, self.p.e
        if cfg.stamps and cfg.t00: p.raw(Ins("s_memrealtime s[76:77]", "nocount"))
        e("s_cmp_ge_u32 s2, 256")
        e("s_cbranch_scc1 L_k1_end")
        e("s_load_dwordx8 s[36:43], s[0:1], 0")
        e("s_load_dwordx2 s[44:45], s[0:1], 32")
        e("s_load_dwordx8 s[48:55], s[0:1], 40")
        e("s_load_dwordx2 s[56:57], s[0:1], 72")
        e("s_load_dwordx2 s[58:59], s[0:1], 96")
        e("s_load_dwordx4 s[96:99], s[0:1], 80")
        e("v_lshrrev_b32 v60, 6, v0")
        e("v_and_b32 v0, 63, v0")
        e("v_readfirstlane_b32 s%d, v60" % s_w)
        if cfg.code_pf and cfg.pf_first: self.code_prefetch(vT[0], vT[2])
        e("s_and_b32 s4, s2, 7")
        e("s_lshr_b32 s6, s2, 3")
        e("s_lshr_b32 s%d, s6, 4" % s_br)
        e("s_lshr_b32 s%d, s6, 1" % s_b)
        e("s_and_b32 s%d, s%d, 7" % (s_b, s_b))
        e("s_and_b32 s%d, s6, 1" % s_hh)
        e("s_lshl_b32 s%d, s4, 1" % s_h)
        e("s_add_u32 s%d, s%d, s%d" % (s_h, s_h, s_hh))
        e("s_lshl_b32 s6, s%d, 3" % s_b); e("s_add_u32 s6, s6, s4")
        e("s_lshl_b32 s7, s%d, 4" % s_b); e("s_add_u32 s7, s7, s%d" % s_h)
        e("s_cmp_eq_u32 s%d, 0" % s_br)
        e("s_cselect_b32 s6, s6, s7")
        e("s_lshl_b32 s61, s6, 18")
        e("s_lshl_b32 s%d, s%d, 13" % (s_kvb, s_w))
        e("s_mul_i32 s%d, s%d, 12288" % (s_wrb, s_w)); e("s_add_u32 s%d, s%d, %d" % (s_wrb, s_wrb, WB))
        e("s_lshl_b32 s%d, s%d, 10" % (s_w1k, s_w))
        e("s_mov_b32 s%d, 0x3db8aa3b" % s_c)
        e("s_lshl_b32 s%d, s%d, 3" % (s_G, s_br)); e("s_add_u32 s%d, s%d, s%d" % (s_G, s_G, s_b))
        if cfg.rot:
            e("s_mul_i32 s62, s%d, %d" % (s_hh, cfg.rot_hh)); e("s_add_u32 s62, s62, s%d" % s_b)
            e("s_cmp_ge_u32 s62, 7"); e("s_cselect_b32 s6, 7, 0"); e("s_sub_u32 s62, s62, s6")
        else:
            e("s_mov_b32 s62, 0")
        t0, t1, t2, t3, t4 = vT[:5]
        l3, l7, l4, i15 = vT[5:9]
        e("v_lshrrev_b32 v%d, 3, v0" % l3)
        e("v_and_b32 v%d, 7, v0" % l7)
        e("v_lshrrev_b32 v%d, 4, v0" % l4)
        e("v_and_b32 v%d, 15, v0" % i15)
        e("v_and_b32 v%d, 1, v%d" % (t0, l4)); e("v_lshlrev_b32 v%d, 2, v%d" % (t0, t0))
        e("v_xor_b32 v%d, v%d, v%d" % (t0, l7, t0)); e("v_lshlrev_b32 v%d, 4, v%d" % (t0, t0))
        e("s_lshl_b32 s6, s%d, 7" % s_w)
        e("v_add_u32 v%d, s6, v%d" % (t0, t0))
        e("v_lshlrev_b32 v%d, 13, v%d" % (t1, l3)); e("v_add_u32 v%d, v%d, v%d" % (vW, t0, t1))
        e("v_lshlrev_b32 v%d, 9, v%d" % (t1, l3)); e("v_add_u32 v%d, v%d, v%d" % (vV, t0, t1))
        e("s_lshl_b32 s6, s%d, 3" % s_w); e("v_add_u32 v%d, s6, v%d" % (t2, l3)); e("v_mul_u32_u24 v%d, 896, v%d" % (t2, t2))
        e("s_and_b32 s7, s%d, 1" % s_w); e("s_lshl_b32 s7, s7, 2")
        e("v_add_u32 v%d, s7, v%d" % (t3, l4)); e("v_xor_b32 v%d, v%d, v%d" % (t3, l7, t3)); e("v_lshlrev_b32 v%d, 4, v%d" % (t3, t3))
        e("v_add_u32 v%d, v%d, v%d" % (vX, t2, t3))
        e("s_waitcnt lgkmcnt(0)")
        if cfg.stamps:
            e("s_mov_b32 s84, s58"); e("s_mov_b32 s85, s59")
            e("s_lshl_b32 s%d, s2, 2" % s_tsoff); e("s_add_u32 s%d, s%d, s%d" % (s_tsoff, s_tsoff, s_w))
            e("s_lshl_b32 s%d, s%d, 8" % (s_tsoff, s_tsoff)); e("s_add_u32 s%d, s%d, %d" % (s_tsoff, s_tsoff, TS_OFF))
        if cfg.dbg:
            e("s_sub_u32 s89, s2, %d" % cfg.dbg_wg); e("s_or_b32 s89, s89, s%d" % s_w)
            e("s_mov_b32 s100, s98"); e("s_mov_b32 s101, s99")
        if cfg.stamps and cfg.t00:
            i = self.nstamp; self.nstamp += 1
            e("v_mov_b32 v62, s76"); e("v_mov_b32 v63, s%d" % s_tsoff)
            p.raw(Ins("global_store_dword v63, v62, s[84:85] offset:%d" % (4 * i), "nocount"))
        self.emit(self.stamp())
        e("s_cmp_eq_u32 s%d, 0" % s_br)
        for (dst, a, b) in ((SRD_X, 36, 48), (SRD_K, 38, 50), (SRD_V, 40, 52), (SRD_W, 42, 54), (SRD_O, 44, 56)):
            e("s_cselect_b32 s%d, s%d, s%d" % (dst, a, b)); e("s_cselect_b32 s%d, s%d, s%d" % (dst + 1, a + 1, b + 1))
        e("s_mul_i32 s4, s%d, %d" % (s_b, PART))
        e("s_add_u32 s%d, s%d, s4" % (SRD_X, SRD_X)); e("s_addc_u32 s%d, s%d, 0" % (SRD_X + 1, SRD_X + 1))
        e("s_mov_b32 s%d, %d" % (SRD_X + 2, PART)); e("s_mov_b32 s%d, 0x20000" % (SRD_X + 3))
        e("s_lshl_b32 s4, s%d, 9" % s_h)
        e("s_add_u32 s%d, s%d, s4" % (SRD_W, SRD_W)); e("s_addc_u32 s%d, s%d, 0" % (SRD_W + 1, SRD_W + 1))
        e("s_sub_u32 s%d, %d, s4" % (SRD_W + 2, 448 * 8192)); e("s_mov_b32 s%d, 0x20000" % (SRD_W + 3))
        def chunk_offsets(cs):
            for c in cs:
                if c == 0: e("s_mov_b32 s63, s62")
                else:
                    e("s_add_u32 s63, s63, 1"); e("s_cmp_eq_u32 s63, 7"); e("s_cselect_b32 s63, 0, s63")
                e("s_lshl_b32 s%d, s63, 7" % sCX[c]); e("s_lshl_b32 s%d, s63, 19" % sCW[c])
        chunk_offsets([0])
        def xdma(c):
            us = [lambda: p.group("X%d" % c)]
            for i in range(3):
                us.append(self.dma(vX, SRD_X, (sCX[c], i * 32 * 896), (s_w1k, XB + (c % 3) * 12288 + i * 4096), "X%d" % c, cfg.aux_x))
            return us
        def wslot(n):
            if not cfg.h5: return (True, (n % 6) * 2048)
            j = n % 14
            if j < 4: return (False, SLOT[0] + j * 2048)
            if j < 8: return (False, SLOT[1] + (j - 4) * 2048)
            return (True, (j - 8) * 2048)
        def wdma(n):
            us = [lambda: p.group("W%d" % n)]
            ring, off = wslot(n)
            for m in range(2):
                us.append(self.dma(vW, SRD_W, (sCW[n >> 2], ((n & 3) * 16 + 8 * m) * 8192), (s_wrb if ring else s_kvb, off + m * 1024), "W%d" % n, cfg.aux_w))
            return us
        self.emit(xdma(0)); self.emit(wdma(0)); self.emit(wdma(1))
        if cfg.b0_first:
            e("s_add_u32 s%d, s%d, s61" % (SRD_K, SRD_K)); e("s_addc_u32 s%d, s%d, 0" % (SRD_K + 1, SRD_K + 1))
            e("s_mov_b32 s%d, 262144" % (SRD_K + 2)); e("s_mov_b32 s%d, 0x20000" % (SRD_K + 3))
            e("v_lshrrev_b32 v%d, 5, v0" % t0); e("v_and_b32 v%d, 31, v0" % t1); e("v_xor_b32 v%d, v%d, v%d" % (t1, t1, t0))
            e("v_lshlrev_b32 v%d, 4, v%d" % (t1, t1)); e("v_lshlrev_b32 v%d, 9, v%d" % (t0, t0)); e("v_add_u32 v%d, v%d, v%d" % (t0, t0, t1))
            e("v_add_u32 v%d, s%d, v%d" % (vK0, s_kvb, t0))
            self.emit(self.kv_block(0))
        if cfg.code_pf and not cfg.pf_first: self.code_prefetch(t0, t2)
        if cfg.aswap:
            e("s_cmp_eq_u32 s%d, 0" % s_br); e("s_cselect_b32 s%d, s%d, 0" % (s_swap, s_hh)); e("s_lshl_b32 s%d, s%d, 15" % (s_swap, s_swap))
        if cfg.kfirst:
            e("s_add_u32 s%d, s%d, s61" % (SRD_K, SRD_K)); e("s_addc_u32 s%d, s%d, 0" % (SRD_K + 1, SRD_K + 1))
            e("s_mov_b32 s%d, 262144" % (SRD_K + 2)); e("s_mov_b32 s%d, 0x20000" % (SRD_K + 3))
            for x in ("v_lshrrev_b32 v%d, 5, v0" % t0, "v_and_b32 v%d, 31, v0" % t1, "v_xor_b32 v%d, v%d, v%d" % (t1, t1, t0),
                      "v_lshlrev_b32 v%d, 4, v%d" % (t1, t1), "v_lshlrev_b32 v%d, 9, v%d" % (t0, t0), "v_add_u32 v%d, v%d, v%d" % (t0, t0, t1),
                      "v_add_u32 v%d, s%d, v%d" % (vK0, s_kvb, t0)): e(x)
            for b in range(cfg.kfirst): self.emit(self.kv_block(b))
        chunk_offsets(range(1, 7))
        e("v_lshrrev_b32 v%d, 5, v0" % t0); e("v_lshlrev_b32 v%d, 3, v%d" % (t0, t0)); e("v_lshrrev_b32 v%d, 2, v%d" % (t1, i15))
        e("v_add_u32 v%d, v%d, v%d" % (t0, t0, t1)); e("v_lshlrev_b32 v%d, 7, v%d" % (t0, t0))
        e("v_and_b32 v%d, 1, v%d" % (t1, l4)); e("v_lshlrev_b32 v%d, 1, v%d" % (t1, t1))
        e("v_and_b32 v%d, 3, v%d" % (t4, i15)); e("v_lshrrev_b32 v%d, 1, v%d" % (t4, t4)); e("v_add_u32 v%d, v%d, v%d" % (t1, t1, t4))
        e("v_lshrrev_b32 v%d, 3, v%d" % (t4, i15)); e("v_lshlrev_b32 v%d, 2, v%d" % (t4, t4)); e("v_xor_b32 v%d, v%d, v%d" % (t1, t1, t4))
        e("v_lshlrev_b32 v%d, 4, v%d" % (t1, t1)); e("v_add_u32 v%d, v%d, v%d" % (t0, t0, t1))
        e("v_and_b32 v%d, 1, v%d" % (t1, i15)); e("v_lshlrev_b32 v%d, 3, v%d" % (t1, t1)); e("v_add_u32 v%d, v%d, v%d" % (t0, t0, t1))
        e("v_add_u32 v%d, s%d, v%d" % (vVr0, s_kvb, t0)); e("v_xor_b32 v%d, 64, v%d" % (vVr1, vVr0))
        e("v_add_u32 v%d, s%d, v%d" % (vA0, s_wrb, t0)); e("v_xor_b32 v%d, 64, v%d" % (vA1, vA0))
        e("v_and_b32 v%d, 31, v0" % t0); e("v_lshrrev_b32 v%d, 1, v%d" % (t1, t0)); e("v_and_b32 v%d, 7, v%d" % (t1, t1))
        e("v_lshrrev_b32 v%d, 5, v0" % t4); e("v_xor_b32 v%d, v%d, v%d" % (t1, t1, t4)); e("v_lshlrev_b32 v%d, 4, v%d" % (t1, t1))
        e("v_lshlrev_b32 v%d, 7, v%d" % (t0, t0)); e("v_add_u32 v%d, v%d, v%d" % (t0, t0, t1)); e("v_add_u32 v%d, %d, v%d" % (vXr[0], XB, t0))
        for j in range(1, 4): e("v_xor_b32 v%d, %d, v%d" % (vXr[j], 32 * j, vXr[0]))
        D = []
        d = D.append
        if not cfg.kfirst:
            d(["s_add_u32 s%d, s%d, s61" % (SRD_K, SRD_K), "s_addc_u32 s%d, s%d, 0" % (SRD_K + 1, SRD_K + 1)])
            d("s_mov_b32 s%d, 262144" % (SRD_K + 2)); d("s_mov_b32 s%d, 0x20000" % (SRD_K + 3))
        d(["s_add_u32 s%d, s%d, s61" % (SRD_V, SRD_V), "s_addc_u32 s%d, s%d, 0" % (SRD_V + 1, SRD_V + 1)])
        d("s_mov_b32 s%d, 262144" % (SRD_V + 2)); d("s_mov_b32 s%d, 0x20000" % (SRD_V + 3))
        d(["s_mul_i32 s4, s%d, %d" % (s_h, 256 * 896), "s_add_u32 s%d, s%d, s4" % (SRD_O, SRD_O), "s_addc_u32 s%d, s%d, 0" % (SRD_O + 1, SRD_O + 1)])
        d("s_mov_b32 s%d, %d" % (SRD_O + 2, 256 * 896)); d("s_mov_b32 s%d, 0x20000" % (SRD_O + 3))
        d(["s_lshl_b32 s4, s%d, 4" % s_G, "s_add_u32 s4, s4, s%d" % s_h, "s_mul_i32 s4, s4, %d" % PART,
           "s_add_u32 s4, s4, %d" % cfg.part_off, "s_add_u32 s%d, s58, s4" % SRD_P, "s_addc_u32 s%d, s59, 0" % (SRD_P + 1)])
        d("s_mov_b32 s%d, %d" % (SRD_P + 2, PART)); d("s_mov_b32 s%d, 0x20000" % (SRD_P + 3))
        d("s_mov_b32 s%d, s96" % SRD_OUT); d("s_mov_b32 s%d, s97" % (SRD_OUT + 1))
        d("s_mov_b32 s%d, %d" % (SRD_OUT + 2, 8 * 96 * 1792)); d("s_mov_b32 s%d, 0x20000" % (SRD_OUT + 3))
        d("s_mov_b32 s%d, s98" % s_dbgp); d("s_mov_b32 s%d, s99" % (s_dbgp + 1))
        if cfg.aswap:
            d(["s_cmp_eq_u32 s%d, 0" % s_br, "s_cselect_b32 s%d, s%d, 0" % (s_swap, s_hh), "s_lshl_b32 s%d, s%d, 15" % (s_swap, s_swap)])
        assert cfg.krow
        if not cfg.kfirst:
            for x in ("v_lshrrev_b32 v%d, 5, v0" % t0, "v_and_b32 v%d, 31, v0" % t1, "v_xor_b32 v%d, v%d, v%d" % (t1, t1, t0),
                      "v_lshlrev_b32 v%d, 4, v%d" % (t1, t1), "v_lshlrev_b32 v%d, 9, v%d" % (t0, t0), "v_add_u32 v%d, v%d, v%d" % (t0, t0, t1),
                      "v_add_u32 v%d, s%d, v%d" % (vK0, s_kvb, t0)): d(x)
        for x in ("v_xor_b32 v%d, v%d, v%d" % (t1, l4, i15), "v_lshlrev_b32 v%d, 4, v%d" % (t1, t1), "v_lshlrev_b32 v%d, 9, v%d" % (t0, i15),
                  "v_add_u32 v%d, v%d, v%d" % (t0, t0, t1), "v_add_u32 v%d, %d, v%d" % (vQr[0], R, t0)): d(x)
        for j in range(1, 4): d("v_xor_b32 v%d, %d, v%d" % (vQr[j], 64 * j, vQr[0]))
        d(["s_lshl_b32 s6, s%d, 1" % s_w, "v_lshrrev_b32 v%d, 1, v%d" % (t0, l4), "v_add_u32 v%d, s6, v%d" % (t0, t0)])
        for x in ("v_lshrrev_b32 v%d, 1, v%d" % (t1, i15), "v_xor_b32 v%d, v%d, v%d" % (t0, t0, t1), "v_lshlrev_b32 v%d, 4, v%d" % (t0, t0),
                  "v_lshlrev_b32 v%d, 7, v%d" % (t1, i15), "v_add_u32 v%d, v%d, v%d" % (t0, t0, t1),
                  "v_and_b32 v%d, 1, v%d" % (t1, l4), "v_lshlrev_b32 v%d, 3, v%d" % (t1, t1), "v_add_u32 v%d, v%d, v%d" % (t0, t0, t1),
                  "v_add_u32 v%d, %d, v%d" % (vPw, R, t0)): d(x)
        d(["s_lshl_b32 s6, s%d, 3" % s_w, "v_xor_b32 v%d, s6, v%d" % (t0, i15)])
        for x in ("v_lshlrev_b32 v%d, 4, v%d" % (t0, t0), "v_and_b32 v%d, 31, v0" % t1, "v_lshlrev_b32 v%d, 9, v%d" % (t1, t1), "v_add_u32 v%d, v%d, v%d" % (t0, t0, t1),
                  "v_lshrrev_b32 v%d, 5, v0" % t1, "v_lshlrev_b32 v%d, 3, v%d" % (t1, t1), "v_add_u32 v%d, v%d, v%d" % (t0, t0, t1),
                  "v_add_u32 v%d, %d, v%d" % (vQw, R, t0)): d(x)
        for x in ("v_lshlrev_b32 v%d, 3, v%d" % (t0, l4), "v_lshrrev_b32 v%d, 2, v%d" % (t1, i15), "v_add_u32 v%d, v%d, v%d" % (t0, t0, t1), "v_lshlrev_b32 v%d, 7, v%d" % (t0, t0)): d(x)
        d(["v_and_b32 v%d, 3, v%d" % (t1, i15), "v_lshrrev_b32 v%d, 1, v%d" % (t1, t1), "s_lshl_b32 s6, s%d, 1" % s_w, "v_add_u32 v%d, s6, v%d" % (t1, t1)])
        for x in ("v_lshrrev_b32 v%d, 3, v%d" % (t4, i15), "v_and_b32 v%d, 1, v%d" % (t3, l4), "v_lshlrev_b32 v%d, 1, v%d" % (t3, t3), "v_or_b32 v%d, v%d, v%d" % (t4, t4, t3),
                  "v_lshlrev_b32 v%d, 1, v%d" % (t4, t4), "v_xor_b32 v%d, v%d, v%d" % (t1, t1, t4), "v_lshlrev_b32 v%d, 4, v%d" % (t1, t1), "v_add_u32 v%d, v%d, v%d" % (t0, t0, t1),
                  "v_and_b32 v%d, 1, v%d" % (t1, i15), "v_lshlrev_b32 v%d, 3, v%d" % (t1, t1), "v_add_u32 v%d, v%d, v%d" % (vWor, t0, t1)): d(x)
        for x in ("v_lshlrev_b32 v%d, 4, v%d" % (t0, i15), "v_add_u32 v%d, %d, v%d" % (vStR, ST, t0)): d(x)
        d(["s_lshl_b32 s6, s%d, 2" % s_w, "v_add_u32 v%d, s6, v%d" % (vStW, vStR)])
        d("v_lshlrev_b32 v%d, 4, v0" % vStO)
        def nonce_pub():
            e("s_or_b32 s4, s2, s%d" % s_w); e("s_cmp_lg_u32 s4, 0"); e("s_cbranch_scc1 L_nononce")
            p.raw(Ins("s_memrealtime s[90:91]", "nocount")); p.raw(Ins("s_waitcnt lgkmcnt(0)", "nocredit")); e("s_or_b32 s90, s90, 1")
            e("v_mov_b32 v%d, s90" % t2); e("v_mov_b32 v%d, 0" % t3)
            p.raw(Ins("global_store_dword v%d, v%d, s[%d:%d] sc1" % (t3, t2, s_dbgp, s_dbgp + 1), 'nocount'))
            e("L_nononce:")
        if not cfg.defer:
            self.emit(D); D = []
            if cfg.fuse: nonce_pub()

        def qacc(dt, qt): return vS + (dt * 3 + qt) * 16
        FA = lambda buf, dt: buf * 20 + dt * 4
        FB = lambda buf, qt: buf * 20 + 8 + qt * 4
        def q_reads(n):
            buf = n & 3; xs = ((n >> 2) % 3) * 12288
            ring, sl = wslot(n)
            rd = []
            for dt in range(2):
                va = (vA0 if dt == 0 else vA1) if ring else (vVr0 if dt == 0 else vVr1)
                for jj in range(2):
                    rd.append("ds_read_b64_tr_b16 %s, v%d offset:%d" % (ar(FA(buf, dt) + 2 * jj, 2), va, sl + jj * 512))
            for qt in range(3):
                rd.append("ds_read_b128 %s, v%d offset:%d" % (ar(FB(buf, qt)), vXr[n & 3], xs + qt * 4096))
            return [rd[0], rd[1], rd[4], rd[2], rd[3], rd[5], rd[6]]
        def q_mfmas(n):
            buf = n & 3
            return ["v_mfma_f32_32x32x16_bf16 %s, %s, %s, %s" % (vr(qacc(dt, qt), 16), ar(FA(buf, dt)), ar(FB(buf, qt)), "0" if n == 0 else vr(qacc(dt, qt), 16))
                    for qt in range(3) for dt in range(2)]
        def KFr(i, s): return ar(192 + (i & 1) * 32 + s * 4)
        vKa = [vT[8], vT[9], vT[10], vT[11]]
        def k_addr(i):
            if not cfg.krow: return []
            d = self.kv_slot(i) - R
            return ["s_add_u32 s4, s%d, %d" % (s_kvb, d & 0xffffffff)] + ["v_add_u32 v%d, s4, v%d" % (vKa[j], vQr[j]) for j in range(4)]
        def k_read(i, s):
            if cfg.krow:
                return "ds_read_b128 %s, v%d offset:%d" % (KFr(i, s), vKa[s & 3], (s >> 2) * 256)
            slot = self.kv_slot(i)
            base = (vKr1 if s & 1 else vKr0)
            off = slot + (s >> 1) * 2048
            if off >= 65536:
                base = (vT[11] if s & 1 else vT[10]); off -= 65536
            return "ds_read_b128 %s, v%d offset:%d" % (KFr(i, s), base, off)
        self.emit(wdma(2)); self.emit(wdma(3)); self.emit(xdma(1))
        if not cfg.h5 or cfg.wpro == 6: self.emit(wdma(4)); self.emit(wdma(5))
        p.wait_vm("X0"); p.wait_vm("W1")
        e("s_barrier")
        self.emit(self.stamp())
        self.emit(q_reads(0)); self.emit(q_reads(1))
        wsched = {}
        kread = {}
        if cfg.h5:
            wsched = dict(cfg.wsched)
            for st_, ks in wsched.items():
                for k_ in ks: assert k_ - 14 <= st_ and k_ - 2 > st_
            kb0, kb1 = self.kv_block(0), self.kv_block(1)
            g = [[kb0[0], kb0[1]]] + kb0[2:9] + [[kb1[0], kb1[1]]] + kb1[2:9]
            kplan = {}
            for st_, (lo, hi) in cfg.h5_plan.items(): kplan[st_] = g[lo:hi]
            done = max(hi for (lo, hi) in cfg.h5_plan.values())
            self.k_rest = g[done:]
            assert min(st_ for st_, (lo, hi) in cfg.h5_plan.items() if lo < 8) >= 17 and min([99] + [st_ for st_, (lo, hi) in cfg.h5_plan.items() if hi > 8]) >= 21
        elif cfg.kfirst == 2:
            kplan = {}; self.k_rest = []
        elif cfg.kfirst == 1:
            kb1 = self.kv_block(1)
            kplan = {22: kb1[0:5], 23: kb1[5:8], 26: kb1[8:9]}; self.k_rest = []
        else:
            kb0 = self.kv_block(0); kb1 = self.kv_block(1)
            if cfg.kpace:
                kplan = {22: kb0[0:5], 23: kb0[5:8], 26: kb0[8:9] + kb1[0:4], 27: kb1[4:7]}
                self.k_rest = kb1[7:9]
            else:
                kb01 = kb0 + kb1
                kplan = dict((cfg.kstart + j, kb01[(len(kb01) * j) // 6:(len(kb01) * (j + 1)) // 6]) for j in range(6))
                self.k_rest = []
        for n in range(28):
            pre = []
            rd = []
            if n + 2 < 28:
                p.wait_vm("W%d" % (n + 2))
                if (n + 2) % 4 == 0:
                    p.wait_vm("X%d" % ((n + 2) >> 2))
                    if not cfg.xlate: e("s_waitcnt lgkmcnt(0)")
                    e("s_barrier")
                rd = q_reads(n + 2)
            if n in kread:
                b_ = kread[n]
                rd = rd + [k_addr(b_), (lambda b_=b_: p.wait_vm("B%d" % b_))] + [k_read(b_, s) for s in range(8)]
            dm = []
            if cfg.h5:
                for k_ in wsched.get(n, []): dm += wdma(k_)
            elif n + 6 < 28 and not cfg.exp_nowx: dm += wdma(n + 6)
            if cfg.xlate:
                if (n + 2) % 4 == 0 and 2 <= ((n + 2) >> 2) + 1 <= 6: dm += xdma(((n + 2) >> 2) + 1)
            else:
                if n == 1 and not cfg.exp_nowx: dm += xdma(2)
                if (n + 2) % 4 == 0 and ((n + 2) >> 2) + 2 <= 6 and not cfg.exp_nowx: dm += xdma(((n + 2) >> 2) + 2)
            dm += kplan.get(n, [])
            if n in cfg.trickle:
                j_ = list(cfg.trickle).index(n)
                u_ = []
                if j_ == 0:
                    u_ += ["v_and_b32 v%d, 15, v0" % vNonce, "v_lshlrev_b32 v%d, 7, v%d" % (vNonce, vNonce), "v_add_u32 v%d, s%d, v%d" % (vT[16], s_kvb, vNonce)]
                u_ += ["s_mov_b32 s4, %d" % ((j_ // 4) * 32768 + (j_ % 4) * 2048),
                       Ins("buffer_load_dword v%d, v%d, %s, s4 offen %s" % (160 + j_, vT[16], srd(SRD_K), cfg.trickle_aux), "TR")]
                dm.append(u_)
            mf = q_mfmas(n)
            if cfg.defer and n < 16:
                dm = merge(dm, D[(len(D) * n) // 16:(len(D) * (n + 1)) // 16]) if dm else D[(len(D) * n) // 16:(len(D) * (n + 1)) // 16]
            if cfg.defer and n == 17 and cfg.fuse: dm = dm + [nonce_pub]
            seq = []
            nr = len(rd)
            rpos = [min(3, (4 * k) // max(nr, 1)) for k in range(nr)]
            dpos = [2 + (4 * k) // max(len(dm), 1) for k in range(len(dm))]
            for i, m in enumerate(mf):
                seq.append(m)
                seq += [rd[k] for k in range(nr) if rpos[k] == i]
                seq += [dm[k] for k in range(len(dm)) if min(dpos[k], 5) == i]
            self.emit(seq)
        if cfg.code_pf >= 2: self.code_prefetch(vT[0], vT[2])
        self.emit(self.stamp())
        e("s_waitcnt lgkmcnt(0)")
        e("s_barrier")
        blk4 = self.kv_block(2)
        def exch_write(src_of):
            seq = []
            for dt in range(2):
                for rg in range(4):
                    va = vT[12 + ((dt * 4 + rg) & 1)]
                    seq.append("v_xor_b32 v%d, %d, v%d" % (va, (4 * dt + rg) * 16, vQw))
                    for qt in range(3):
                        b = src_of(dt, qt) + rg * 4
                        ta = vT[14 + 2 * qt]
                        seq.append(["v_cvt_pk_bf16_f32 v%d, v%d, v%d" % (ta, b, b + 1), "v_cvt_pk_bf16_f32 v%d, v%d, v%d" % (ta + 1, b + 2, b + 3),
                                    "ds_write_b64 v%d, %s offset:%d" % (va, vr(ta, 2), qt * 16384)])
            return seq
        if cfg.kd3:
            self.emit(k_addr(0))
            pre0 = [lambda: p.wait_vm("B0")] + [k_read(0, s) for s in range(8)]
            self.emit(weave(exch_write(qacc), blk4 + pre0))
        elif cfg.h5 == 1:
            self.emit(k_addr(0))
            pre0 = self.k_rest + [lambda: p.wait_vm("B0")] + [k_read(0, s) for s in range(8)]
            self.emit(weave(exch_write(qacc), pre0, 0, 20))
        else:
            self.emit(weave(exch_write(qacc), self.k_rest + ([] if cfg.b2s0 else blk4), 8 if cfg.kpace else 0))
        if not cfg.krow:
            e("v_add_u32 v%d, 0x10000, v%d" % (vT[10], vKr0)); e("v_add_u32 v%d, 0x10000, v%d" % (vT[11], vKr1))
        e("s_waitcnt lgkmcnt(0)")
        e("s_barrier")
        self.emit(self.stamp())
        QF = lambda t, s: (s * 6 + t) * 4
        def q_read(t, s):
            return "ds_read_b128 %s, v%d offset:%d" % (ar(QF(t, s)), vQr[s & 3], t * 8192 + (s >> 2) * 256)
        def qk_mfma(i, t, s):
            c = "0" if s == 0 else vr(S(i, t))
            return "v_mfma_f32_16x16x32_bf16 %s, %s, %s, %s" % (vr(S(i, t)), KFr(i, s), ar(QF(t, s)), c)
        def max_ops(i):
            r = []
            for t in range(6):
                b = S(i, t)
                if cfg.prescale:
                    for k in range(4): r.append("v_mul_f32 v%d, s%d, v%d" % (b + k, s_c, b + k))
                if i == 0:
                    r.append("v_max3_f32 v%d, v%d, v%d, v%d" % (vM[t], b, b + 1, b + 2))
                    r.append("v_max_f32 v%d, v%d, v%d" % (vM[t], vM[t], b + 3))
                else:
                    r.append("v_max3_f32 v%d, v%d, v%d, v%d" % (vM[t], vM[t], b, b + 1))
                    r.append("v_max3_f32 v%d, v%d, v%d, v%d" % (vM[t], vM[t], b + 2, b + 3))
            return r
        for j in range(1, 4): e("v_add_u32 v%d, %d, v%d" % (vVD[j], j * 3072, vV))
        for i in range(8):
            if cfg.h5 == 1:
                mx = max_ops(i - 1) if i >= 1 else []
                if i == 0:
                    dm = self.kv_block(2) + self.kv_block(3)
                    self.emit([q_read(t, 0) for t in range(6)])
                    seq = []
                    for s in range(8):
                        nxq = [q_read(t, s + 1) for t in range(6)] if s < 7 else []
                        seq += weave([qk_mfma(0, t, s) for t in range(6)], nxq)
                    self.emit(weave(seq, dm[:9]))
                    self.k_b4 = dm[9:]
                else:
                    self.emit(k_addr(i))
                    p.wait_vm("B%d" % i)
                    self.emit([k_read(i, s) for s in range(8)])
                    mf = [qk_mfma(i, t, s) for s in range(8) for t in range(6)]
                    self.emit(mf[:6])
                    e("s_waitcnt lgkmcnt(0)")
                    dm = self.kv_block(i + 3)
                    if i == 1: dm = self.k_b4 + dm
                    self.emit(weave(mf[6:], merge(dm, mx), 0, 41))
                if cfg.fine and i < 7: self.emit(self.stamp())
                continue
            if cfg.kd3 and i == 0:
                dm = self.kv_block(3)
                self.emit([q_read(t, 0) for t in range(6)])
                seq = []
                for s in range(8):
                    nxq = [q_read(t, s + 1) for t in range(6)] if s < 7 else []
                    seq += weave([qk_mfma(0, t, s) for t in range(6)], nxq)
                self.emit(weave(seq, dm, 6, len(seq)))
                if cfg.fine: self.emit(self.stamp())
                continue
            if cfg.s4 and i == 1:
                e("s_waitcnt lgkmcnt(0)")
                e("s_barrier")
            self.emit(k_addr(i))
            p.wait_vm("B%d" % i)
            rd = [k_read(i, s) for s in range(8)]
            mx = max_ops(i - 1) if i >= 1 else []
            if cfg.kd3:
                dm = self.kv_block(i + 3)
                mf = [qk_mfma(i, t, s) for s in range(8) for t in range(6)]
                self.emit(rd)
                self.emit(mf[:6])
                e("s_waitcnt lgkmcnt(0)")
                self.emit(weave(mf[6:], merge(dm, mx), 0, 41))
            else:
                if cfg.s4:
                    dm = (self.kv_block(3) + self.kv_block(4)) if i == 1 else (self.kv_block(i + 3) if i >= 2 else [])
                else:
                    dm = self.kv_block(i + 2) if i >= 1 else []
                if i == 0:
                    self.emit([rd[0]] + [q_read(t, 0) for t in range(6)])
                    seq = []
                    for s in range(8):
                        nxq = ([rd[s + 1]] + [q_read(t, s + 1) for t in range(6)]) if s < 7 else []
                        seq += weave([qk_mfma(0, t, s) for t in range(6)], nxq)
                    self.emit(weave(seq, blk4) if cfg.b2s0 else seq)
                else:
                    mf = [qk_mfma(i, t, s) for s in range(8) for t in range(6)]
                    self.emit(rd)
                    if cfg.tlb2 and i == 2:
                        dm = dm + [[Ins("buffer_load_dword v%d, v%d, %s, 0 offen nt" % (248, vStO, srd(SRD_V)), "TW")]]
                    self.emit(weave(mf, merge(dm, mx), 2, 47))
            if cfg.fine and i < 7: self.emit(self.stamp())
        if cfg.code_pf >= 2: self.code_prefetch(vT[0], vT[2])
        self.emit(self.stamp())
        e("v_add_u32 v%d, 0x10000, v%d" % (vA0, vVr0)); e("v_add_u32 v%d, 0x10000, v%d" % (vA1, vVr1))
        vB0, vB1 = vKr0, vKr1
        e("v_add_u32 v%d, %d, v%d" % (vB0, SLOT[3], vVr0)); e("v_add_u32 v%d, %d, v%d" % (vB1, SLOT[3], vVr1))
        self.emit(max_ops(7))
        seq = []
        for t in range(6):
            a = vT[0 + (t & 1)]
            seq += ["v_mov_b32 v%d, v%d" % (a, vM[t]), "v_permlane32_swap_b32 v%d, v%d" % (a, vM[t]), "v_max_f32 v%d, v%d, v%d" % (vM[t], vM[t], a),
                    "v_mov_b32 v%d, v%d" % (a, vM[t]), "v_permlane16_swap_b32 v%d, v%d" % (a, vM[t]), "v_max_f32 v%d, v%d, v%d" % (vM[t], vM[t], a),
                    "ds_write_b32 v%d, v%d offset:%d" % (vStW, vM[t], t * 256)]
        chains = [seq[7 * t:7 * t + 7] for t in range(6)]
        chains = []
        for t in range(6):
            a = vT[t]
            chains.append(["v_mov_b32 v%d, v%d" % (a, vM[t]), "v_permlane32_swap_b32 v%d, v%d" % (a, vM[t]), "v_max_f32 v%d, v%d, v%d" % (vM[t], vM[t], a),
                           "v_mov_b32 v%d, v%d" % (a, vM[t]), "v_permlane16_swap_b32 v%d, v%d" % (a, vM[t]), "v_max_f32 v%d, v%d, v%d" % (vM[t], vM[t], a),
                           "ds_write_b32 v%d, v%d offset:%d" % (vStW, vM[t], t * 256)])
        for k in range(7):
            for t in range(6): e(chains[t][k])
        e("s_waitcnt lgkmcnt(0)")
        e("s_barrier")
        for t in range(5): e("ds_read_b128 %s, v%d offset:%d" % (vr(44 + 4 * t, 4), vStR, t * 256))
        for t in range(6):
            b = 44 + 4 * (t % 5)
            if t == 5: e("ds_read_b128 %s, v%d offset:%d" % (vr(b, 4), vStR, t * 256))
            e("v_max3_f32 v%d, v%d, v%d, v%d" % (vM[t], b, b + 1, b + 2)); e("v_max_f32 v%d, v%d, v%d" % (vM[t], vM[t], b + 3))
        if not cfg.prescale:
            for t in range(6): e("v_mul_f32 v%d, s%d, v%d" % (vM[t], s_c, vM[t]))
        for j in range(4): e("v_add_u32 v%d, %d, v%d" % (vXr[j], (R - XB) & 0xffffffff, vXr[j]))
        e("s_mov_b32 s%d, 0x3f803f80" % s_ones)
        for t in range(6): e("v_mov_b32 v%d, 0" % vL[t])
        def exp_ops(i):
            us = []
            for t in range(6):
                b = S(i, t)
                tm = [vT[0], vT[1], vT[2], vT[3]] if t % 2 == 0 else [vT[4], vT[5], vT[6], vT[7]]
                pk = vT[8 + 2 * (t % 2)] if False else (vT[12] + 2 * (t % 2))
                for k in range(4):
                    if cfg.prescale: us.append("v_sub_f32 v%d, v%d, v%d" % (tm[k], b + k, vM[t]))
                    else: us.append("v_fma_f32 v%d, v%d, s%d, -v%d" % (tm[k], b + k, s_c, vM[t]))
                for k in range(4): us.append("v_exp_f32 v%d, v%d" % (tm[k], tm[k]))
                if cfg.sumadd:
                    us.append("v_add_f32 v%d, v%d, v%d" % (vL[t], vL[t], tm[0]))
                    us.append("v_cvt_pk_bf16_f32 v%d, v%d, v%d" % (pk, tm[0], tm[1]))
                    us.append("v_add_f32 v%d, v%d, v%d" % (vL[t], vL[t], tm[1]))
                    us.append("v_cvt_pk_bf16_f32 v%d, v%d, v%d" % (pk + 1, tm[2], tm[3]))
                    us.append("v_add_f32 v%d, v%d, v%d" % (vL[t], vL[t], tm[2]))
                    us.append("v_add_f32 v%d, v%d, v%d" % (vL[t], vL[t], tm[3]))
                else:
                    us.append("v_cvt_pk_bf16_f32 v%d, v%d, v%d" % (pk, tm[0], tm[1]))
                    us.append("v_cvt_pk_bf16_f32 v%d, v%d, v%d" % (pk + 1, tm[2], tm[3]))
                    us.append("v_dot2c_f32_bf16 v%d, s%d, v%d" % (vL[t], s_ones, pk))
                    us.append("v_dot2c_f32_bf16 v%d, s%d, v%d" % (vL[t], s_ones, pk + 1))
                us.append("ds_write_b64 v%d, %s offset:%d" % (vPw, vr(pk, 2), (i & 1) * 12288 + t * 2048))
            return us
        self.emit(weave(exp_ops(0), self.kv_block(11 if cfg.s4 else 10)) if not (cfg.kd3 or cfg.h5 == 1) else exp_ops(0))
        self.emit(self.stamp())
        OAa = lambda dt, qt: (dt * 3 + qt) * 16
        OAv = lambda dt, qt: vS + (dt * 3 + qt) * 16
        VF = lambda buf, dt: 96 + buf * 20 + dt * 4
        PF = lambda buf, qt: 96 + buf * 20 + 8 + qt * 4
        def v_reads(i, u, buf):
            slot = self.kv_slot(8 + i)
            rd = []
            for dt in range(2):
                for jj in range(2):
                    off = slot + (16 * u + 4 * jj) * 128
                    base = vVr1 if dt else vVr0
                    if slot == SLOT[3]:
                        base = vB1 if dt else vB0; off -= SLOT[3]
                    elif off >= 65536:
                        base = vA1 if dt else vA0; off -= 65536
                    rd.append("ds_read_b64_tr_b16 %s, v%d offset:%d" % (ar(VF(buf, dt) + 2 * jj, 2), base, off))
            for qt in range(3):
                rd.append("ds_read_b128 %s, v%d offset:%d" % (ar(PF(buf, qt)), vXr[u], (i & 1) * 12288 + qt * 4096))
            return [rd[0], rd[1], rd[4], rd[2], rd[3], rd[5], rd[6]]
        def pv_mfmas(i, u, buf):
            out = []
            for qt in range(3):
                for dt in range(2):
                    d = ar(OAa(dt, qt), 16) if i < 4 else vr(OAv(dt, qt), 16)
                    c = "0" if (i == 0 and u == 0) else d
                    out.append("v_mfma_f32_32x32x16_bf16 %s, %s, %s, %s" % (d, ar(VF(buf, dt)), ar(PF(buf, qt)), c))
            return out
        wo_slot = (lambda k: SLOT[(0, 2, 1)[(11 + k) % 3]]) if cfg.h5 == 1 else ((lambda k: SLOT[k % 3]) if cfg.s4 else (lambda k: SLOT[(16 + k) % 3]))
        def wo_block(k):
            slot = wo_slot(k)
            tag = "WO%d" % k
            us = [lambda: p.group(tag)]
            for i in range(8):
                m0 = (s_kvb, slot + i * 1024) if i % 4 == 0 else None
                us.append(self.dma(vWoD[i], SRD_O, (sWO[k], None), m0, tag, cfg.aux_wo, imm=(i & 3) * 1024))
            return us
        if cfg.rot:
            e("s_cmp_eq_u32 s%d, 7" % s_b); e("s_cselect_b32 s%d, 0, s%d" % (s_ng, s_b))
        else:
            e("s_mov_b32 s%d, 0" % s_ng)
        e("s_mov_b32 s4, s%d" % s_ng)
        for k in range(7):
            if k: e("s_add_u32 s4, s4, 1"); e("s_cmp_eq_u32 s4, 7"); e("s_cselect_b32 s4, 0, s4")
            e("s_lshl_b32 s%d, s4, 7" % sWO[k])
            e("s_lshl_b32 s6, s4, 2"); e("s_add_u32 s6, s6, s%d" % s_w); e("s_mul_i32 s%d, s6, 3072" % sST[k])
        def split_reads(i, u, buf):
            r = v_reads(i, u, buf)
            return [r[2], r[5], r[6]], [r[0], r[1], r[3], r[4]]
        e("s_waitcnt lgkmcnt(0)")
        e("s_barrier")
        p.wait_vm("B8")
        self.emit(v_reads(0, 0, 0))
        for i in range(8):
            fill = exp_ops(i + 1) if i + 1 < 8 else []
            dm = []
            late = []
            if cfg.s4:
                if 1 <= i <= 4: dm = self.kv_block(8 + i + 3)
            elif 1 <= i <= 5: dm = self.kv_block(8 + i + 2)
            if i == 2 and cfg.tlb2:
                dm = dm + [[Ins("buffer_load_dword v%d, v%d, %s, 0 offen" % (64 + k_, vStO, srd(sr_)), "TW")] for k_, sr_ in enumerate((SRD_O, SRD_P, SRD_OUT))]
            if i == 1 and cfg.fuse:
                dm = [["v_mov_b32 v%d, 0" % vT[19], lambda: p.group("NC"),
                       Ins("global_load_dword v%d, v%d, s[%d:%d] sc1" % (vNonce, vT[19], s_dbgp, s_dbgp + 1), "NC")]] + dm
            if i == (3 if cfg.s4 else 4):
                a0, a1, a2 = 168, 169, 170
                late += ["v_lshrrev_b32 v%d, 3, v0" % a0, "s_lshl_b32 s6, s%d, 6" % s_w, "v_add_u32 v%d, s6, v%d" % (a0, a0), "v_mul_u32_u24 v%d, 896, v%d" % (a0, a0)]
                late += ["v_lshrrev_b32 v%d, 4, v0" % a1, "v_and_b32 v%d, 1, v%d" % (a1, a1), "v_lshlrev_b32 v%d, 1, v%d" % (a1, a1), "v_and_b32 v%d, 7, v0" % a2, "v_xor_b32 v%d, v%d, v%d" % (a1, a1, a2),
                         "v_lshlrev_b32 v%d, 4, v%d" % (a1, a1)]
                late += ["v_add_u32 v%d, v%d, v%d" % (a2, a0, a1), "v_xor_b32 v%d, 64, v%d" % (a1, a1), "v_add_u32 v%d, v%d, v%d" % (a1, a0, a1)]
                for k in range(8):
                    late.append("v_add_u32 v%d, %d, v%d" % (vWoD[k], k * 7168 - (k & 3) * 1024, a1 if k & 1 else a2))
            if cfg.s4 and i == 5: dm = wo_block(0)
            if i == 6:
                dm = wo_block(1 if cfg.s4 else 0)
                ch = []
                for t in range(6):
                    a = vT[t]
                    ch.append(["v_mov_b32 v%d, v%d" % (a, vL[t]), "v_permlane32_swap_b32 v%d, v%d" % (a, vL[t]), "v_add_f32 v%d, v%d, v%d" % (vL[t], vL[t], a),
                               "v_mov_b32 v%d, v%d" % (a, vL[t]), "v_permlane16_swap_b32 v%d, v%d" % (a, vL[t]), "v_add_f32 v%d, v%d, v%d" % (vL[t], vL[t], a),
                               "ds_write_b32 v%d, v%d offset:%d" % (vStW, vL[t], 2048 + t * 256)])
                self.red_chain = [ch[t][k] for k in range(7) for t in range(6)]
            if i == 7:
                dm = wo_block(2 if cfg.s4 else 1) if not cfg.wo1_late else []
                fill = self.red_chain
                for t in range(6):
                    b = 44 + 4 * (t % 4)
                    late += ["ds_read_b128 %s, v%d offset:%d" % (vr(b, 4), vStR, 2048 + t * 256),
                             ["v_add_f32 v%d, v%d, v%d" % (b, b, b + 1), "v_add_f32 v%d, v%d, v%d" % (b + 2, b + 2, b + 3),
                              "v_add_f32 v%d, v%d, v%d" % (b, b, b + 2), "v_rcp_f32 v%d, v%d" % (vM[t], b)]]
            if 'nodma' in cfg.exp_v: dm = [x for x in dm if callable(x)]
            if 'noexp' in cfg.exp_v: fill = [x for x in fill if 'v_exp' not in str(x)]
            if 'nodot' in cfg.exp_v: fill = [x for x in fill if 'v_dot2c' not in str(x)]
            if 'nofill' in cfg.exp_v: fill = [x for x in fill if 'ds_write' in str(x)]
            mf = []
            if i == 4 and not cfg.mv_weave:
                mv = ["v_accvgpr_read_b32 v%d, a%d" % (vS + r, r) for r in range(96)]
                self.emit(weave(mv, dm[:5], 0, 96)); dm = dm[5:]
            for u in range(3):
                m = pv_mfmas(i, u, u & 1)
                if i == 4 and u == 0 and cfg.mv_weave:
                    rd = v_reads(i, 1, 1)
                    k = 0
                    seq = []
                    for qt in range(3):
                        for dt in range(2):
                            seq.append(["v_accvgpr_read_b32 v%d, a%d" % (OAv(dt, qt) + r, OAa(dt, qt) + r) for r in range(16)])
                            seq.append(m[k])
                            seq += rd[k:k + 1] + (rd[6:7] if k == 5 else [])
                            k += 1
                    self.emit(weave(seq, dm[:4], 0, len(seq))); dm = dm[4:]
                    continue
                mf += weave(m, v_reads(i, u + 1, (u + 1) & 1), 0, 4)
            self.emit(weave(mf, merge(fill, dm), 0, len(mf) - 1))
            e("s_waitcnt lgkmcnt(0)")
            if 'nobar' not in cfg.exp_v: e("s_barrier")
            m3 = pv_mfmas(i, 3, 1)
            if i < 7:
                pr, vrd = split_reads(i + 1, 0, 0)
                seq = [m3[0]] + pr + [m3[1], (lambda j=i + 1: p.wait_vm("B%d" % (8 + j)))] + vrd
                seq += weave(m3[2:], late)
            else:
                seq = weave(m3, late)
            self.emit(seq)
            if cfg.fine and i < 7: self.emit(self.stamp())
        self.emit(self.stamp())
        self.emit(weave(exch_write(OAv), wo_block(1) if cfg.wo1_late == 1 else []))
        if cfg.fuse: self.get_nonce()
        p.wait_vm("WO0")
        e("s_waitcnt lgkmcnt(0)")
        e("s_barrier")
        self.emit(self.stamp())
        OF = QF
        WF = lambda b, s: 192 + 32 * b + s * 4
        ACC = lambda t: vS + t * 4
        def wo_reads(k):
            slot = wo_slot(k)
            base = vWor
            if slot >= 65536: base = vA0
            off0 = slot if slot < 65536 else slot - 65536
            return ["ds_read_b64_tr_b16 %s, v%d offset:%d" % (ar(WF(k & 1, s) + 2 * jj, 2), base, off0 + (32 * s + 4 * jj) * 128) for s in range(8) for jj in range(2)]
        def epi(t):
            b = ACC(t)
            pk = vT[8] + 4 * ((t >> 1) & 1) + 2 * (t & 1)
            u = ["v_mul_f32 v%d, v%d, v%d" % (b + k, vM[t], b + k) for k in range(4)]
            u += ["v_cvt_pk_bf16_f32 v%d, v%d, v%d" % (pk, b, b + 1), "v_cvt_pk_bf16_f32 v%d, v%d, v%d" % (pk + 1, b + 2, b + 3)]
            return u
        def st(pair, k):
            pk = vT[8] + 4 * (pair & 1)
            if cfg.exp_nostore: return []
            return [[lambda: p.group("ST%d_%d" % (k, pair)),
                     Ins("buffer_store_dwordx4 %s, v%d, %s, s%d offen offset:%d %s" % (vr(pk, 4), vStO, srd(SRD_P), sST[k], pair * 1024, cfg.aux_st), "ST%d_%d" % (k, pair))]]
        def tile(k, t):
            return ["v_mfma_f32_16x16x32_bf16 %s, %s, %s, %s" % (vr(ACC(t)), ar(WF(k & 1, s)), ar(OF(t, s)), "0" if s == 0 else vr(ACC(t))) for s in range(8)]
        e("v_add_u32 v%d, 0x10000, v%d" % (vA0, vWor))
        r0 = wo_reads(0)
        self.emit([x for s in range(8) for x in (r0[2 * s:2 * s + 2] + [q_read(0, s)])])
        if cfg.wo1_late == 2: self.emit(wo_block(1))
        elif not cfg.s4: self.emit(wo_block(2))
        for k in range(7):
            f = [[] for _ in range(6)]
            if k == 0:
                for t in range(5): f[t] += [q_read(t + 1, s) for s in range(8)]
                if cfg.wo1_late == 2:
                    w2 = wo_block(2)
                    f[0] = merge(f[0], w2[:5]); f[1] = merge(f[1], w2[5:])
            else:
                f[0] += epi(4); f[1] += epi(5) + st(2, k - 1)
            f[2] += epi(0); f[3] += epi(1) + st(0, k); f[4] += epi(2); f[5] += epi(3) + st(1, k)
            nx = wo_reads(k + 1) if k < 6 else []
            dm = wo_block(k + 3) if (k + 3 <= 6 and not cfg.exp_nowodma) else []
            for t in range(6):
                if t == 2 and k < 6:
                    if k == 5 and cfg.fuse:
                        e("s_waitcnt vmcnt(0)")
                        e("s_barrier")
                        self.emit(self.flag_store(0))
                    else:
                        p.wait_vm("WO%d" % (k + 1))
                        if not cfg.exp_nobar: e("s_barrier")
                ex = []
                if t >= 2:
                    ex = nx[4 * (t - 2):4 * (t - 1)]
                    dd = dm[0:1] + dm[1:3] if t == 2 else dm[1 + 2 * (t - 2):3 + 2 * (t - 2)]
                    ex = merge(ex, dd)
                if cfg.fuse and cfg.epoll and k == 6 and t == 2:
                    ex = ex + [["s_mov_b32 s%d, 0x40000000" % s_oob], self.early_poll_issue(0, 46, 0)]
                self.emit(weave(tile(k, t), merge(f[t], ex), 0, 8))
        self.emit(epi(4)); self.emit(epi(5)); self.emit(st(2, 6))
        self.emit(self.stamp())
        if cfg.fuse:
            self.reduce_tail()
        elif cfg.stamps or cfg.dbg:
            e("s_waitcnt vmcnt(0)")
            self.emit(self.stamp())
        e("L_k1_end:")
        e("s_endpgm")
        p.resolve()
        return p.text()

    def get_nonce(self):
        cfg, p, e = self.cfg, self.p, self.p.e
        e("v_readfirstlane_b32 s%d, v%d" % (s_nonce, vNonce))
        e("s_cmp_lg_u32 s%d, 0" % s_nonce); e("s_cbranch_scc1 L_havenonce")
        e("s_mov_b32 s63, 0x100000")
        e("L_pollnonce:")
        e("s_sub_u32 s63, s63, 1"); e("s_cbranch_scc1 L_havenonce")
        e("v_mov_b32 v44, 0")
        p.raw(Ins("global_load_dword v%d, v44, s[%d:%d] sc1" % (vNonce, s_dbgp, s_dbgp + 1), "nocount"))
        p.raw(Ins("s_waitcnt vmcnt(0)", "nocredit"))
        e("v_readfirstlane_b32 s%d, v%d" % (s_nonce, vNonce))
        e("s_cmp_eq_u32 s%d, 0" % s_nonce); e("s_cbranch_scc1 L_pollnonce")
        e("L_havenonce:")
        e("s_lshl_b32 s4, s%d, 8" % s_G); e("s_add_u32 s4, s4, %d" % FLAG_OFF)
        e("s_add_u32 s68, s58, s4"); e("s_addc_u32 s69, s59, 0")

    def flag_store(self, which):
        lab = "L_nofl%d" % which
        return ["s_cmp_lg_u32 s%d, 0" % s_w, "s_cbranch_scc1 %s" % lab,
                "v_mov_b32 v42, s%d" % s_nonce, "s_lshl_b32 s4, s%d, 2" % s_h, "s_add_u32 s4, s4, %d" % (128 * which), "v_mov_b32 v43, s4",
                "s_mov_b64 exec, 1",
                Ins("global_store_dword v43, v42, s[68:69] sc1", "nocount"),
                "s_mov_b64 exec, -1", "s_nop 4", lab + ":"]

    def poll(self, which):
        e, p = self.p.e, self.p
        e("s_mov_b64 exec, 0xffff")
        e("v_lshlrev_b32 v45, 2, v0")
        e("s_mov_b32 s60, 0x100000")
        e("L_poll%d:" % which)
        p.raw(Ins("global_load_dword v46, v45, s[68:69] offset:%d sc1" % (128 * which), "nocount"))
        p.raw(Ins("s_waitcnt vmcnt(0)", "nocredit"))
        e("v_cmp_ne_u32 vcc, s%d, v46" % s_nonce)
        e("s_nop 4")
        e("s_cbranch_vccz L_polldone%d" % which)
        e("s_sub_u32 s60, s60, 1"); e("s_cbranch_scc1 L_polldone%d" % which)
        e("s_sleep 2")
        e("s_branch L_poll%d" % which)
        e("L_polldone%d:" % which)
        e("s_mov_b64 exec, -1")

    def early_poll_issue(self, which, dst, ndummy):
        p = self.p
        u = ["v_and_b32 v45, 15, v0", "v_lshlrev_b32 v45, 2, v45", lambda: p.group("PL%d" % which),
             Ins("global_load_dword v%d, v45, s[68:69] offset:%d sc1" % (dst, 128 * which), "PL%d" % which)]
        for k in range(ndummy):
            u.append(Ins("buffer_load_dword v%d, v%d, %s, s%d offen" % (192 + 8 * which + k, vStO, srd(SRD_P), s_oob), "DUM"))
        return u

    def early_poll_check(self, which, dst):
        e = self.p.e
        e("v_cmp_ne_u32 vcc, s%d, v%d" % (s_nonce, dst))
        e("s_nop 4")
        e("s_cbranch_vccz L_ep%d" % which)
        self.poll(which)
        e("L_ep%d:" % which)

    def unit(self, su, tagname, after_loads=None, before_stores=None):
        cfg, p, e = self.cfg, self.p, self.p.e
        SG = 64
        e("s_mul_hi_u32 s5, s%d, %d" % (su, (1 << 32) // 12 + 1)); e("s_mul_i32 s6, s5, 12"); e("s_sub_u32 s6, s%d, s6" % su)
        e("s_add_u32 s5, s5, s%d" % s_ng); e("s_cmp_ge_u32 s5, 7"); e("s_cselect_b32 s7, 7, 0"); e("s_sub_u32 s5, s5, s7")
        e("s_mul_i32 s72, s5, 12"); e("s_add_u32 s72, s72, s6"); e("s_lshl_b32 s72, s72, 10")
        e("s_mul_hi_u32 s7, s6, %d" % ((1 << 32) // 3 + 1)); e("s_mul_i32 s76, s7, 3"); e("s_sub_u32 s76, s6, s76")
        e("s_lshl_b32 s5, s5, 7"); e("s_lshl_b32 s7, s7, 5"); e("s_mul_i32 s76, s76, %d" % (32 * 1792))
        e("s_add_u32 s5, s5, s7"); e("s_add_u32 s5, s5, s76"); e("s_add_u32 s73, s5, s70")
        e("s_cmp_ge_u32 s%d, 84" % su)
        e("s_cselect_b32 s72, 0x40000000, s72"); e("s_cselect_b32 s73, 0x40000000, s73")
        for h in range(16):
            e("s_add_u32 s5, s72, %d" % (h * PART))
            p.raw(Ins("buffer_load_dwordx4 %s, v%d, %s, s5 offen %s" % (vr(64 + 4 * h, 4), vStO, srd(SG), cfg.aux_rd), tagname))
        if after_loads: self.emit(after_loads)
        acc = list(range(48, 56))
        for a in acc: e("v_mov_b32 v%d, 0" % a)
        for h in range(16):
            b = 64 + 4 * h
            for q in range(4):
                e("v_dot2c_f32_bf16 v%d, s74, v%d" % (acc[2 * q], b + q)); e("v_dot2c_f32_bf16 v%d, s75, v%d" % (acc[2 * q + 1], b + q))
        for q in range(4): e("v_cvt_pk_bf16_f32 v%d, v%d, v%d" % (56 + q, acc[2 * q], acc[2 * q + 1]))
        if before_stores: before_stores()
        e("buffer_store_dwordx2 v[56:57], v41, %s, s73 offen %s" % (srd(SRD_OUT), cfg.aux_out))
        e("s_add_u32 s5, s73, %d" % (16 * 1792))
        e("buffer_store_dwordx2 v[58:59], v41, %s, s5 offen %s" % (srd(SRD_OUT), cfg.aux_out))

    def reduce_tail(self):
        cfg, p, e = self.cfg, self.p, self.p.e
        SG = 64
        e("s_mul_i32 s4, s%d, %d" % (s_G, PART * 16)); e("s_add_u32 s4, s4, %d" % cfg.part_off)
        e("s_add_u32 s%d, s58, s4" % SG); e("s_addc_u32 s%d, s59, 0" % (SG + 1)); e("s_mov_b32 s%d, %d" % (SG + 2, PART * 16)); e("s_mov_b32 s%d, 0x20000" % (SG + 3))
        e("s_mul_i32 s70, s%d, %d" % (s_b, 96 * 1792)); e("s_mul_i32 s4, s%d, 896" % s_br); e("s_add_u32 s70, s70, s4")
        e("v_and_b32 v41, 15, v0"); e("v_mul_u32_u24 v41, 1792, v41"); e("v_lshrrev_b32 v42, 4, v0"); e("v_lshlrev_b32 v42, 3, v42"); e("v_add_u32 v41, v41, v42")
        e("s_mov_b32 s74, 0x3f80"); e("s_mov_b32 s75, 0x3f800000")
        e("s_lshl_b32 s61, s%d, 2" % s_h); e("s_add_u32 s61, s61, s%d" % s_w)
        e("s_cmp_ge_u32 s61, 60"); e("s_cselect_b32 s61, 127, s61")
        e("s_lshl_b32 s62, s%d, 4" % s_w); e("s_add_u32 s62, s62, s%d" % s_h); e("s_add_u32 s62, s62, 60")
        if cfg.epoll:
            e("s_waitcnt vmcnt(0)")
            self.early_poll_check(0, 46)
            e("s_barrier")
            self.emit(self.stamp())
            self.emit(self.flag_store(1))
            self.unit(61, "RD1", after_loads=self.early_poll_issue(1, 60, 0), before_stores=lambda: self.early_poll_check(1, 60))
            self.emit(self.stamp())
        else:
            e("s_cmp_eq_u32 s%d, 3" % s_w); e("s_cbranch_scc0 L_np1")
            self.poll(0)
            e("L_np1:")
            e("s_waitcnt vmcnt(0)")
            e("s_barrier")
            self.emit(self.stamp())
            self.emit(self.flag_store(1))
            self.unit(61, "RD1")
            e("s_cmp_eq_u32 s%d, 3" % s_w); e("s_cbranch_scc0 L_np2")
            self.poll(1)
            e("L_np2:")
            e("s_barrier")
            self.emit(self.stamp())
        e("s_cmp_ge_u32 s%d, 2" % s_w); e("s_cbranch_scc1 L_fin")
        self.unit(62, "RD2")
        e("L_fin:")
        if cfg.stamps or cfg.dbg:
            e("s_waitcnt vmcnt(0)")
            self.emit(self.stamp())

def desc(name, vg, acc, sg=102):
    return """.amdhsa_kernel %s
  .amdhsa_next_free_vgpr %d
  .amdhsa_next_free_sgpr %d
  .amdhsa_accum_offset %d
  .amdhsa_group_segment_fixed_size 0
  .amdhsa_kernarg_size 104
  .amdhsa_user_sgpr_count 2
  .amdhsa_user_sgpr_kernarg_segment_ptr 1
  .amdhsa_system_sgpr_workgroup_id_x 1
  .amdhsa_float_denorm_mode_32 3
.end_amdhsa_kernel
""" % (name, vg, sg, acc)

REF = "concat_heads__gqa_block_cached__mha_block_cached__near_ridge.s.ref"
HEAD = open(REF).read().split("; Override launch geometry")[0] if os.path.exists(REF) else ""

def generate(cfg):
    k1 = K1(cfg).build()
    out = HEAD
    out += "; @launch grid=(256,1,1) block=(256,1,1) lds=163840\n"
    out += '.amdgcn_target "amdgcn-amd-amdhsa--gfx950"\n.text\n'
    out += ".globl %s\n.p2align 8\n.type %s,@function\n%s:\n%s\n" % (KNAME, KNAME, KNAME, k1)
    out += '.section .rodata,"a"\n.p2align 6\n' + desc(KNAME, 512, 256)
    return out

if __name__ == "__main__":
    kw = {}
    for a in sys.argv[2:]:
        k, v = a.split("=", 1)
        kw[k] = eval(v)
    txt = generate(Cfg(**kw))
    open(sys.argv[1], "w").write(txt)
    print("wrote", sys.argv[1], len(txt), "bytes,", txt.count("\n"), "lines")
```

```python
import sys, os
from asmgen import Prog, Ins

KNAME = "concat_heads__gqa_block_cached__mha_block_cached__near_ridge_kernel"

class Cfg:
    aux_kv = "nt"
    aux_w = ""
    aux_x = ""
    aux_wo = ""
    aux_st = "sc1"
    aux_rd = "sc1"
    stamps = False
    dbg = False
    dbg_wg = 128
    rot = True
    fuse = True
    fine = False
    early_dma = True
    krow = True
    code_pf = 1
    code_bytes = 32768
    f1_drain = True
    exp_kpre = 4
    kstart = 22
    kd3 = False
    h5 = 2
    red_early = False
    part_off = 0
    tlb2 = False
    trickle = ()
    trickle_aux = ""
    wpro = 6
    wsched = {0: [6], 1: [7], 2: [8], 3: [9], 4: [10], 5: [11, 12], 6: [13, 14], 7: [15, 16], 8: [17, 18], 9: [19, 20], 10: [21, 22], 11: [23], 12: [24, 25], 13: [26], 14: [27]}
    h5_plan = {17: (0, 4), 18: (4, 7), 21: (7, 11), 22: (11, 14), 26: (14, 16)}
    kfirst = 0
    wo1_late = 1
    mv_weave = False
    prescale = True
    sumadd = True
    exp_v = ''
    s4 = False
    b2s0 = False
    kpace = True
    xlate = False
    exp_nostore = False
    exp_nowodma = False
    exp_nobar = False
    epoll = True
    aux_out = ""
    pf_first = True
    defer = True
    t00 = False
    aswap = False
    kbar = False
    rot_hh = 0
    b0_first = False
    tlbwarm = True
    exp_nowx = False
    def __init__(self, **kw):
        for k, v in kw.items():
            assert hasattr(Cfg, k), k
            setattr(self, k, v)

SLOT = [0, 32768, 65536, 122880]
WB = 65536
XB = 114688
R = 98304
ST = 159744
PART = 86016
TS_OFF = 64 << 20
FLAG_OFF = 32 << 20

vK0, vK1, vV, vW, vX = 1, 2, 3, 4, 5
vVD = [3, 41, 42, 43]
vKr0, vKr1 = 6, 7
vVr0, vVr1 = 8, 9
vXr = [10, 11, 12, 13]
vQr = [14, 15, 16, 17]
vPw = 18
vQw = 19
vWor = 20
vStW, vStR = 21, 22
vStO = 23
vM = [24, 25, 26, 27, 28, 29]
vL = [30, 31, 32, 33, 34, 35]
vWoD = list(range(160, 168))
vA0, vA1 = 38, 39
vNonce = 40
vKT = 6
vT = list(range(44, 64))
vS = 64

def S(i, t): return vS + (i * 6 + t) * 4

s_w = 3
sT0, sSoff, sT1, sT2 = 4, 5, 6, 7
SRD_X, SRD_W, SRD_K, SRD_V, SRD_O, SRD_P = 8, 12, 16, 20, 24, 28
s_c = 32
s_kvb = 33
s_wrb = 34
s_w1k = 35
sCW = list(range(36, 43))
sCX = list(range(44, 51))
sWO = list(range(36, 43))
sST = list(range(44, 51))
s_ws = 58
s_cnt = 60
s_ng, s_ng2, s_slotR, s_slotN, s_slotD, s_stoff, s_stprev, s_wooff = 71, 72, 73, 74, 75, 76, 77, 78
s_b, s_hh, s_h, s_br = 79, 80, 81, 82
s_G = 83
s_tsoff = 88
s_nonce = 94
s_ones = 95
s_swap = 57
s_oob = 78
SRD_G, SRD_OUT = 64, 68
SRD_OUT = 52
s_dbgp = 96
s_outp = 98

def srd(n): return "s[%d:%d]" % (n, n + 3)
def vr(n, c=4): return "v[%d:%d]" % (n, n + c - 1)
def ar(n, c=4): return "a[%d:%d]" % (n, n + c - 1)

def weave(main, fill, lo=0, hi=None):
    if hi is None: hi = len(main)
    out = []
    n = hi - lo
    k = 0
    for i, m in enumerate(main):
        out.append(m)
        if lo <= i < hi:
            tgt = min(len(fill), -(-(len(fill) * (i - lo + 1)) // n))
            while k < tgt:
                out.append(fill[k]); k += 1
    while k < len(fill):
        out.append(fill[k]); k += 1
    return out

def merge(a, b):
    if not a: return list(b)
    if not b: return list(a)
    return weave(a, b) if len(a) >= len(b) else weave(b, a)

class K1:
    def __init__(self, cfg):
        self.cfg = cfg
        self.p = Prog()
        self.nstamp = 0
        self.vTs = 62
        self.npf = 0

    def emit(self, seq):
        for u in seq:
            if isinstance(u, (list, tuple)): self.emit(u)
            elif callable(u): u()
            elif isinstance(u, Ins): self.p.raw(u)
            else: self.p.e(u)

    def dma(self, vaddr, srdn, soff, m0, tag, aux, imm=0):
        u = []
        if m0 is not None:
            if isinstance(m0, int): u.append("s_mov_b32 m0, %d" % m0)
            else: u.append("s_add_u32 m0, s%d, %d" % m0 if m0[1] else "s_mov_b32 m0, s%d" % m0[0])
        if isinstance(soff, int) and self.cfg.aswap and srdn in (SRD_K, SRD_V):
            u.append("s_xor_b32 s%d, s%d, %d" % (sSoff, s_swap, soff)); sreg = sSoff
        elif isinstance(soff, int):
            u.append("s_mov_b32 s%d, %d" % (sSoff, soff)); sreg = sSoff
        elif soff[1] is None:
            sreg = soff[0]
            if m0 is not None: u.append("s_nop 0")
        else:
            u.append("s_add_u32 s%d, s%d, %d" % (sSoff, soff[0], soff[1])); sreg = sSoff
        u.append(Ins("buffer_load_dwordx4 v%d, %s, s%d offen %s%s lds" % (vaddr, srd(srdn), sreg, ("offset:%d " % imm) if imm else "", aux), tag))
        return u

    def stamp(self):
        cfg = self.cfg
        if cfg.dbg:
            i = self.nstamp; self.nstamp += 1
            lab = "L_st%d" % i
            return ["s_cmp_lg_u32 s89, 0", "s_cbranch_scc1 %s" % lab,
                    Ins("s_memrealtime s[86:87]", "nocount"), Ins("s_waitcnt lgkmcnt(0)", "nocredit"),
                    "v_mov_b32 v%d, s86" % self.vTs, "v_mov_b32 v%d, %d" % (self.vTs + 1, 4 * (i + 1)),
                    Ins("global_store_dword v%d, v%d, s[100:101]" % (self.vTs + 1, self.vTs), 'nocount'), lab + ":"]
        if not cfg.stamps: return []
        i = self.nstamp; self.nstamp += 1
        return ["s_memrealtime s[86:87]", "s_memtime s[92:93]", "s_waitcnt lgkmcnt(0)",
                "v_mov_b32 v%d, s86" % self.vTs, "v_mov_b32 v%d, s%d" % (self.vTs + 1, s_tsoff),
                Ins("global_store_dword v%d, v%d, s[84:85] offset:%d" % (self.vTs + 1, self.vTs, 4 * i), 'nocount'),
                "v_mov_b32 v%d, s92" % self.vTs,
                Ins("global_store_dword v%d, v%d, s[84:85] offset:%d" % (self.vTs + 1, self.vTs, 128 + 4 * i), 'nocount')]

    def code_prefetch(self, t0, t2):
        e, p = self.p.e, self.p
        i = self.npf; self.npf += 1
        e("s_cmp_lg_u32 s%d, 0" % s_w); e("s_cbranch_scc1 L_nopf%d" % i)
        e("s_getpc_b64 s[90:91]")
        e("L_pc%d:" % i)
        e("s_sub_u32 s90, s90, L_pc%d-%s" % (i, KNAME)); e("s_subb_u32 s91, s91, 0")
        e("s_lshr_b32 s4, s2, 3"); e("s_lshl_b32 s4, s4, 11")
        e("v_lshlrev_b32 v%d, 7, v0" % t0); e("v_add_u32 v%d, s4, v%d" % (t0, t0))
        e("v_mov_b32 v%d, s91" % (t2 + 1))
        e("v_add_co_u32 v%d, vcc, s90, v%d" % (t2, t0)); e("v_addc_co_u32 v%d, vcc, 0, v%d, vcc" % (t2 + 1, t2 + 1))
        e("v_cmp_gt_u32 vcc, L_k1_end-%s, v%d" % (KNAME, t0))
        e("s_and_b64 exec, vcc, 0xffff")
        e("s_cbranch_execz L_nopfx%d" % i)
        p.raw(Ins("global_load_dword v%d, v[%d:%d], off" % (vNonce, t2, t2 + 1), "nocount"))
        e("L_nopfx%d:" % i)
        e("s_mov_b64 exec, -1")
        e("s_nop 4")
        e("L_nopf%d:" % i)

    def kv_slot(self, n):
        if self.cfg.h5 == 1: return SLOT[n] if n < 2 else SLOT[(0, 2, 1)[(n - 2) % 3]]
        return SLOT[n % 4] if self.cfg.s4 else SLOT[n % 3]
    def kv_block(self, n):
        cfg = self.cfg
        slot = self.kv_slot(n)
        tag = "B%d" % n
        us = [lambda: self.p.group(tag)]
        if n < 8 and cfg.krow:
            for m in range(8):
                tmp = vK1 if m & 1 else vKT
                u = ["v_xor_b32 v%d, %d, v%d" % (tmp, 32 * m, vK0)]
                if m % 4 == 0:
                    u += self.dma(tmp, SRD_K, n * 32768 + m * 1024, (s_kvb, slot + m * 1024), tag, cfg.aux_kv)
                else:
                    u += self.dma(tmp, SRD_K, (sSoff, None), None, tag, cfg.aux_kv, imm=(m % 4) * 1024)
                us.append(u)
        elif n < 8:
            for m in range(4):
                for kh in range(2):
                    us.append(self.dma(vK1 if kh else vK0, SRD_K, n * 32768 + m * 128, (s_kvb, slot + (m * 2 + kh) * 1024), tag, cfg.aux_kv))
        else:
            for m in range(8):
                if m % 4 == 0:
                    us.append(self.dma(vVD[0], SRD_V, (n - 8) * 32768 + m * 4096, (s_kvb, slot + m * 1024), tag, cfg.aux_kv))
                else:
                    us.append(self.dma(vVD[m % 4], SRD_V, (sSoff, None), None, tag, cfg.aux_kv, imm=(m % 4) * 1024))
        return us

    def build(self):
        cfg, p, e = self.cfg, self.p, self.p.e
        if cfg.stamps and cfg.t00: p.raw(Ins("s_memrealtime s[76:77]", "nocount"))
        e("s_cmp_ge_u32 s2, 256")
        e("s_cbranch_scc1 L_k1_end")
        e("s_load_dwordx8 s[36:43], s[0:1], 0")
        e("s_load_dwordx2 s[44:45], s[0:1], 32")
        e("s_load_dwordx8 s[48:55], s[0:1], 40")
        e("s_load_dwordx2 s[56:57], s[0:1], 72")
        e("s_load_dwordx2 s[58:59], s[0:1], 96")
        e("s_load_dwordx4 s[96:99], s[0:1], 80")
        e("v_lshrrev_b32 v60, 6, v0")
        e("v_and_b32 v0, 63, v0")
        e("v_readfirstlane_b32 s%d, v60" % s_w)
        if cfg.code_pf and cfg.pf_first: self.code_prefetch(vT[0], vT[2])
        e("s_and_b32 s4, s2, 7")
        e("s_lshr_b32 s6, s2, 3")
        e("s_lshr_b32 s%d, s6, 4" % s_br)
        e("s_lshr_b32 s%d, s6, 1" % s_b)
        e("s_and_b32 s%d, s%d, 7" % (s_b, s_b))
        e("s_and_b32 s%d, s6, 1" % s_hh)
        e("s_lshl_b32 s%d, s4, 1" % s_h)
        e("s_add_u32 s%d, s%d, s%d" % (s_h, s_h, s_hh))
        e("s_lshl_b32 s6, s%d, 3" % s_b); e("s_add_u32 s6, s6, s4")
        e("s_lshl_b32 s7, s%d, 4" % s_b); e("s_add_u32 s7, s7, s%d" % s_h)
        e("s_cmp_eq_u32 s%d, 0" % s_br)
        e("s_cselect_b32 s6, s6, s7")
        e("s_lshl_b32 s61, s6, 18")
        e("s_lshl_b32 s%d, s%d, 13" % (s_kvb, s_w))
        e("s_mul_i32 s%d, s%d, 12288" % (s_wrb, s_w)); e("s_add_u32 s%d, s%d, %d" % (s_wrb, s_wrb, WB))
        e("s_lshl_b32 s%d, s%d, 10" % (s_w1k, s_w))
        e("s_mov_b32 s%d, 0x3db8aa3b" % s_c)
        e("s_lshl_b32 s%d, s%d, 3" % (s_G, s_br)); e("s_add_u32 s%d, s%d, s%d" % (s_G, s_G, s_b))
        if cfg.rot:
            e("s_mul_i32 s62, s%d, %d" % (s_hh, cfg.rot_hh)); e("s_add_u32 s62, s62, s%d" % s_b)
            e("s_cmp_ge_u32 s62, 7"); e("s_cselect_b32 s6, 7, 0"); e("s_sub_u32 s62, s62, s6")
        else:
            e("s_mov_b32 s62, 0")
        t0, t1, t2, t3, t4 = vT[:5]
        l3, l7, l4, i15 = vT[5:9]
        e("v_lshrrev_b32 v%d, 3, v0" % l3)
        e("v_and_b32 v%d, 7, v0" % l7)
        e("v_lshrrev_b32 v%d, 4, v0" % l4)
        e("v_and_b32 v%d, 15, v0" % i15)
        e("v_and_b32 v%d, 1, v%d" % (t0, l4)); e("v_lshlrev_b32 v%d, 2, v%d" % (t0, t0))
        e("v_xor_b32 v%d, v%d, v%d" % (t0, l7, t0)); e("v_lshlrev_b32 v%d, 4, v%d" % (t0, t0))
        e("s_lshl_b32 s6, s%d, 7" % s_w)
        e("v_add_u32 v%d, s6, v%d" % (t0, t0))
        e("v_lshlrev_b32 v%d, 13, v%d" % (t1, l3)); e("v_add_u32 v%d, v%d, v%d" % (vW, t0, t1))
        e("v_lshlrev_b32 v%d, 9, v%d" % (t1, l3)); e("v_add_u32 v%d, v%d, v%d" % (vV, t0, t1))
        e("s_lshl_b32 s6, s%d, 3" % s_w); e("v_add_u32 v%d, s6, v%d" % (t2, l3)); e("v_mul_u32_u24 v%d, 896, v%d" % (t2, t2))
        e("s_and_b32 s7, s%d, 1" % s_w); e("s_lshl_b32 s7, s7, 2")
        e("v_add_u32 v%d, s7, v%d" % (t3, l4)); e("v_xor_b32 v%d, v%d, v%d" % (t3, l7, t3)); e("v_lshlrev_b32 v%d, 4, v%d" % (t3, t3))
        e("v_add_u32 v%d, v%d, v%d" % (vX, t2, t3))
        e("s_waitcnt lgkmcnt(0)")
        if cfg.stamps:
            e("s_mov_b32 s84, s58"); e("s_mov_b32 s85, s59")
            e("s_lshl_b32 s%d, s2, 2" % s_tsoff); e("s_add_u32 s%d, s%d, s%d" % (s_tsoff, s_tsoff, s_w))
            e("s_lshl_b32 s%d, s%d, 8" % (s_tsoff, s_tsoff)); e("s_add_u32 s%d, s%d, %d" % (s_tsoff, s_tsoff, TS_OFF))
        if cfg.dbg:
            e("s_sub_u32 s89, s2, %d" % cfg.dbg_wg); e("s_or_b32 s89, s89, s%d" % s_w)
            e("s_mov_b32 s100, s98"); e("s_mov_b32 s101, s99")
        if cfg.stamps and cfg.t00:
            i = self.nstamp; self.nstamp += 1
            e("v_mov_b32 v62, s76"); e("v_mov_b32 v63, s%d" % s_tsoff)
            p.raw(Ins("global_store_dword v63, v62, s[84:85] offset:%d" % (4 * i), "nocount"))
        self.emit(self.stamp())
        e("s_cmp_eq_u32 s%d, 0" % s_br)
        for (dst, a, b) in ((SRD_X, 36, 48), (SRD_K, 38, 50), (SRD_V, 40, 52), (SRD_W, 42, 54), (SRD_O, 44, 56)):
            e("s_cselect_b32 s%d, s%d, s%d" % (dst, a, b)); e("s_cselect_b32 s%d, s%d, s%d" % (dst + 1, a + 1, b + 1))
        e("s_mul_i32 s4, s%d, %d" % (s_b, PART))
        e("s_add_u32 s%d, s%d, s4" % (SRD_X, SRD_X)); e("s_addc_u32 s%d, s%d, 0" % (SRD_X + 1, SRD_X + 1))
        e("s_mov_b32 s%d, %d" % (SRD_X + 2, PART)); e("s_mov_b32 s%d, 0x20000" % (SRD_X + 3))
        e("s_lshl_b32 s4, s%d, 9" % s_h)
        e("s_add_u32 s%d, s%d, s4" % (SRD_W, SRD_W)); e("s_addc_u32 s%d, s%d, 0" % (SRD_W + 1, SRD_W + 1))
        e("s_sub_u32 s%d, %d, s4" % (SRD_W + 2, 448 * 8192)); e("s_mov_b32 s%d, 0x20000" % (SRD_W + 3))
        def chunk_offsets(cs):
            for c in cs:
                if c == 0: e("s_mov_b32 s63, s62")
                else:
                    e("s_add_u32 s63, s63, 1"); e("s_cmp_eq_u32 s63, 7"); e("s_cselect_b32 s63, 0, s63")
                e("s_lshl_b32 s%d, s63, 7" % sCX[c]); e("s_lshl_b32 s%d, s63, 19" % sCW[c])
        chunk_offsets([0])
        def xdma(c):
            us = [lambda: p.group("X%d" % c)]
            for i in range(3):
                us.append(self.dma(vX, SRD_X, (sCX[c], i * 32 * 896), (s_w1k, XB + (c % 3) * 12288 + i * 4096), "X%d" % c, cfg.aux_x))
            return us
        def wslot(n):
            if not cfg.h5: return (True, (n % 6) * 2048)
            j = n % 14
            if j < 4: return (False, SLOT[0] + j * 2048)
            if j < 8: return (False, SLOT[1] + (j - 4) * 2048)
            return (True, (j - 8) * 2048)
        def wdma(n):
            us = [lambda: p.group("W%d" % n)]
            ring, off = wslot(n)
            for m in range(2):
                us.append(self.dma(vW, SRD_W, (sCW[n >> 2], ((n & 3) * 16 + 8 * m) * 8192), (s_wrb if ring else s_kvb, off + m * 1024), "W%d" % n, cfg.aux_w))
            return us
        self.emit(xdma(0)); self.emit(wdma(0)); self.emit(wdma(1))
        if cfg.b0_first:
            e("s_add_u32 s%d, s%d, s61" % (SRD_K, SRD_K)); e("s_addc_u32 s%d, s%d, 0" % (SRD_K + 1, SRD_K + 1))
            e("s_mov_b32 s%d, 262144" % (SRD_K + 2)); e("s_mov_b32 s%d, 0x20000" % (SRD_K + 3))
            e("v_lshrrev_b32 v%d, 5, v0" % t0); e("v_and_b32 v%d, 31, v0" % t1); e("v_xor_b32 v%d, v%d, v%d" % (t1, t1, t0))
            e("v_lshlrev_b32 v%d, 4, v%d" % (t1, t1)); e("v_lshlrev_b32 v%d, 9, v%d" % (t0, t0)); e("v_add_u32 v%d, v%d, v%d" % (t0, t0, t1))
            e("v_add_u32 v%d, s%d, v%d" % (vK0, s_kvb, t0))
            self.emit(self.kv_block(0))
        if cfg.code_pf and not cfg.pf_first: self.code_prefetch(t0, t2)
        if cfg.aswap:
            e("s_cmp_eq_u32 s%d, 0" % s_br); e("s_cselect_b32 s%d, s%d, 0" % (s_swap, s_hh)); e("s_lshl_b32 s%d, s%d, 15" % (s_swap, s_swap))
        if cfg.kfirst:
            e("s_add_u32 s%d, s%d, s61" % (SRD_K, SRD_K)); e("s_addc_u32 s%d, s%d, 0" % (SRD_K + 1, SRD_K + 1))
            e("s_mov_b32 s%d, 262144" % (SRD_K + 2)); e("s_mov_b32 s%d, 0x20000" % (SRD_K + 3))
            for x in ("v_lshrrev_b32 v%d, 5, v0" % t0, "v_and_b32 v%d, 31, v0" % t1, "v_xor_b32 v%d, v%d, v%d" % (t1, t1, t0),
                      "v_lshlrev_b32 v%d, 4, v%d" % (t1, t1), "v_lshlrev_b32 v%d, 9, v%d" % (t0, t0), "v_add_u32 v%d, v%d, v%d" % (t0, t0, t1),
                      "v_add_u32 v%d, s%d, v%d" % (vK0, s_kvb, t0)): e(x)
            for b in range(cfg.kfirst): self.emit(self.kv_block(b))
        chunk_offsets(range(1, 7))
        e("v_lshrrev_b32 v%d, 5, v0" % t0); e("v_lshlrev_b32 v%d, 3, v%d" % (t0, t0)); e("v_lshrrev_b32 v%d, 2, v%d" % (t1, i15))
        e("v_add_u32 v%d, v%d, v%d" % (t0, t0, t1)); e("v_lshlrev_b32 v%d, 7, v%d" % (t0, t0))
        e("v_and_b32 v%d, 1, v%d" % (t1, l4)); e("v_lshlrev_b32 v%d, 1, v%d" % (t1, t1))
        e("v_and_b32 v%d, 3, v%d" % (t4, i15)); e("v_lshrrev_b32 v%d, 1, v%d" % (t4, t4)); e("v_add_u32 v%d, v%d, v%d" % (t1, t1, t4))
        e("v_lshrrev_b32 v%d, 3, v%d" % (t4, i15)); e("v_lshlrev_b32 v%d, 2, v%d" % (t4, t4)); e("v_xor_b32 v%d, v%d, v%d" % (t1, t1, t4))
        e("v_lshlrev_b32 v%d, 4, v%d" % (t1, t1)); e("v_add_u32 v%d, v%d, v%d" % (t0, t0, t1))
        e("v_and_b32 v%d, 1, v%d" % (t1, i15)); e("v_lshlrev_b32 v%d, 3, v%d" % (t1, t1)); e("v_add_u32 v%d, v%d, v%d" % (t0, t0, t1))
        e("v_add_u32 v%d, s%d, v%d" % (vVr0, s_kvb, t0)); e("v_xor_b32 v%d, 64, v%d" % (vVr1, vVr0))
        e("v_add_u32 v%d, s%d, v%d" % (vA0, s_wrb, t0)); e("v_xor_b32 v%d, 64, v%d" % (vA1, vA0))
        e("v_and_b32 v%d, 31, v0" % t0); e("v_lshrrev_b32 v%d, 1, v%d" % (t1, t0)); e("v_and_b32 v%d, 7, v%d" % (t1, t1))
        e("v_lshrrev_b32 v%d, 5, v0" % t4); e("v_xor_b32 v%d, v%d, v%d" % (t1, t1, t4)); e("v_lshlrev_b32 v%d, 4, v%d" % (t1, t1))
        e("v_lshlrev_b32 v%d, 7, v%d" % (t0, t0)); e("v_add_u32 v%d, v%d, v%d" % (t0, t0, t1)); e("v_add_u32 v%d, %d, v%d" % (vXr[0], XB, t0))
        for j in range(1, 4): e("v_xor_b32 v%d, %d, v%d" % (vXr[j], 32 * j, vXr[0]))
        D = []
        d = D.append
        if not cfg.kfirst:
            d(["s_add_u32 s%d, s%d, s61" % (SRD_K, SRD_K), "s_addc_u32 s%d, s%d, 0" % (SRD_K + 1, SRD_K + 1)])
            d("s_mov_b32 s%d, 262144" % (SRD_K + 2)); d("s_mov_b32 s%d, 0x20000" % (SRD_K + 3))
        d(["s_add_u32 s%d, s%d, s61" % (SRD_V, SRD_V), "s_addc_u32 s%d, s%d, 0" % (SRD_V + 1, SRD_V + 1)])
        d("s_mov_b32 s%d, 262144" % (SRD_V + 2)); d("s_mov_b32 s%d, 0x20000" % (SRD_V + 3))
        d(["s_mul_i32 s4, s%d, %d" % (s_h, 256 * 896), "s_add_u32 s%d, s%d, s4" % (SRD_O, SRD_O), "s_addc_u32 s%d, s%d, 0" % (SRD_O + 1, SRD_O + 1)])
        d("s_mov_b32 s%d, %d" % (SRD_O + 2, 256 * 896)); d("s_mov_b32 s%d, 0x20000" % (SRD_O + 3))
        d(["s_lshl_b32 s4, s%d, 4" % s_G, "s_add_u32 s4, s4, s%d" % s_h, "s_mul_i32 s4, s4, %d" % PART,
           *(["s_add_u32 s4, s4, %d" % cfg.part_off] if cfg.part_off else []), "s_add_u32 s%d, s58, s4" % SRD_P, "s_addc_u32 s%d, s59, 0" % (SRD_P + 1)])
        d("s_mov_b32 s%d, %d" % (SRD_P + 2, PART)); d("s_mov_b32 s%d, 0x20000" % (SRD_P + 3))
        d("s_mov_b32 s%d, s96" % SRD_OUT); d("s_mov_b32 s%d, s97" % (SRD_OUT + 1))
        d("s_mov_b32 s%d, %d" % (SRD_OUT + 2, 8 * 96 * 1792)); d("s_mov_b32 s%d, 0x20000" % (SRD_OUT + 3))
        d("s_mov_b32 s%d, s98" % s_dbgp); d("s_mov_b32 s%d, s99" % (s_dbgp + 1))
        if cfg.aswap:
            d(["s_cmp_eq_u32 s%d, 0" % s_br, "s_cselect_b32 s%d, s%d, 0" % (s_swap, s_hh), "s_lshl_b32 s%d, s%d, 15" % (s_swap, s_swap)])
        assert cfg.krow
        if not cfg.kfirst:
            for x in ("v_lshrrev_b32 v%d, 5, v0" % t0, "v_and_b32 v%d, 31, v0" % t1, "v_xor_b32 v%d, v%d, v%d" % (t1, t1, t0),
                      "v_lshlrev_b32 v%d, 4, v%d" % (t1, t1), "v_lshlrev_b32 v%d, 9, v%d" % (t0, t0), "v_add_u32 v%d, v%d, v%d" % (t0, t0, t1),
                      "v_add_u32 v%d, s%d, v%d" % (vK0, s_kvb, t0)): d(x)
        for x in ("v_xor_b32 v%d, v%d, v%d" % (t1, l4, i15), "v_lshlrev_b32 v%d, 4, v%d" % (t1, t1), "v_lshlrev_b32 v%d, 9, v%d" % (t0, i15),
                  "v_add_u32 v%d, v%d, v%d" % (t0, t0, t1), "v_add_u32 v%d, %d, v%d" % (vQr[0], R, t0)): d(x)
        for j in range(1, 4): d("v_xor_b32 v%d, %d, v%d" % (vQr[j], 64 * j, vQr[0]))
        d(["s_lshl_b32 s6, s%d, 1" % s_w, "v_lshrrev_b32 v%d, 1, v%d" % (t0, l4), "v_add_u32 v%d, s6, v%d" % (t0, t0)])
        for x in ("v_lshrrev_b32 v%d, 1, v%d" % (t1, i15), "v_xor_b32 v%d, v%d, v%d" % (t0, t0, t1), "v_lshlrev_b32 v%d, 4, v%d" % (t0, t0),
                  "v_lshlrev_b32 v%d, 7, v%d" % (t1, i15), "v_add_u32 v%d, v%d, v%d" % (t0, t0, t1),
                  "v_and_b32 v%d, 1, v%d" % (t1, l4), "v_lshlrev_b32 v%d, 3, v%d" % (t1, t1), "v_add_u32 v%d, v%d, v%d" % (t0, t0, t1),
                  "v_add_u32 v%d, %d, v%d" % (vPw, R, t0)): d(x)
        d(["s_lshl_b32 s6, s%d, 3" % s_w, "v_xor_b32 v%d, s6, v%d" % (t0, i15)])
        for x in ("v_lshlrev_b32 v%d, 4, v%d" % (t0, t0), "v_and_b32 v%d, 31, v0" % t1, "v_lshlrev_b32 v%d, 9, v%d" % (t1, t1), "v_add_u32 v%d, v%d, v%d" % (t0, t0, t1),
                  "v_lshrrev_b32 v%d, 5, v0" % t1, "v_lshlrev_b32 v%d, 3, v%d" % (t1, t1), "v_add_u32 v%d, v%d, v%d" % (t0, t0, t1),
                  "v_add_u32 v%d, %d, v%d" % (vQw, R, t0)): d(x)
        for x in ("v_lshlrev_b32 v%d, 3, v%d" % (t0, l4), "v_lshrrev_b32 v%d, 2, v%d" % (t1, i15), "v_add_u32 v%d, v%d, v%d" % (t0, t0, t1), "v_lshlrev_b32 v%d, 7, v%d" % (t0, t0)): d(x)
        d(["v_and_b32 v%d, 3, v%d" % (t1, i15), "v_lshrrev_b32 v%d, 1, v%d" % (t1, t1), "s_lshl_b32 s6, s%d, 1" % s_w, "v_add_u32 v%d, s6, v%d" % (t1, t1)])
        for x in ("v_lshrrev_b32 v%d, 3, v%d" % (t4, i15), "v_and_b32 v%d, 1, v%d" % (t3, l4), "v_lshlrev_b32 v%d, 1, v%d" % (t3, t3), "v_or_b32 v%d, v%d, v%d" % (t4, t4, t3),
                  "v_lshlrev_b32 v%d, 1, v%d" % (t4, t4), "v_xor_b32 v%d, v%d, v%d" % (t1, t1, t4), "v_lshlrev_b32 v%d, 4, v%d" % (t1, t1), "v_add_u32 v%d, v%d, v%d" % (t0, t0, t1),
                  "v_and_b32 v%d, 1, v%d" % (t1, i15), "v_lshlrev_b32 v%d, 3, v%d" % (t1, t1), "v_add_u32 v%d, v%d, v%d" % (vWor, t0, t1)): d(x)
        for x in ("v_lshlrev_b32 v%d, 4, v%d" % (t0, i15), "v_add_u32 v%d, %d, v%d" % (vStR, ST, t0)): d(x)
        d(["s_lshl_b32 s6, s%d, 2" % s_w, "v_add_u32 v%d, s6, v%d" % (vStW, vStR)])
        d("v_lshlrev_b32 v%d, 4, v0" % vStO)
        def nonce_pub():
            e("s_or_b32 s4, s2, s%d" % s_w); e("s_cmp_lg_u32 s4, 0"); e("s_cbranch_scc1 L_nononce")
            p.raw(Ins("s_memrealtime s[90:91]", "nocount")); p.raw(Ins("s_waitcnt lgkmcnt(0)", "nocredit")); e("s_or_b32 s90, s90, 1")
            e("v_mov_b32 v%d, s90" % t2); e("v_mov_b32 v%d, 0" % t3)
            p.raw(Ins("global_store_dword v%d, v%d, s[%d:%d] sc1" % (t3, t2, s_dbgp, s_dbgp + 1), 'nocount'))
            e("L_nononce:")
        if not cfg.defer:
            self.emit(D); D = []
            if cfg.fuse: nonce_pub()

        def qacc(dt, qt): return vS + (dt * 3 + qt) * 16
        FA = lambda buf, dt: buf * 20 + dt * 4
        FB = lambda buf, qt: buf * 20 + 8 + qt * 4
        def q_reads(n):
            buf = n & 3; xs = ((n >> 2) % 3) * 12288
            ring, sl = wslot(n)
            rd = []
            for dt in range(2):
                va = (vA0 if dt == 0 else vA1) if ring else (vVr0 if dt == 0 else vVr1)
                for jj in range(2):
                    rd.append("ds_read_b64_tr_b16 %s, v%d offset:%d" % (ar(FA(buf, dt) + 2 * jj, 2), va, sl + jj * 512))
            for qt in range(3):
                rd.append("ds_read_b128 %s, v%d offset:%d" % (ar(FB(buf, qt)), vXr[n & 3], xs + qt * 4096))
            return [rd[0], rd[1], rd[4], rd[2], rd[3], rd[5], rd[6]]
        def q_mfmas(n):
            buf = n & 3
            return ["v_mfma_f32_32x32x16_bf16 %s, %s, %s, %s" % (vr(qacc(dt, qt), 16), ar(FA(buf, dt)), ar(FB(buf, qt)), "0" if n == 0 else vr(qacc(dt, qt), 16))
                    for qt in range(3) for dt in range(2)]
        def KFr(i, s): return ar(192 + (i & 1) * 32 + s * 4)
        vKa = [vT[8], vT[9], vT[10], vT[11]]
        def k_addr(i):
            if not cfg.krow: return []
            d = self.kv_slot(i) - R
            return ["s_add_u32 s4, s%d, %d" % (s_kvb, d & 0xffffffff)] + ["v_add_u32 v%d, s4, v%d" % (vKa[j], vQr[j]) for j in range(4)]
        def k_read(i, s):
            if cfg.krow:
                return "ds_read_b128 %s, v%d offset:%d" % (KFr(i, s), vKa[s & 3], (s >> 2) * 256)
            slot = self.kv_slot(i)
            base = (vKr1 if s & 1 else vKr0)
            off = slot + (s >> 1) * 2048
            if off >= 65536:
                base = (vT[11] if s & 1 else vT[10]); off -= 65536
            return "ds_read_b128 %s, v%d offset:%d" % (KFr(i, s), base, off)
        self.emit(wdma(2)); self.emit(wdma(3)); self.emit(xdma(1))
        if not cfg.h5 or cfg.wpro == 6: self.emit(wdma(4)); self.emit(wdma(5))
        p.wait_vm("X0"); p.wait_vm("W1")
        e("s_barrier")
        self.emit(self.stamp())
        self.emit(q_reads(0)); self.emit(q_reads(1))
        wsched = {}
        kread = {}
        if cfg.h5:
            wsched = dict(cfg.wsched)
            for st_, ks in wsched.items():
                for k_ in ks: assert k_ - 14 <= st_ and k_ - 2 > st_
            kb0, kb1 = self.kv_block(0), self.kv_block(1)
            g = [[kb0[0], kb0[1]]] + kb0[2:9] + [[kb1[0], kb1[1]]] + kb1[2:9]
            kplan = {}
            for st_, (lo, hi) in cfg.h5_plan.items(): kplan[st_] = g[lo:hi]
            done = max(hi for (lo, hi) in cfg.h5_plan.values())
            self.k_rest = g[done:]
            assert min(st_ for st_, (lo, hi) in cfg.h5_plan.items() if lo < 8) >= 17 and min([99] + [st_ for st_, (lo, hi) in cfg.h5_plan.items() if hi > 8]) >= 21
        elif cfg.kfirst == 2:
            kplan = {}; self.k_rest = []
        elif cfg.kfirst == 1:
            kb1 = self.kv_block(1)
            kplan = {22: kb1[0:5], 23: kb1[5:8], 26: kb1[8:9]}; self.k_rest = []
        else:
            kb0 = self.kv_block(0); kb1 = self.kv_block(1)
            if cfg.kpace:
                kplan = {22: kb0[0:5], 23: kb0[5:8], 26: kb0[8:9] + kb1[0:4], 27: kb1[4:7]}
                self.k_rest = kb1[7:9]
            else:
                kb01 = kb0 + kb1
                kplan = dict((cfg.kstart + j, kb01[(len(kb01) * j) // 6:(len(kb01) * (j + 1)) // 6]) for j in range(6))
                self.k_rest = []
        for n in range(28):
            pre = []
            rd = []
            if n + 2 < 28:
                p.wait_vm("W%d" % (n + 2))
                if (n + 2) % 4 == 0:
                    p.wait_vm("X%d" % ((n + 2) >> 2))
                    if not cfg.xlate: e("s_waitcnt lgkmcnt(0)")
                    e("s_barrier")
                rd = q_reads(n + 2)
            if n in kread:
                b_ = kread[n]
                rd = rd + [k_addr(b_), (lambda b_=b_: p.wait_vm("B%d" % b_))] + [k_read(b_, s) for s in range(8)]
            dm = []
            if cfg.h5:
                for k_ in wsched.get(n, []): dm += wdma(k_)
            elif n + 6 < 28 and not cfg.exp_nowx: dm += wdma(n + 6)
            if cfg.xlate:
                if (n + 2) % 4 == 0 and 2 <= ((n + 2) >> 2) + 1 <= 6: dm += xdma(((n + 2) >> 2) + 1)
            else:
                if n == 1 and not cfg.exp_nowx: dm += xdma(2)
                if (n + 2) % 4 == 0 and ((n + 2) >> 2) + 2 <= 6 and not cfg.exp_nowx: dm += xdma(((n + 2) >> 2) + 2)
            dm += kplan.get(n, [])
            if n in cfg.trickle:
                j_ = list(cfg.trickle).index(n)
                u_ = []
                if j_ == 0:
                    u_ += ["v_and_b32 v%d, 15, v0" % vNonce, "v_lshlrev_b32 v%d, 7, v%d" % (vNonce, vNonce), "v_add_u32 v%d, s%d, v%d" % (vT[16], s_kvb, vNonce)]
                u_ += ["s_mov_b32 s4, %d" % ((j_ // 4) * 32768 + (j_ % 4) * 2048),
                       Ins("buffer_load_dword v%d, v%d, %s, s4 offen %s" % (160 + j_, vT[16], srd(SRD_K), cfg.trickle_aux), "TR")]
                dm.append(u_)
            mf = q_mfmas(n)
            if cfg.defer and n < 16:
                dm = merge(dm, D[(len(D) * n) // 16:(len(D) * (n + 1)) // 16]) if dm else D[(len(D) * n) // 16:(len(D) * (n + 1)) // 16]
            if cfg.defer and n == 17 and cfg.fuse: dm = dm + [nonce_pub]
            seq = []
            nr = len(rd)
            rpos = [min(3, (4 * k) // max(nr, 1)) for k in range(nr)]
            dpos = [2 + (4 * k) // max(len(dm), 1) for k in range(len(dm))]
            for i, m in enumerate(mf):
                seq.append(m)
                seq += [rd[k] for k in range(nr) if rpos[k] == i]
                seq += [dm[k] for k in range(len(dm)) if min(dpos[k], 5) == i]
            self.emit(seq)
        if cfg.code_pf >= 2: self.code_prefetch(vT[0], vT[2])
        self.emit(self.stamp())
        e("s_waitcnt lgkmcnt(0)")
        e("s_barrier")
        blk4 = self.kv_block(2)
        def exch_write(src_of):
            seq = []
            for dt in range(2):
                for rg in range(4):
                    va = vT[12 + ((dt * 4 + rg) & 1)]
                    seq.append("v_xor_b32 v%d, %d, v%d" % (va, (4 * dt + rg) * 16, vQw))
                    for qt in range(3):
                        b = src_of(dt, qt) + rg * 4
                        ta = vT[14 + 2 * qt]
                        seq.append(["v_cvt_pk_bf16_f32 v%d, v%d, v%d" % (ta, b, b + 1), "v_cvt_pk_bf16_f32 v%d, v%d, v%d" % (ta + 1, b + 2, b + 3),
                                    "ds_write_b64 v%d, %s offset:%d" % (va, vr(ta, 2), qt * 16384)])
            return seq
        if cfg.kd3:
            self.emit(k_addr(0))
            pre0 = [lambda: p.wait_vm("B0")] + [k_read(0, s) for s in range(8)]
            self.emit(weave(exch_write(qacc), blk4 + pre0))
        elif cfg.h5 == 1:
            self.emit(k_addr(0))
            pre0 = self.k_rest + [lambda: p.wait_vm("B0")] + [k_read(0, s) for s in range(8)]
            self.emit(weave(exch_write(qacc), pre0, 0, 20))
        else:
            self.emit(weave(exch_write(qacc), self.k_rest + ([] if cfg.b2s0 else blk4), 8 if cfg.kpace else 0))
        if not cfg.krow:
            e("v_add_u32 v%d, 0x10000, v%d" % (vT[10], vKr0)); e("v_add_u32 v%d, 0x10000, v%d" % (vT[11], vKr1))
        e("s_waitcnt lgkmcnt(0)")
        e("s_barrier")
        self.emit(self.stamp())
        QF = lambda t, s: (s * 6 + t) * 4
        def q_read(t, s):
            return "ds_read_b128 %s, v%d offset:%d" % (ar(QF(t, s)), vQr[s & 3], t * 8192 + (s >> 2) * 256)
        def qk_mfma(i, t, s):
            c = "0" if s == 0 else vr(S(i, t))
            return "v_mfma_f32_16x16x32_bf16 %s, %s, %s, %s" % (vr(S(i, t)), KFr(i, s), ar(QF(t, s)), c)
        def max_ops(i):
            r = []
            for t in range(6):
                b = S(i, t)
                if cfg.prescale:
                    for k in range(4): r.append("v_mul_f32 v%d, s%d, v%d" % (b + k, s_c, b + k))
                if i == 0:
                    r.append("v_max3_f32 v%d, v%d, v%d, v%d" % (vM[t], b, b + 1, b + 2))
                    r.append("v_max_f32 v%d, v%d, v%d" % (vM[t], vM[t], b + 3))
                else:
                    r.append("v_max3_f32 v%d, v%d, v%d, v%d" % (vM[t], vM[t], b, b + 1))
                    r.append("v_max3_f32 v%d, v%d, v%d, v%d" % (vM[t], vM[t], b + 2, b + 3))
            return r
        for j in range(1, 4): e("v_add_u32 v%d, %d, v%d" % (vVD[j], j * 3072, vV))
        for i in range(8):
            if cfg.h5 == 1:
                mx = max_ops(i - 1) if i >= 1 else []
                if i == 0:
                    dm = self.kv_block(2) + self.kv_block(3)
                    self.emit([q_read(t, 0) for t in range(6)])
                    seq = []
                    for s in range(8):
                        nxq = [q_read(t, s + 1) for t in range(6)] if s < 7 else []
                        seq += weave([qk_mfma(0, t, s) for t in range(6)], nxq)
                    self.emit(weave(seq, dm[:9]))
                    self.k_b4 = dm[9:]
                else:
                    self.emit(k_addr(i))
                    p.wait_vm("B%d" % i)
                    self.emit([k_read(i, s) for s in range(8)])
                    mf = [qk_mfma(i, t, s) for s in range(8) for t in range(6)]
                    self.emit(mf[:6])
                    e("s_waitcnt lgkmcnt(0)")
                    dm = self.kv_block(i + 3)
                    if i == 1: dm = self.k_b4 + dm
                    self.emit(weave(mf[6:], merge(dm, mx), 0, 41))
                if cfg.fine and i < 7: self.emit(self.stamp())
                continue
            if cfg.kd3 and i == 0:
                dm = self.kv_block(3)
                self.emit([q_read(t, 0) for t in range(6)])
                seq = []
                for s in range(8):
                    nxq = [q_read(t, s + 1) for t in range(6)] if s < 7 else []
                    seq += weave([qk_mfma(0, t, s) for t in range(6)], nxq)
                self.emit(weave(seq, dm, 6, len(seq)))
                if cfg.fine: self.emit(self.stamp())
                continue
            if cfg.s4 and i == 1:
                e("s_waitcnt lgkmcnt(0)")
                e("s_barrier")
            self.emit(k_addr(i))
            p.wait_vm("B%d" % i)
            rd = [k_read(i, s) for s in range(8)]
            mx = max_ops(i - 1) if i >= 1 else []
            if cfg.kd3:
                dm = self.kv_block(i + 3)
                mf = [qk_mfma(i, t, s) for s in range(8) for t in range(6)]
                self.emit(rd)
                self.emit(mf[:6])
                e("s_waitcnt lgkmcnt(0)")
                self.emit(weave(mf[6:], merge(dm, mx), 0, 41))
            else:
                if cfg.s4:
                    dm = (self.kv_block(3) + self.kv_block(4)) if i == 1 else (self.kv_block(i + 3) if i >= 2 else [])
                else:
                    dm = self.kv_block(i + 2) if i >= 1 else []
                if i == 0:
                    self.emit([rd[0]] + [q_read(t, 0) for t in range(6)])
                    seq = []
                    for s in range(8):
                        nxq = ([rd[s + 1]] + [q_read(t, s + 1) for t in range(6)]) if s < 7 else []
                        seq += weave([qk_mfma(0, t, s) for t in range(6)], nxq)
                    self.emit(weave(seq, blk4) if cfg.b2s0 else seq)
                else:
                    mf = [qk_mfma(i, t, s) for s in range(8) for t in range(6)]
                    self.emit(rd)
                    if cfg.tlb2 and i == 2:
                        dm = dm + [[Ins("buffer_load_dword v%d, v%d, %s, 0 offen nt" % (248, vStO, srd(SRD_V)), "TW")]]
                    self.emit(weave(mf, merge(dm, mx), 2, 47))
            if cfg.fine and i < 7: self.emit(self.stamp())
        if cfg.code_pf >= 2: self.code_prefetch(vT[0], vT[2])
        self.emit(self.stamp())
        e("v_add_u32 v%d, 0x10000, v%d" % (vA0, vVr0)); e("v_add_u32 v%d, 0x10000, v%d" % (vA1, vVr1))
        vB0, vB1 = vKr0, vKr1
        e("v_add_u32 v%d, %d, v%d" % (vB0, SLOT[3], vVr0)); e("v_add_u32 v%d, %d, v%d" % (vB1, SLOT[3], vVr1))
        self.emit(max_ops(7))
        seq = []
        for t in range(6):
            a = vT[0 + (t & 1)]
            seq += ["v_mov_b32 v%d, v%d" % (a, vM[t]), "v_permlane32_swap_b32 v%d, v%d" % (a, vM[t]), "v_max_f32 v%d, v%d, v%d" % (vM[t], vM[t], a),
                    "v_mov_b32 v%d, v%d" % (a, vM[t]), "v_permlane16_swap_b32 v%d, v%d" % (a, vM[t]), "v_max_f32 v%d, v%d, v%d" % (vM[t], vM[t], a),
                    "ds_write_b32 v%d, v%d offset:%d" % (vStW, vM[t], t * 256)]
        chains = [seq[7 * t:7 * t + 7] for t in range(6)]
        chains = []
        for t in range(6):
            a = vT[t]
            chains.append(["v_mov_b32 v%d, v%d" % (a, vM[t]), "v_permlane32_swap_b32 v%d, v%d" % (a, vM[t]), "v_max_f32 v%d, v%d, v%d" % (vM[t], vM[t], a),
                           "v_mov_b32 v%d, v%d" % (a, vM[t]), "v_permlane16_swap_b32 v%d, v%d" % (a, vM[t]), "v_max_f32 v%d, v%d, v%d" % (vM[t], vM[t], a),
                           "ds_write_b32 v%d, v%d offset:%d" % (vStW, vM[t], t * 256)])
        for k in range(7):
            for t in range(6): e(chains[t][k])
        e("s_waitcnt lgkmcnt(0)")
        e("s_barrier")
        for t in range(5): e("ds_read_b128 %s, v%d offset:%d" % (vr(44 + 4 * t, 4), vStR, t * 256))
        for t in range(6):
            b = 44 + 4 * (t % 5)
            if t == 5: e("ds_read_b128 %s, v%d offset:%d" % (vr(b, 4), vStR, t * 256))
            e("v_max3_f32 v%d, v%d, v%d, v%d" % (vM[t], b, b + 1, b + 2)); e("v_max_f32 v%d, v%d, v%d" % (vM[t], vM[t], b + 3))
        if not cfg.prescale:
            for t in range(6): e("v_mul_f32 v%d, s%d, v%d" % (vM[t], s_c, vM[t]))
        for j in range(4): e("v_add_u32 v%d, %d, v%d" % (vXr[j], (R - XB) & 0xffffffff, vXr[j]))
        e("s_mov_b32 s%d, 0x3f803f80" % s_ones)
        for t in range(6): e("v_mov_b32 v%d, 0" % vL[t])
        def exp_ops(i):
            us = []
            for t in range(6):
                b = S(i, t)
                tm = [vT[0], vT[1], vT[2], vT[3]] if t % 2 == 0 else [vT[4], vT[5], vT[6], vT[7]]
                pk = vT[8 + 2 * (t % 2)] if False else (vT[12] + 2 * (t % 2))
                for k in range(4):
                    if cfg.prescale: us.append("v_sub_f32 v%d, v%d, v%d" % (tm[k], b + k, vM[t]))
                    else: us.append("v_fma_f32 v%d, v%d, s%d, -v%d" % (tm[k], b + k, s_c, vM[t]))
                for k in range(4): us.append("v_exp_f32 v%d, v%d" % (tm[k], tm[k]))
                if cfg.sumadd:
                    us.append("v_add_f32 v%d, v%d, v%d" % (vL[t], vL[t], tm[0]))
                    us.append("v_cvt_pk_bf16_f32 v%d, v%d, v%d" % (pk, tm[0], tm[1]))
                    us.append("v_add_f32 v%d, v%d, v%d" % (vL[t], vL[t], tm[1]))
                    us.append("v_cvt_pk_bf16_f32 v%d, v%d, v%d" % (pk + 1, tm[2], tm[3]))
                    us.append("v_add_f32 v%d, v%d, v%d" % (vL[t], vL[t], tm[2]))
                    us.append("v_add_f32 v%d, v%d, v%d" % (vL[t], vL[t], tm[3]))
                else:
                    us.append("v_cvt_pk_bf16_f32 v%d, v%d, v%d" % (pk, tm[0], tm[1]))
                    us.append("v_cvt_pk_bf16_f32 v%d, v%d, v%d" % (pk + 1, tm[2], tm[3]))
                    us.append("v_dot2c_f32_bf16 v%d, s%d, v%d" % (vL[t], s_ones, pk))
                    us.append("v_dot2c_f32_bf16 v%d, s%d, v%d" % (vL[t], s_ones, pk + 1))
                us.append("ds_write_b64 v%d, %s offset:%d" % (vPw, vr(pk, 2), (i & 1) * 12288 + t * 2048))
            return us
        self.emit(weave(exp_ops(0), self.kv_block(11 if cfg.s4 else 10)) if not (cfg.kd3 or cfg.h5 == 1) else exp_ops(0))
        self.emit(self.stamp())
        OAa = lambda dt, qt: (dt * 3 + qt) * 16
        OAv = lambda dt, qt: vS + (dt * 3 + qt) * 16
        VF = lambda buf, dt: 96 + buf * 20 + dt * 4
        PF = lambda buf, qt: 96 + buf * 20 + 8 + qt * 4
        def v_reads(i, u, buf):
            slot = self.kv_slot(8 + i)
            rd = []
            for dt in range(2):
                for jj in range(2):
                    off = slot + (16 * u + 4 * jj) * 128
                    base = vVr1 if dt else vVr0
                    if slot == SLOT[3]:
                        base = vB1 if dt else vB0; off -= SLOT[3]
                    elif off >= 65536:
                        base = vA1 if dt else vA0; off -= 65536
                    rd.append("ds_read_b64_tr_b16 %s, v%d offset:%d" % (ar(VF(buf, dt) + 2 * jj, 2), base, off))
            for qt in range(3):
                rd.append("ds_read_b128 %s, v%d offset:%d" % (ar(PF(buf, qt)), vXr[u], (i & 1) * 12288 + qt * 4096))
            return [rd[0], rd[1], rd[4], rd[2], rd[3], rd[5], rd[6]]
        def pv_mfmas(i, u, buf):
            out = []
            for qt in range(3):
                for dt in range(2):
                    d = ar(OAa(dt, qt), 16) if i < 4 else vr(OAv(dt, qt), 16)
                    c = "0" if (i == 0 and u == 0) else d
                    out.append("v_mfma_f32_32x32x16_bf16 %s, %s, %s, %s" % (d, ar(VF(buf, dt)), ar(PF(buf, qt)), c))
            return out
        wo_slot = (lambda k: SLOT[(0, 2, 1)[(11 + k) % 3]]) if cfg.h5 == 1 else ((lambda k: SLOT[k % 3]) if cfg.s4 else (lambda k: SLOT[(16 + k) % 3]))
        def wo_block(k):
            slot = wo_slot(k)
            tag = "WO%d" % k
            us = [lambda: p.group(tag)]
            for i in range(8):
                m0 = (s_kvb, slot + i * 1024) if i % 4 == 0 else None
                us.append(self.dma(vWoD[i], SRD_O, (sWO[k], None), m0, tag, cfg.aux_wo, imm=(i & 3) * 1024))
            return us
        if cfg.rot:
            e("s_cmp_eq_u32 s%d, 7" % s_b); e("s_cselect_b32 s%d, 0, s%d" % (s_ng, s_b))
        else:
            e("s_mov_b32 s%d, 0" % s_ng)
        e("s_mov_b32 s4, s%d" % s_ng)
        for k in range(7):
            if k: e("s_add_u32 s4, s4, 1"); e("s_cmp_eq_u32 s4, 7"); e("s_cselect_b32 s4, 0, s4")
            e("s_lshl_b32 s%d, s4, 7" % sWO[k])
            e("s_lshl_b32 s6, s4, 2"); e("s_add_u32 s6, s6, s%d" % s_w); e("s_mul_i32 s%d, s6, 3072" % sST[k])
        def split_reads(i, u, buf):
            r = v_reads(i, u, buf)
            return [r[2], r[5], r[6]], [r[0], r[1], r[3], r[4]]
        e("s_waitcnt lgkmcnt(0)")
        e("s_barrier")
        p.wait_vm("B8")
        self.emit(v_reads(0, 0, 0))
        for i in range(8):
            fill = exp_ops(i + 1) if i + 1 < 8 else []
            dm = []
            late = []
            if cfg.s4:
                if 1 <= i <= 4: dm = self.kv_block(8 + i + 3)
            elif 1 <= i <= 5: dm = self.kv_block(8 + i + 2)
            if i == 2 and cfg.tlb2:
                dm = dm + [[Ins("buffer_load_dword v%d, v%d, %s, 0 offen" % (64 + k_, vStO, srd(sr_)), "TW")] for k_, sr_ in enumerate((SRD_O, SRD_P, SRD_OUT))]
            if i == 1 and cfg.fuse:
                dm = [["v_mov_b32 v%d, 0" % vT[19], lambda: p.group("NC"),
                       Ins("global_load_dword v%d, v%d, s[%d:%d] sc1" % (vNonce, vT[19], s_dbgp, s_dbgp + 1), "NC")]] + dm
            if i == (3 if cfg.s4 else 4):
                a0, a1, a2 = 168, 169, 170
                late += ["v_lshrrev_b32 v%d, 3, v0" % a0, "s_lshl_b32 s6, s%d, 6" % s_w, "v_add_u32 v%d, s6, v%d" % (a0, a0), "v_mul_u32_u24 v%d, 896, v%d" % (a0, a0)]
                late += ["v_lshrrev_b32 v%d, 4, v0" % a1, "v_and_b32 v%d, 1, v%d" % (a1, a1), "v_lshlrev_b32 v%d, 1, v%d" % (a1, a1), "v_and_b32 v%d, 7, v0" % a2, "v_xor_b32 v%d, v%d, v%d" % (a1, a1, a2),
                         "v_lshlrev_b32 v%d, 4, v%d" % (a1, a1)]
                late += ["v_add_u32 v%d, v%d, v%d" % (a2, a0, a1), "v_xor_b32 v%d, 64, v%d" % (a1, a1), "v_add_u32 v%d, v%d, v%d" % (a1, a0, a1)]
                for k in range(8):
                    late.append("v_add_u32 v%d, %d, v%d" % (vWoD[k], k * 7168 - (k & 3) * 1024, a1 if k & 1 else a2))
            if cfg.s4 and i == 5: dm = wo_block(0)
            if i == 6:
                dm = wo_block(1 if cfg.s4 else 0)
                ch = []
                for t in range(6):
                    a = vT[t]
                    ch.append(["v_mov_b32 v%d, v%d" % (a, vL[t]), "v_permlane32_swap_b32 v%d, v%d" % (a, vL[t]), "v_add_f32 v%d, v%d, v%d" % (vL[t], vL[t], a),
                               "v_mov_b32 v%d, v%d" % (a, vL[t]), "v_permlane16_swap_b32 v%d, v%d" % (a, vL[t]), "v_add_f32 v%d, v%d, v%d" % (vL[t], vL[t], a),
                               "ds_write_b32 v%d, v%d offset:%d" % (vStW, vL[t], 2048 + t * 256)])
                self.red_chain = [ch[t][k] for k in range(7) for t in range(6)]
                if cfg.red_early: self.pre_wait = self.red_chain
            if i == 7:
                dm = wo_block(2 if cfg.s4 else 1) if not cfg.wo1_late else []
                fill = self.red_chain if not cfg.red_early else []
                fin = late if not cfg.red_early else []
                self.fin_stats = fin
                for t in range(6):
                    b = 44 + 4 * (t % 3)
                    fin += ["ds_read_b128 %s, v%d offset:%d" % (vr(b, 4), vStR, 2048 + t * 256),
                             ["v_add_f32 v%d, v%d, v%d" % (b, b, b + 1), "v_add_f32 v%d, v%d, v%d" % (b + 2, b + 2, b + 3),
                              "v_add_f32 v%d, v%d, v%d" % (b, b, b + 2), "v_rcp_f32 v%d, v%d" % (vM[t], b)]]
            if 'nodma' in cfg.exp_v: dm = [x for x in dm if callable(x)]
            if 'noexp' in cfg.exp_v: fill = [x for x in fill if 'v_exp' not in str(x)]
            if 'nodot' in cfg.exp_v: fill = [x for x in fill if 'v_dot2c' not in str(x)]
            if 'nofill' in cfg.exp_v: fill = [x for x in fill if 'ds_write' in str(x)]
            mf = []
            if i == 4 and not cfg.mv_weave:
                mv = ["v_accvgpr_read_b32 v%d, a%d" % (vS + r, r) for r in range(96)]
                self.emit(weave(mv, dm[:5], 0, 96)); dm = dm[5:]
            for u in range(3):
                m = pv_mfmas(i, u, u & 1)
                if i == 4 and u == 0 and cfg.mv_weave:
                    rd = v_reads(i, 1, 1)
                    k = 0
                    seq = []
                    for qt in range(3):
                        for dt in range(2):
                            seq.append(["v_accvgpr_read_b32 v%d, a%d" % (OAv(dt, qt) + r, OAa(dt, qt) + r) for r in range(16)])
                            seq.append(m[k])
                            seq += rd[k:k + 1] + (rd[6:7] if k == 5 else [])
                            k += 1
                    self.emit(weave(seq, dm[:4], 0, len(seq))); dm = dm[4:]
                    continue
                mf += weave(m, v_reads(i, u + 1, (u + 1) & 1), 0, 4)
            self.emit(weave(mf, merge(fill, dm), 0, len(mf) - 1))
            e("s_waitcnt lgkmcnt(0)")
            if 'nobar' not in cfg.exp_v: e("s_barrier")
            m3 = pv_mfmas(i, 3, 1)
            if i < 7:
                pr, vrd = split_reads(i + 1, 0, 0)
                pw = self.red_chain if (cfg.red_early and i == 6) else []
                seq = [m3[0]] + pr + [m3[1]] + pw + [(lambda j=i + 1: p.wait_vm("B%d" % (8 + j)))] + vrd
                seq += weave(m3[2:], late)
            else:
                seq = weave(m3, late)
            self.emit(seq)
            if cfg.fine and i < 7: self.emit(self.stamp())
        self.emit(self.stamp())
        ex_fill = (wo_block(1) if cfg.wo1_late == 1 else [])
        if cfg.red_early: ex_fill = merge(ex_fill, self.fin_stats)
        self.emit(weave(exch_write(OAv), ex_fill))
        if cfg.fuse: self.get_nonce()
        p.wait_vm("WO0")
        e("s_waitcnt lgkmcnt(0)")
        e("s_barrier")
        self.emit(self.stamp())
        OF = QF
        WF = lambda b, s: 192 + 32 * b + s * 4
        ACC = lambda t: vS + t * 4
        def wo_reads(k):
            slot = wo_slot(k)
            base = vWor
            if slot >= 65536: base = vA0
            off0 = slot if slot < 65536 else slot - 65536
            return ["ds_read_b64_tr_b16 %s, v%d offset:%d" % (ar(WF(k & 1, s) + 2 * jj, 2), base, off0 + (32 * s + 4 * jj) * 128) for s in range(8) for jj in range(2)]
        def epi(t):
            b = ACC(t)
            pk = vT[8] + 4 * ((t >> 1) & 1) + 2 * (t & 1)
            u = ["v_mul_f32 v%d, v%d, v%d" % (b + k, vM[t], b + k) for k in range(4)]
            u += ["v_cvt_pk_bf16_f32 v%d, v%d, v%d" % (pk, b, b + 1), "v_cvt_pk_bf16_f32 v%d, v%d, v%d" % (pk + 1, b + 2, b + 3)]
            return u
        def st(pair, k):
            pk = vT[8] + 4 * (pair & 1)
            if cfg.exp_nostore: return []
            return [[lambda: p.group("ST%d_%d" % (k, pair)),
                     Ins("buffer_store_dwordx4 %s, v%d, %s, s%d offen offset:%d %s" % (vr(pk, 4), vStO, srd(SRD_P), sST[k], pair * 1024, cfg.aux_st), "ST%d_%d" % (k, pair))]]
        def tile(k, t):
            return ["v_mfma_f32_16x16x32_bf16 %s, %s, %s, %s" % (vr(ACC(t)), ar(WF(k & 1, s)), ar(OF(t, s)), "0" if s == 0 else vr(ACC(t))) for s in range(8)]
        e("v_add_u32 v%d, 0x10000, v%d" % (vA0, vWor))
        r0 = wo_reads(0)
        self.emit([x for s in range(8) for x in (r0[2 * s:2 * s + 2] + [q_read(0, s)])])
        if cfg.wo1_late == 2: self.emit(wo_block(1))
        elif not cfg.s4: self.emit(wo_block(2))
        for k in range(7):
            f = [[] for _ in range(6)]
            if k == 0:
                for t in range(5): f[t] += [q_read(t + 1, s) for s in range(8)]
                if cfg.wo1_late == 2:
                    w2 = wo_block(2)
                    f[0] = merge(f[0], w2[:5]); f[1] = merge(f[1], w2[5:])
            else:
                f[0] += epi(4); f[1] += epi(5) + st(2, k - 1)
            f[2] += epi(0); f[3] += epi(1) + st(0, k); f[4] += epi(2); f[5] += epi(3) + st(1, k)
            nx = wo_reads(k + 1) if k < 6 else []
            dm = wo_block(k + 3) if (k + 3 <= 6 and not cfg.exp_nowodma) else []
            for t in range(6):
                if t == 2 and k < 6:
                    if k == 5 and cfg.fuse:
                        e("s_waitcnt vmcnt(0)")
                        e("s_barrier")
                        self.emit(self.flag_store(0))
                    else:
                        p.wait_vm("WO%d" % (k + 1))
                        if not cfg.exp_nobar: e("s_barrier")
                ex = []
                if t >= 2:
                    ex = nx[4 * (t - 2):4 * (t - 1)]
                    dd = dm[0:1] + dm[1:3] if t == 2 else dm[1 + 2 * (t - 2):3 + 2 * (t - 2)]
                    ex = merge(ex, dd)
                if cfg.fuse and cfg.epoll and k == 6 and t == 2:
                    ex = ex + [["s_mov_b32 s%d, 0x40000000" % s_oob], self.early_poll_issue(0, 46, 0)]
                self.emit(weave(tile(k, t), merge(f[t], ex), 0, 8))
        self.emit(epi(4)); self.emit(epi(5)); self.emit(st(2, 6))
        self.emit(self.stamp())
        if cfg.fuse:
            self.reduce_tail()
        elif cfg.stamps or cfg.dbg:
            e("s_waitcnt vmcnt(0)")
            self.emit(self.stamp())
        e("L_k1_end:")
        e("s_endpgm")
        p.resolve()
        return p.text()

    def get_nonce(self):
        cfg, p, e = self.cfg, self.p, self.p.e
        e("v_readfirstlane_b32 s%d, v%d" % (s_nonce, vNonce))
        e("s_cmp_lg_u32 s%d, 0" % s_nonce); e("s_cbranch_scc1 L_havenonce")
        e("s_mov_b32 s63, 0x100000")
        e("L_pollnonce:")
        e("s_sub_u32 s63, s63, 1"); e("s_cbranch_scc1 L_havenonce")
        e("v_mov_b32 v44, 0")
        p.raw(Ins("global_load_dword v%d, v44, s[%d:%d] sc1" % (vNonce, s_dbgp, s_dbgp + 1), "nocount"))
        p.raw(Ins("s_waitcnt vmcnt(0)", "nocredit"))
        e("v_readfirstlane_b32 s%d, v%d" % (s_nonce, vNonce))
        e("s_cmp_eq_u32 s%d, 0" % s_nonce); e("s_cbranch_scc1 L_pollnonce")
        e("L_havenonce:")
        e("s_lshl_b32 s4, s%d, 8" % s_G); e("s_add_u32 s4, s4, %d" % FLAG_OFF)
        e("s_add_u32 s68, s58, s4"); e("s_addc_u32 s69, s59, 0")

    def flag_store(self, which):
        lab = "L_nofl%d" % which
        return ["s_cmp_lg_u32 s%d, 0" % s_w, "s_cbranch_scc1 %s" % lab,
                "v_mov_b32 v42, s%d" % s_nonce, "s_lshl_b32 s4, s%d, 2" % s_h, "s_add_u32 s4, s4, %d" % (128 * which), "v_mov_b32 v43, s4",
                "s_mov_b64 exec, 1",
                Ins("global_store_dword v43, v42, s[68:69] sc1", "nocount"),
                "s_mov_b64 exec, -1", "s_nop 4", lab + ":"]

    def poll(self, which):
        e, p = self.p.e, self.p
        e("s_mov_b64 exec, 0xffff")
        e("v_lshlrev_b32 v45, 2, v0")
        e("s_mov_b32 s60, 0x100000")
        e("L_poll%d:" % which)
        p.raw(Ins("global_load_dword v46, v45, s[68:69] offset:%d sc1" % (128 * which), "nocount"))
        p.raw(Ins("s_waitcnt vmcnt(0)", "nocredit"))
        e("v_cmp_ne_u32 vcc, s%d, v46" % s_nonce)
        e("s_nop 4")
        e("s_cbranch_vccz L_polldone%d" % which)
        e("s_sub_u32 s60, s60, 1"); e("s_cbranch_scc1 L_polldone%d" % which)
        e("s_sleep 2")
        e("s_branch L_poll%d" % which)
        e("L_polldone%d:" % which)
        e("s_mov_b64 exec, -1")

    def early_poll_issue(self, which, dst, ndummy):
        p = self.p
        u = ["v_and_b32 v45, 15, v0", "v_lshlrev_b32 v45, 2, v45", lambda: p.group("PL%d" % which),
             Ins("global_load_dword v%d, v45, s[68:69] offset:%d sc1" % (dst, 128 * which), "PL%d" % which)]
        for k in range(ndummy):
            u.append(Ins("buffer_load_dword v%d, v%d, %s, s%d offen" % (192 + 8 * which + k, vStO, srd(SRD_P), s_oob), "DUM"))
        return u

    def early_poll_check(self, which, dst):
        e = self.p.e
        e("v_cmp_ne_u32 vcc, s%d, v%d" % (s_nonce, dst))
        e("s_nop 4")
        e("s_cbranch_vccz L_ep%d" % which)
        self.poll(which)
        e("L_ep%d:" % which)

    def unit(self, su, tagname, after_loads=None, before_stores=None):
        cfg, p, e = self.cfg, self.p, self.p.e
        SG = 64
        e("s_mul_hi_u32 s5, s%d, %d" % (su, (1 << 32) // 12 + 1)); e("s_mul_i32 s6, s5, 12"); e("s_sub_u32 s6, s%d, s6" % su)
        e("s_add_u32 s5, s5, s%d" % s_ng); e("s_cmp_ge_u32 s5, 7"); e("s_cselect_b32 s7, 7, 0"); e("s_sub_u32 s5, s5, s7")
        e("s_mul_i32 s72, s5, 12"); e("s_add_u32 s72, s72, s6"); e("s_lshl_b32 s72, s72, 10")
        e("s_mul_hi_u32 s7, s6, %d" % ((1 << 32) // 3 + 1)); e("s_mul_i32 s76, s7, 3"); e("s_sub_u32 s76, s6, s76")
        e("s_lshl_b32 s5, s5, 7"); e("s_lshl_b32 s7, s7, 5"); e("s_mul_i32 s76, s76, %d" % (32 * 1792))
        e("s_add_u32 s5, s5, s7"); e("s_add_u32 s5, s5, s76"); e("s_add_u32 s73, s5, s70")
        e("s_cmp_ge_u32 s%d, 84" % su)
        e("s_cselect_b32 s72, 0x40000000, s72"); e("s_cselect_b32 s73, 0x40000000, s73")
        for h in range(16):
            e("s_add_u32 s5, s72, %d" % (h * PART))
            p.raw(Ins("buffer_load_dwordx4 %s, v%d, %s, s5 offen %s" % (vr(64 + 4 * h, 4), vStO, srd(SG), cfg.aux_rd), tagname))
        if after_loads: self.emit(after_loads)
        acc = list(range(48, 56))
        for a in acc: e("v_mov_b32 v%d, 0" % a)
        for h in range(16):
            b = 64 + 4 * h
            for q in range(4):
                e("v_dot2c_f32_bf16 v%d, s74, v%d" % (acc[2 * q], b + q)); e("v_dot2c_f32_bf16 v%d, s75, v%d" % (acc[2 * q + 1], b + q))
        for q in range(4): e("v_cvt_pk_bf16_f32 v%d, v%d, v%d" % (56 + q, acc[2 * q], acc[2 * q + 1]))
        if before_stores: before_stores()
        e("buffer_store_dwordx2 v[56:57], v41, %s, s73 offen %s" % (srd(SRD_OUT), cfg.aux_out))
        e("s_add_u32 s5, s73, %d" % (16 * 1792))
        e("buffer_store_dwordx2 v[58:59], v41, %s, s5 offen %s" % (srd(SRD_OUT), cfg.aux_out))

    def reduce_tail(self):
        cfg, p, e = self.cfg, self.p, self.p.e
        SG = 64
        e("s_mul_i32 s4, s%d, %d" % (s_G, PART * 16))
        if cfg.part_off: e("s_add_u32 s4, s4, %d" % cfg.part_off)
        e("s_add_u32 s%d, s58, s4" % SG); e("s_addc_u32 s%d, s59, 0" % (SG + 1)); e("s_mov_b32 s%d, %d" % (SG + 2, PART * 16)); e("s_mov_b32 s%d, 0x20000" % (SG + 3))
        e("s_mul_i32 s70, s%d, %d" % (s_b, 96 * 1792)); e("s_mul_i32 s4, s%d, 896" % s_br); e("s_add_u32 s70, s70, s4")
        e("v_and_b32 v41, 15, v0"); e("v_mul_u32_u24 v41, 1792, v41"); e("v_lshrrev_b32 v42, 4, v0"); e("v_lshlrev_b32 v42, 3, v42"); e("v_add_u32 v41, v41, v42")
        e("s_mov_b32 s74, 0x3f80"); e("s_mov_b32 s75, 0x3f800000")
        e("s_lshl_b32 s61, s%d, 2" % s_h); e("s_add_u32 s61, s61, s%d" % s_w)
        e("s_cmp_ge_u32 s61, 60"); e("s_cselect_b32 s61, 127, s61")
        e("s_lshl_b32 s62, s%d, 4" % s_w); e("s_add_u32 s62, s62, s%d" % s_h); e("s_add_u32 s62, s62, 60")
        if cfg.epoll:
            e("s_waitcnt vmcnt(0)")
            self.early_poll_check(0, 46)
            e("s_barrier")
            self.emit(self.stamp())
            self.emit(self.flag_store(1))
            self.unit(61, "RD1", after_loads=self.early_poll_issue(1, 60, 0), before_stores=lambda: self.early_poll_check(1, 60))
            self.emit(self.stamp())
        else:
            e("s_cmp_eq_u32 s%d, 3" % s_w); e("s_cbranch_scc0 L_np1")
            self.poll(0)
            e("L_np1:")
            e("s_waitcnt vmcnt(0)")
            e("s_barrier")
            self.emit(self.stamp())
            self.emit(self.flag_store(1))
            self.unit(61, "RD1")
            e("s_cmp_eq_u32 s%d, 3" % s_w); e("s_cbranch_scc0 L_np2")
            self.poll(1)
            e("L_np2:")
            e("s_barrier")
            self.emit(self.stamp())
        e("s_cmp_ge_u32 s%d, 2" % s_w); e("s_cbranch_scc1 L_fin")
        self.unit(62, "RD2")
        e("L_fin:")
        if cfg.stamps or cfg.dbg:
            e("s_waitcnt vmcnt(0)")
            self.emit(self.stamp())

def desc(name, vg, acc, sg=102):
    return """.amdhsa_kernel %s
  .amdhsa_next_free_vgpr %d
  .amdhsa_next_free_sgpr %d
  .amdhsa_accum_offset %d
  .amdhsa_group_segment_fixed_size 0
  .amdhsa_kernarg_size 104
  .amdhsa_user_sgpr_count 2
  .amdhsa_user_sgpr_kernarg_segment_ptr 1
  .amdhsa_system_sgpr_workgroup_id_x 1
  .amdhsa_float_denorm_mode_32 3
.end_amdhsa_kernel
""" % (name, vg, sg, acc)

REF = "concat_heads__gqa_block_cached__mha_block_cached__near_ridge.s.ref"
HEAD = open(REF).read().split("; Override launch geometry")[0] if os.path.exists(REF) else ""

def generate(cfg):
    k1 = K1(cfg).build()
    out = HEAD
    out += "; @launch grid=(256,1,1) block=(256,1,1) lds=163840\n"
    out += '.amdgcn_target "amdgcn-amd-amdhsa--gfx950"\n.text\n'
    out += ".globl %s\n.p2align 8\n.type %s,@function\n%s:\n%s\n" % (KNAME, KNAME, KNAME, k1)
    out += '.section .rodata,"a"\n.p2align 6\n' + desc(KNAME, 512, 256)
    return out

if __name__ == "__main__":
    kw = {}
    for a in sys.argv[2:]:
        k, v = a.split("=", 1)
        kw[k] = eval(v)
    txt = generate(Cfg(**kw))
    open(sys.argv[1], "w").write(txt)
    print("wrote", sys.argv[1], len(txt), "bytes,", txt.count("\n"), "lines")
```

```python
import sys, os
from asmgen import Prog, Ins

KNAME = "concat_heads__gqa_block_cached__mha_block_cached__near_ridge_kernel"

class Cfg:
    aux_kv = "nt"
    aux_w = ""
    aux_x = ""
    aux_wo = ""
    aux_st = "sc1"
    aux_rd = "sc1"
    stamps = False
    dbg = False
    dbg_wg = 128
    rot = True
    fuse = True
    fine = False
    early_dma = True
    krow = True
    code_pf = 1
    code_bytes = 32768
    f1_drain = True
    exp_kpre = 4
    kstart = 22
    kd3 = False
    h5 = 2
    vbar = 0
    red_early = False
    part_off = 0
    tlb2 = False
    trickle = ()
    trickle_aux = ""
    wpro = 6
    wsched = {0: [6], 1: [7], 2: [8], 3: [9], 4: [10], 5: [11, 12], 6: [13, 14], 7: [15, 16], 8: [17, 18], 9: [19, 20], 10: [21, 22], 11: [23], 12: [24, 25], 13: [26], 14: [27]}
    h5_plan = {17: (0, 4), 18: (4, 7), 21: (7, 11), 22: (11, 14), 26: (14, 16)}
    kfirst = 0
    wo1_late = 1
    mv_weave = False
    prescale = True
    sumadd = True
    exp_v = ''
    s4 = False
    b2s0 = False
    kpace = True
    xlate = False
    exp_nostore = False
    exp_nowodma = False
    exp_nobar = False
    epoll = True
    aux_out = ""
    pf_first = True
    defer = True
    t00 = False
    aswap = False
    kbar = False
    rot_hh = 0
    b0_first = False
    tlbwarm = True
    exp_nowx = False
    def __init__(self, **kw):
        for k, v in kw.items():
            assert hasattr(Cfg, k), k
            setattr(self, k, v)

SLOT = [0, 32768, 65536, 122880]
WB = 65536
XB = 114688
R = 98304
ST = 159744
PART = 86016
TS_OFF = 64 << 20
FLAG_OFF = 32 << 20

vK0, vK1, vV, vW, vX = 1, 2, 3, 4, 5
vVD = [3, 41, 42, 43]
vKr0, vKr1 = 6, 7
vVr0, vVr1 = 8, 9
vXr = [10, 11, 12, 13]
vQr = [14, 15, 16, 17]
vPw = 18
vQw = 19
vWor = 20
vStW, vStR = 21, 22
vStO = 23
vM = [24, 25, 26, 27, 28, 29]
vL = [30, 31, 32, 33, 34, 35]
vWoD = list(range(160, 168))
vA0, vA1 = 38, 39
vNonce = 40
vKT = 6
vT = list(range(44, 64))
vS = 64

def S(i, t): return vS + (i * 6 + t) * 4

s_w = 3
sT0, sSoff, sT1, sT2 = 4, 5, 6, 7
SRD_X, SRD_W, SRD_K, SRD_V, SRD_O, SRD_P = 8, 12, 16, 20, 24, 28
s_c = 32
s_kvb = 33
s_wrb = 34
s_w1k = 35
sCW = list(range(36, 43))
sCX = list(range(44, 51))
sWO = list(range(36, 43))
sST = list(range(44, 51))
s_ws = 58
s_cnt = 60
s_ng, s_ng2, s_slotR, s_slotN, s_slotD, s_stoff, s_stprev, s_wooff = 71, 72, 73, 74, 75, 76, 77, 78
s_b, s_hh, s_h, s_br = 79, 80, 81, 82
s_G = 83
s_tsoff = 88
s_nonce = 94
s_ones = 95
s_swap = 57
s_oob = 78
SRD_G, SRD_OUT = 64, 68
SRD_OUT = 52
s_dbgp = 96
s_outp = 98

def srd(n): return "s[%d:%d]" % (n, n + 3)
def vr(n, c=4): return "v[%d:%d]" % (n, n + c - 1)
def ar(n, c=4): return "a[%d:%d]" % (n, n + c - 1)

def weave(main, fill, lo=0, hi=None):
    if hi is None: hi = len(main)
    out = []
    n = hi - lo
    k = 0
    for i, m in enumerate(main):
        out.append(m)
        if lo <= i < hi:
            tgt = min(len(fill), -(-(len(fill) * (i - lo + 1)) // n))
            while k < tgt:
                out.append(fill[k]); k += 1
    while k < len(fill):
        out.append(fill[k]); k += 1
    return out

def merge(a, b):
    if not a: return list(b)
    if not b: return list(a)
    return weave(a, b) if len(a) >= len(b) else weave(b, a)

class K1:
    def __init__(self, cfg):
        self.cfg = cfg
        self.p = Prog()
        self.nstamp = 0
        self.vTs = 62
        self.npf = 0

    def emit(self, seq):
        for u in seq:
            if isinstance(u, (list, tuple)): self.emit(u)
            elif callable(u): u()
            elif isinstance(u, Ins): self.p.raw(u)
            else: self.p.e(u)

    def dma(self, vaddr, srdn, soff, m0, tag, aux, imm=0):
        u = []
        if m0 is not None:
            if isinstance(m0, int): u.append("s_mov_b32 m0, %d" % m0)
            else: u.append("s_add_u32 m0, s%d, %d" % m0 if m0[1] else "s_mov_b32 m0, s%d" % m0[0])
        if isinstance(soff, int) and self.cfg.aswap and srdn in (SRD_K, SRD_V):
            u.append("s_xor_b32 s%d, s%d, %d" % (sSoff, s_swap, soff)); sreg = sSoff
        elif isinstance(soff, int):
            u.append("s_mov_b32 s%d, %d" % (sSoff, soff)); sreg = sSoff
        elif soff[1] is None:
            sreg = soff[0]
            if m0 is not None: u.append("s_nop 0")
        else:
            u.append("s_add_u32 s%d, s%d, %d" % (sSoff, soff[0], soff[1])); sreg = sSoff
        u.append(Ins("buffer_load_dwordx4 v%d, %s, s%d offen %s%s lds" % (vaddr, srd(srdn), sreg, ("offset:%d " % imm) if imm else "", aux), tag))
        return u

    def stamp(self):
        cfg = self.cfg
        if cfg.dbg:
            i = self.nstamp; self.nstamp += 1
            lab = "L_st%d" % i
            return ["s_cmp_lg_u32 s89, 0", "s_cbranch_scc1 %s" % lab,
                    Ins("s_memrealtime s[86:87]", "nocount"), Ins("s_waitcnt lgkmcnt(0)", "nocredit"),
                    "v_mov_b32 v%d, s86" % self.vTs, "v_mov_b32 v%d, %d" % (self.vTs + 1, 4 * (i + 1)),
                    Ins("global_store_dword v%d, v%d, s[100:101]" % (self.vTs + 1, self.vTs), 'nocount'), lab + ":"]
        if not cfg.stamps: return []
        i = self.nstamp; self.nstamp += 1
        return ["s_memrealtime s[86:87]", "s_memtime s[92:93]", "s_waitcnt lgkmcnt(0)",
                "v_mov_b32 v%d, s86" % self.vTs, "v_mov_b32 v%d, s%d" % (self.vTs + 1, s_tsoff),
                Ins("global_store_dword v%d, v%d, s[84:85] offset:%d" % (self.vTs + 1, self.vTs, 4 * i), 'nocount'),
                "v_mov_b32 v%d, s92" % self.vTs,
                Ins("global_store_dword v%d, v%d, s[84:85] offset:%d" % (self.vTs + 1, self.vTs, 128 + 4 * i), 'nocount')]

    def code_prefetch(self, t0, t2):
        e, p = self.p.e, self.p
        i = self.npf; self.npf += 1
        e("s_cmp_lg_u32 s%d, 0" % s_w); e("s_cbranch_scc1 L_nopf%d" % i)
        e("s_getpc_b64 s[90:91]")
        e("L_pc%d:" % i)
        e("s_sub_u32 s90, s90, L_pc%d-%s" % (i, KNAME)); e("s_subb_u32 s91, s91, 0")
        e("s_lshr_b32 s4, s2, 3"); e("s_lshl_b32 s4, s4, 11")
        e("v_lshlrev_b32 v%d, 7, v0" % t0); e("v_add_u32 v%d, s4, v%d" % (t0, t0))
        e("v_mov_b32 v%d, s91" % (t2 + 1))
        e("v_add_co_u32 v%d, vcc, s90, v%d" % (t2, t0)); e("v_addc_co_u32 v%d, vcc, 0, v%d, vcc" % (t2 + 1, t2 + 1))
        e("v_cmp_gt_u32 vcc, L_k1_end-%s, v%d" % (KNAME, t0))
        e("s_and_b64 exec, vcc, 0xffff")
        e("s_cbranch_execz L_nopfx%d" % i)
        p.raw(Ins("global_load_dword v%d, v[%d:%d], off" % (vNonce, t2, t2 + 1), "nocount"))
        e("L_nopfx%d:" % i)
        e("s_mov_b64 exec, -1")
        e("s_nop 4")
        e("L_nopf%d:" % i)

    def kv_slot(self, n):
        if self.cfg.h5 == 1: return SLOT[n] if n < 2 else SLOT[(0, 2, 1)[(n - 2) % 3]]
        return SLOT[n % 4] if self.cfg.s4 else SLOT[n % 3]
    def kv_block(self, n):
        cfg = self.cfg
        slot = self.kv_slot(n)
        tag = "B%d" % n
        us = [lambda: self.p.group(tag)]
        if n < 8 and cfg.krow:
            for m in range(8):
                tmp = vK1 if m & 1 else vKT
                u = ["v_xor_b32 v%d, %d, v%d" % (tmp, 32 * m, vK0)]
                if m % 4 == 0:
                    u += self.dma(tmp, SRD_K, n * 32768 + m * 1024, (s_kvb, slot + m * 1024), tag, cfg.aux_kv)
                else:
                    u += self.dma(tmp, SRD_K, (sSoff, None), None, tag, cfg.aux_kv, imm=(m % 4) * 1024)
                us.append(u)
        elif n < 8:
            for m in range(4):
                for kh in range(2):
                    us.append(self.dma(vK1 if kh else vK0, SRD_K, n * 32768 + m * 128, (s_kvb, slot + (m * 2 + kh) * 1024), tag, cfg.aux_kv))
        else:
            for m in range(8):
                if m % 4 == 0:
                    us.append(self.dma(vVD[0], SRD_V, (n - 8) * 32768 + m * 4096, (s_kvb, slot + m * 1024), tag, cfg.aux_kv))
                else:
                    us.append(self.dma(vVD[m % 4], SRD_V, (sSoff, None), None, tag, cfg.aux_kv, imm=(m % 4) * 1024))
        return us

    def build(self):
        cfg, p, e = self.cfg, self.p, self.p.e
        if cfg.stamps and cfg.t00: p.raw(Ins("s_memrealtime s[76:77]", "nocount"))
        e("s_cmp_ge_u32 s2, 256")
        e("s_cbranch_scc1 L_k1_end")
        e("s_load_dwordx8 s[36:43], s[0:1], 0")
        e("s_load_dwordx2 s[44:45], s[0:1], 32")
        e("s_load_dwordx8 s[48:55], s[0:1], 40")
        e("s_load_dwordx2 s[56:57], s[0:1], 72")
        e("s_load_dwordx2 s[58:59], s[0:1], 96")
        e("s_load_dwordx4 s[96:99], s[0:1], 80")
        e("v_lshrrev_b32 v60, 6, v0")
        e("v_and_b32 v0, 63, v0")
        e("v_readfirstlane_b32 s%d, v60" % s_w)
        if cfg.code_pf and cfg.pf_first: self.code_prefetch(vT[0], vT[2])
        e("s_and_b32 s4, s2, 7")
        e("s_lshr_b32 s6, s2, 3")
        e("s_lshr_b32 s%d, s6, 4" % s_br)
        e("s_lshr_b32 s%d, s6, 1" % s_b)
        e("s_and_b32 s%d, s%d, 7" % (s_b, s_b))
        e("s_and_b32 s%d, s6, 1" % s_hh)
        e("s_lshl_b32 s%d, s4, 1" % s_h)
        e("s_add_u32 s%d, s%d, s%d" % (s_h, s_h, s_hh))
        e("s_lshl_b32 s6, s%d, 3" % s_b); e("s_add_u32 s6, s6, s4")
        e("s_lshl_b32 s7, s%d, 4" % s_b); e("s_add_u32 s7, s7, s%d" % s_h)
        e("s_cmp_eq_u32 s%d, 0" % s_br)
        e("s_cselect_b32 s6, s6, s7")
        e("s_lshl_b32 s61, s6, 18")
        e("s_lshl_b32 s%d, s%d, 13" % (s_kvb, s_w))
        e("s_mul_i32 s%d, s%d, 12288" % (s_wrb, s_w)); e("s_add_u32 s%d, s%d, %d" % (s_wrb, s_wrb, WB))
        e("s_lshl_b32 s%d, s%d, 10" % (s_w1k, s_w))
        e("s_mov_b32 s%d, 0x3db8aa3b" % s_c)
        e("s_lshl_b32 s%d, s%d, 3" % (s_G, s_br)); e("s_add_u32 s%d, s%d, s%d" % (s_G, s_G, s_b))
        if cfg.rot:
            e("s_mul_i32 s62, s%d, %d" % (s_hh, cfg.rot_hh)); e("s_add_u32 s62, s62, s%d" % s_b)
            e("s_cmp_ge_u32 s62, 7"); e("s_cselect_b32 s6, 7, 0"); e("s_sub_u32 s62, s62, s6")
        else:
            e("s_mov_b32 s62, 0")
        t0, t1, t2, t3, t4 = vT[:5]
        l3, l7, l4, i15 = vT[5:9]
        e("v_lshrrev_b32 v%d, 3, v0" % l3)
        e("v_and_b32 v%d, 7, v0" % l7)
        e("v_lshrrev_b32 v%d, 4, v0" % l4)
        e("v_and_b32 v%d, 15, v0" % i15)
        e("v_and_b32 v%d, 1, v%d" % (t0, l4)); e("v_lshlrev_b32 v%d, 2, v%d" % (t0, t0))
        e("v_xor_b32 v%d, v%d, v%d" % (t0, l7, t0)); e("v_lshlrev_b32 v%d, 4, v%d" % (t0, t0))
        e("s_lshl_b32 s6, s%d, 7" % s_w)
        e("v_add_u32 v%d, s6, v%d" % (t0, t0))
        e("v_lshlrev_b32 v%d, 13, v%d" % (t1, l3)); e("v_add_u32 v%d, v%d, v%d" % (vW, t0, t1))
        e("v_lshlrev_b32 v%d, 9, v%d" % (t1, l3)); e("v_add_u32 v%d, v%d, v%d" % (vV, t0, t1))
        e("s_lshl_b32 s6, s%d, 3" % s_w); e("v_add_u32 v%d, s6, v%d" % (t2, l3)); e("v_mul_u32_u24 v%d, 896, v%d" % (t2, t2))
        e("s_and_b32 s7, s%d, 1" % s_w); e("s_lshl_b32 s7, s7, 2")
        e("v_add_u32 v%d, s7, v%d" % (t3, l4)); e("v_xor_b32 v%d, v%d, v%d" % (t3, l7, t3)); e("v_lshlrev_b32 v%d, 4, v%d" % (t3, t3))
        e("v_add_u32 v%d, v%d, v%d" % (vX, t2, t3))
        e("s_waitcnt lgkmcnt(0)")
        if cfg.stamps:
            e("s_mov_b32 s84, s58"); e("s_mov_b32 s85, s59")
            e("s_lshl_b32 s%d, s2, 2" % s_tsoff); e("s_add_u32 s%d, s%d, s%d" % (s_tsoff, s_tsoff, s_w))
            e("s_lshl_b32 s%d, s%d, 8" % (s_tsoff, s_tsoff)); e("s_add_u32 s%d, s%d, %d" % (s_tsoff, s_tsoff, TS_OFF))
        if cfg.dbg:
            e("s_sub_u32 s89, s2, %d" % cfg.dbg_wg); e("s_or_b32 s89, s89, s%d" % s_w)
            e("s_mov_b32 s100, s98"); e("s_mov_b32 s101, s99")
        if cfg.stamps and cfg.t00:
            i = self.nstamp; self.nstamp += 1
            e("v_mov_b32 v62, s76"); e("v_mov_b32 v63, s%d" % s_tsoff)
            p.raw(Ins("global_store_dword v63, v62, s[84:85] offset:%d" % (4 * i), "nocount"))
        self.emit(self.stamp())
        e("s_cmp_eq_u32 s%d, 0" % s_br)
        for (dst, a, b) in ((SRD_X, 36, 48), (SRD_K, 38, 50), (SRD_V, 40, 52), (SRD_W, 42, 54), (SRD_O, 44, 56)):
            e("s_cselect_b32 s%d, s%d, s%d" % (dst, a, b)); e("s_cselect_b32 s%d, s%d, s%d" % (dst + 1, a + 1, b + 1))
        e("s_mul_i32 s4, s%d, %d" % (s_b, PART))
        e("s_add_u32 s%d, s%d, s4" % (SRD_X, SRD_X)); e("s_addc_u32 s%d, s%d, 0" % (SRD_X + 1, SRD_X + 1))
        e("s_mov_b32 s%d, %d" % (SRD_X + 2, PART)); e("s_mov_b32 s%d, 0x20000" % (SRD_X + 3))
        e("s_lshl_b32 s4, s%d, 9" % s_h)
        e("s_add_u32 s%d, s%d, s4" % (SRD_W, SRD_W)); e("s_addc_u32 s%d, s%d, 0" % (SRD_W + 1, SRD_W + 1))
        e("s_sub_u32 s%d, %d, s4" % (SRD_W + 2, 448 * 8192)); e("s_mov_b32 s%d, 0x20000" % (SRD_W + 3))
        def chunk_offsets(cs):
            for c in cs:
                if c == 0: e("s_mov_b32 s63, s62")
                else:
                    e("s_add_u32 s63, s63, 1"); e("s_cmp_eq_u32 s63, 7"); e("s_cselect_b32 s63, 0, s63")
                e("s_lshl_b32 s%d, s63, 7" % sCX[c]); e("s_lshl_b32 s%d, s63, 19" % sCW[c])
        chunk_offsets([0])
        def xdma(c):
            us = [lambda: p.group("X%d" % c)]
            for i in range(3):
                us.append(self.dma(vX, SRD_X, (sCX[c], i * 32 * 896), (s_w1k, XB + (c % 3) * 12288 + i * 4096), "X%d" % c, cfg.aux_x))
            return us
        def wslot(n):
            if not cfg.h5: return (True, (n % 6) * 2048)
            j = n % 14
            if j < 4: return (False, SLOT[0] + j * 2048)
            if j < 8: return (False, SLOT[1] + (j - 4) * 2048)
            return (True, (j - 8) * 2048)
        def wdma(n):
            us = [lambda: p.group("W%d" % n)]
            ring, off = wslot(n)
            for m in range(2):
                us.append(self.dma(vW, SRD_W, (sCW[n >> 2], ((n & 3) * 16 + 8 * m) * 8192), (s_wrb if ring else s_kvb, off + m * 1024), "W%d" % n, cfg.aux_w))
            return us
        self.emit(xdma(0)); self.emit(wdma(0)); self.emit(wdma(1))
        if cfg.b0_first:
            e("s_add_u32 s%d, s%d, s61" % (SRD_K, SRD_K)); e("s_addc_u32 s%d, s%d, 0" % (SRD_K + 1, SRD_K + 1))
            e("s_mov_b32 s%d, 262144" % (SRD_K + 2)); e("s_mov_b32 s%d, 0x20000" % (SRD_K + 3))
            e("v_lshrrev_b32 v%d, 5, v0" % t0); e("v_and_b32 v%d, 31, v0" % t1); e("v_xor_b32 v%d, v%d, v%d" % (t1, t1, t0))
            e("v_lshlrev_b32 v%d, 4, v%d" % (t1, t1)); e("v_lshlrev_b32 v%d, 9, v%d" % (t0, t0)); e("v_add_u32 v%d, v%d, v%d" % (t0, t0, t1))
            e("v_add_u32 v%d, s%d, v%d" % (vK0, s_kvb, t0))
            self.emit(self.kv_block(0))
        if cfg.code_pf and not cfg.pf_first: self.code_prefetch(t0, t2)
        if cfg.aswap:
            e("s_cmp_eq_u32 s%d, 0" % s_br); e("s_cselect_b32 s%d, s%d, 0" % (s_swap, s_hh)); e("s_lshl_b32 s%d, s%d, 15" % (s_swap, s_swap))
        if cfg.kfirst:
            e("s_add_u32 s%d, s%d, s61" % (SRD_K, SRD_K)); e("s_addc_u32 s%d, s%d, 0" % (SRD_K + 1, SRD_K + 1))
            e("s_mov_b32 s%d, 262144" % (SRD_K + 2)); e("s_mov_b32 s%d, 0x20000" % (SRD_K + 3))
            for x in ("v_lshrrev_b32 v%d, 5, v0" % t0, "v_and_b32 v%d, 31, v0" % t1, "v_xor_b32 v%d, v%d, v%d" % (t1, t1, t0),
                      "v_lshlrev_b32 v%d, 4, v%d" % (t1, t1), "v_lshlrev_b32 v%d, 9, v%d" % (t0, t0), "v_add_u32 v%d, v%d, v%d" % (t0, t0, t1),
                      "v_add_u32 v%d, s%d, v%d" % (vK0, s_kvb, t0)): e(x)
            for b in range(cfg.kfirst): self.emit(self.kv_block(b))
        chunk_offsets(range(1, 7))
        e("v_lshrrev_b32 v%d, 5, v0" % t0); e("v_lshlrev_b32 v%d, 3, v%d" % (t0, t0)); e("v_lshrrev_b32 v%d, 2, v%d" % (t1, i15))
        e("v_add_u32 v%d, v%d, v%d" % (t0, t0, t1)); e("v_lshlrev_b32 v%d, 7, v%d" % (t0, t0))
        e("v_and_b32 v%d, 1, v%d" % (t1, l4)); e("v_lshlrev_b32 v%d, 1, v%d" % (t1, t1))
        e("v_and_b32 v%d, 3, v%d" % (t4, i15)); e("v_lshrrev_b32 v%d, 1, v%d" % (t4, t4)); e("v_add_u32 v%d, v%d, v%d" % (t1, t1, t4))
        e("v_lshrrev_b32 v%d, 3, v%d" % (t4, i15)); e("v_lshlrev_b32 v%d, 2, v%d" % (t4, t4)); e("v_xor_b32 v%d, v%d, v%d" % (t1, t1, t4))
        e("v_lshlrev_b32 v%d, 4, v%d" % (t1, t1)); e("v_add_u32 v%d, v%d, v%d" % (t0, t0, t1))
        e("v_and_b32 v%d, 1, v%d" % (t1, i15)); e("v_lshlrev_b32 v%d, 3, v%d" % (t1, t1)); e("v_add_u32 v%d, v%d, v%d" % (t0, t0, t1))
        e("v_add_u32 v%d, s%d, v%d" % (vVr0, s_kvb, t0)); e("v_xor_b32 v%d, 64, v%d" % (vVr1, vVr0))
        e("v_add_u32 v%d, s%d, v%d" % (vA0, s_wrb, t0)); e("v_xor_b32 v%d, 64, v%d" % (vA1, vA0))
        e("v_and_b32 v%d, 31, v0" % t0); e("v_lshrrev_b32 v%d, 1, v%d" % (t1, t0)); e("v_and_b32 v%d, 7, v%d" % (t1, t1))
        e("v_lshrrev_b32 v%d, 5, v0" % t4); e("v_xor_b32 v%d, v%d, v%d" % (t1, t1, t4)); e("v_lshlrev_b32 v%d, 4, v%d" % (t1, t1))
        e("v_lshlrev_b32 v%d, 7, v%d" % (t0, t0)); e("v_add_u32 v%d, v%d, v%d" % (t0, t0, t1)); e("v_add_u32 v%d, %d, v%d" % (vXr[0], XB, t0))
        for j in range(1, 4): e("v_xor_b32 v%d, %d, v%d" % (vXr[j], 32 * j, vXr[0]))
        D = []
        d = D.append
        if not cfg.kfirst:
            d(["s_add_u32 s%d, s%d, s61" % (SRD_K, SRD_K), "s_addc_u32 s%d, s%d, 0" % (SRD_K + 1, SRD_K + 1)])
            d("s_mov_b32 s%d, 262144" % (SRD_K + 2)); d("s_mov_b32 s%d, 0x20000" % (SRD_K + 3))
        d(["s_add_u32 s%d, s%d, s61" % (SRD_V, SRD_V), "s_addc_u32 s%d, s%d, 0" % (SRD_V + 1, SRD_V + 1)])
        d("s_mov_b32 s%d, 262144" % (SRD_V + 2)); d("s_mov_b32 s%d, 0x20000" % (SRD_V + 3))
        d(["s_mul_i32 s4, s%d, %d" % (s_h, 256 * 896), "s_add_u32 s%d, s%d, s4" % (SRD_O, SRD_O), "s_addc_u32 s%d, s%d, 0" % (SRD_O + 1, SRD_O + 1)])
        d("s_mov_b32 s%d, %d" % (SRD_O + 2, 256 * 896)); d("s_mov_b32 s%d, 0x20000" % (SRD_O + 3))
        d(["s_lshl_b32 s4, s%d, 4" % s_G, "s_add_u32 s4, s4, s%d" % s_h, "s_mul_i32 s4, s4, %d" % PART,
           *(["s_add_u32 s4, s4, %d" % cfg.part_off] if cfg.part_off else []), "s_add_u32 s%d, s58, s4" % SRD_P, "s_addc_u32 s%d, s59, 0" % (SRD_P + 1)])
        d("s_mov_b32 s%d, %d" % (SRD_P + 2, PART)); d("s_mov_b32 s%d, 0x20000" % (SRD_P + 3))
        d("s_mov_b32 s%d, s96" % SRD_OUT); d("s_mov_b32 s%d, s97" % (SRD_OUT + 1))
        d("s_mov_b32 s%d, %d" % (SRD_OUT + 2, 8 * 96 * 1792)); d("s_mov_b32 s%d, 0x20000" % (SRD_OUT + 3))
        d("s_mov_b32 s%d, s98" % s_dbgp); d("s_mov_b32 s%d, s99" % (s_dbgp + 1))
        if cfg.aswap:
            d(["s_cmp_eq_u32 s%d, 0" % s_br, "s_cselect_b32 s%d, s%d, 0" % (s_swap, s_hh), "s_lshl_b32 s%d, s%d, 15" % (s_swap, s_swap)])
        assert cfg.krow
        if not cfg.kfirst:
            for x in ("v_lshrrev_b32 v%d, 5, v0" % t0, "v_and_b32 v%d, 31, v0" % t1, "v_xor_b32 v%d, v%d, v%d" % (t1, t1, t0),
                      "v_lshlrev_b32 v%d, 4, v%d" % (t1, t1), "v_lshlrev_b32 v%d, 9, v%d" % (t0, t0), "v_add_u32 v%d, v%d, v%d" % (t0, t0, t1),
                      "v_add_u32 v%d, s%d, v%d" % (vK0, s_kvb, t0)): d(x)
        for x in ("v_xor_b32 v%d, v%d, v%d" % (t1, l4, i15), "v_lshlrev_b32 v%d, 4, v%d" % (t1, t1), "v_lshlrev_b32 v%d, 9, v%d" % (t0, i15),
                  "v_add_u32 v%d, v%d, v%d" % (t0, t0, t1), "v_add_u32 v%d, %d, v%d" % (vQr[0], R, t0)): d(x)
        for j in range(1, 4): d("v_xor_b32 v%d, %d, v%d" % (vQr[j], 64 * j, vQr[0]))
        d(["s_lshl_b32 s6, s%d, 1" % s_w, "v_lshrrev_b32 v%d, 1, v%d" % (t0, l4), "v_add_u32 v%d, s6, v%d" % (t0, t0)])
        for x in ("v_lshrrev_b32 v%d, 1, v%d" % (t1, i15), "v_xor_b32 v%d, v%d, v%d" % (t0, t0, t1), "v_lshlrev_b32 v%d, 4, v%d" % (t0, t0),
                  "v_lshlrev_b32 v%d, 7, v%d" % (t1, i15), "v_add_u32 v%d, v%d, v%d" % (t0, t0, t1),
                  "v_and_b32 v%d, 1, v%d" % (t1, l4), "v_lshlrev_b32 v%d, 3, v%d" % (t1, t1), "v_add_u32 v%d, v%d, v%d" % (t0, t0, t1),
                  "v_add_u32 v%d, %d, v%d" % (vPw, R, t0)): d(x)
        d(["s_lshl_b32 s6, s%d, 3" % s_w, "v_xor_b32 v%d, s6, v%d" % (t0, i15)])
        for x in ("v_lshlrev_b32 v%d, 4, v%d" % (t0, t0), "v_and_b32 v%d, 31, v0" % t1, "v_lshlrev_b32 v%d, 9, v%d" % (t1, t1), "v_add_u32 v%d, v%d, v%d" % (t0, t0, t1),
                  "v_lshrrev_b32 v%d, 5, v0" % t1, "v_lshlrev_b32 v%d, 3, v%d" % (t1, t1), "v_add_u32 v%d, v%d, v%d" % (t0, t0, t1),
                  "v_add_u32 v%d, %d, v%d" % (vQw, R, t0)): d(x)
        for x in ("v_lshlrev_b32 v%d, 3, v%d" % (t0, l4), "v_lshrrev_b32 v%d, 2, v%d" % (t1, i15), "v_add_u32 v%d, v%d, v%d" % (t0, t0, t1), "v_lshlrev_b32 v%d, 7, v%d" % (t0, t0)): d(x)
        d(["v_and_b32 v%d, 3, v%d" % (t1, i15), "v_lshrrev_b32 v%d, 1, v%d" % (t1, t1), "s_lshl_b32 s6, s%d, 1" % s_w, "v_add_u32 v%d, s6, v%d" % (t1, t1)])
        for x in ("v_lshrrev_b32 v%d, 3, v%d" % (t4, i15), "v_and_b32 v%d, 1, v%d" % (t3, l4), "v_lshlrev_b32 v%d, 1, v%d" % (t3, t3), "v_or_b32 v%d, v%d, v%d" % (t4, t4, t3),
                  "v_lshlrev_b32 v%d, 1, v%d" % (t4, t4), "v_xor_b32 v%d, v%d, v%d" % (t1, t1, t4), "v_lshlrev_b32 v%d, 4, v%d" % (t1, t1), "v_add_u32 v%d, v%d, v%d" % (t0, t0, t1),
                  "v_and_b32 v%d, 1, v%d" % (t1, i15), "v_lshlrev_b32 v%d, 3, v%d" % (t1, t1), "v_add_u32 v%d, v%d, v%d" % (vWor, t0, t1)): d(x)
        for x in ("v_lshlrev_b32 v%d, 4, v%d" % (t0, i15), "v_add_u32 v%d, %d, v%d" % (vStR, ST, t0)): d(x)
        d(["s_lshl_b32 s6, s%d, 2" % s_w, "v_add_u32 v%d, s6, v%d" % (vStW, vStR)])
        d("v_lshlrev_b32 v%d, 4, v0" % vStO)
        def nonce_pub():
            e("s_or_b32 s4, s2, s%d" % s_w); e("s_cmp_lg_u32 s4, 0"); e("s_cbranch_scc1 L_nononce")
            p.raw(Ins("s_memrealtime s[90:91]", "nocount")); p.raw(Ins("s_waitcnt lgkmcnt(0)", "nocredit")); e("s_or_b32 s90, s90, 1")
            e("v_mov_b32 v%d, s90" % t2); e("v_mov_b32 v%d, 0" % t3)
            p.raw(Ins("global_store_dword v%d, v%d, s[%d:%d] sc1" % (t3, t2, s_dbgp, s_dbgp + 1), 'nocount'))
            e("L_nononce:")
        if not cfg.defer:
            self.emit(D); D = []
            if cfg.fuse: nonce_pub()

        def qacc(dt, qt): return vS + (dt * 3 + qt) * 16
        FA = lambda buf, dt: buf * 20 + dt * 4
        FB = lambda buf, qt: buf * 20 + 8 + qt * 4
        def q_reads(n):
            buf = n & 3; xs = ((n >> 2) % 3) * 12288
            ring, sl = wslot(n)
            rd = []
            for dt in range(2):
                va = (vA0 if dt == 0 else vA1) if ring else (vVr0 if dt == 0 else vVr1)
                for jj in range(2):
                    rd.append("ds_read_b64_tr_b16 %s, v%d offset:%d" % (ar(FA(buf, dt) + 2 * jj, 2), va, sl + jj * 512))
            for qt in range(3):
                rd.append("ds_read_b128 %s, v%d offset:%d" % (ar(FB(buf, qt)), vXr[n & 3], xs + qt * 4096))
            return [rd[0], rd[1], rd[4], rd[2], rd[3], rd[5], rd[6]]
        def q_mfmas(n):
            buf = n & 3
            return ["v_mfma_f32_32x32x16_bf16 %s, %s, %s, %s" % (vr(qacc(dt, qt), 16), ar(FA(buf, dt)), ar(FB(buf, qt)), "0" if n == 0 else vr(qacc(dt, qt), 16))
                    for qt in range(3) for dt in range(2)]
        def KFr(i, s): return ar(192 + (i & 1) * 32 + s * 4)
        vKa = [vT[8], vT[9], vT[10], vT[11]]
        def k_addr(i):
            if not cfg.krow: return []
            d = self.kv_slot(i) - R
            return ["s_add_u32 s4, s%d, %d" % (s_kvb, d & 0xffffffff)] + ["v_add_u32 v%d, s4, v%d" % (vKa[j], vQr[j]) for j in range(4)]
        def k_read(i, s):
            if cfg.krow:
                return "ds_read_b128 %s, v%d offset:%d" % (KFr(i, s), vKa[s & 3], (s >> 2) * 256)
            slot = self.kv_slot(i)
            base = (vKr1 if s & 1 else vKr0)
            off = slot + (s >> 1) * 2048
            if off >= 65536:
                base = (vT[11] if s & 1 else vT[10]); off -= 65536
            return "ds_read_b128 %s, v%d offset:%d" % (KFr(i, s), base, off)
        self.emit(wdma(2)); self.emit(wdma(3)); self.emit(xdma(1))
        if not cfg.h5 or cfg.wpro == 6: self.emit(wdma(4)); self.emit(wdma(5))
        p.wait_vm("X0"); p.wait_vm("W1")
        e("s_barrier")
        self.emit(self.stamp())
        self.emit(q_reads(0)); self.emit(q_reads(1))
        wsched = {}
        kread = {}
        if cfg.h5:
            wsched = dict(cfg.wsched)
            for st_, ks in wsched.items():
                for k_ in ks: assert k_ - 14 <= st_ and k_ - 2 > st_
            kb0, kb1 = self.kv_block(0), self.kv_block(1)
            g = [[kb0[0], kb0[1]]] + kb0[2:9] + [[kb1[0], kb1[1]]] + kb1[2:9]
            kplan = {}
            for st_, (lo, hi) in cfg.h5_plan.items(): kplan[st_] = g[lo:hi]
            done = max(hi for (lo, hi) in cfg.h5_plan.values())
            self.k_rest = g[done:]
            assert min(st_ for st_, (lo, hi) in cfg.h5_plan.items() if lo < 8) >= 17 and min([99] + [st_ for st_, (lo, hi) in cfg.h5_plan.items() if hi > 8]) >= 21
        elif cfg.kfirst == 2:
            kplan = {}; self.k_rest = []
        elif cfg.kfirst == 1:
            kb1 = self.kv_block(1)
            kplan = {22: kb1[0:5], 23: kb1[5:8], 26: kb1[8:9]}; self.k_rest = []
        else:
            kb0 = self.kv_block(0); kb1 = self.kv_block(1)
            if cfg.kpace:
                kplan = {22: kb0[0:5], 23: kb0[5:8], 26: kb0[8:9] + kb1[0:4], 27: kb1[4:7]}
                self.k_rest = kb1[7:9]
            else:
                kb01 = kb0 + kb1
                kplan = dict((cfg.kstart + j, kb01[(len(kb01) * j) // 6:(len(kb01) * (j + 1)) // 6]) for j in range(6))
                self.k_rest = []
        for n in range(28):
            pre = []
            rd = []
            if n + 2 < 28:
                p.wait_vm("W%d" % (n + 2))
                if (n + 2) % 4 == 0:
                    p.wait_vm("X%d" % ((n + 2) >> 2))
                    if not cfg.xlate: e("s_waitcnt lgkmcnt(0)")
                    e("s_barrier")
                rd = q_reads(n + 2)
            if n in kread:
                b_ = kread[n]
                rd = rd + [k_addr(b_), (lambda b_=b_: p.wait_vm("B%d" % b_))] + [k_read(b_, s) for s in range(8)]
            dm = []
            if cfg.h5:
                for k_ in wsched.get(n, []): dm += wdma(k_)
            elif n + 6 < 28 and not cfg.exp_nowx: dm += wdma(n + 6)
            if cfg.xlate:
                if (n + 2) % 4 == 0 and 2 <= ((n + 2) >> 2) + 1 <= 6: dm += xdma(((n + 2) >> 2) + 1)
            else:
                if n == 1 and not cfg.exp_nowx: dm += xdma(2)
                if (n + 2) % 4 == 0 and ((n + 2) >> 2) + 2 <= 6 and not cfg.exp_nowx: dm += xdma(((n + 2) >> 2) + 2)
            dm += kplan.get(n, [])
            if n in cfg.trickle:
                j_ = list(cfg.trickle).index(n)
                u_ = []
                if j_ == 0:
                    u_ += ["v_and_b32 v%d, 15, v0" % vNonce, "v_lshlrev_b32 v%d, 7, v%d" % (vNonce, vNonce), "v_add_u32 v%d, s%d, v%d" % (vT[16], s_kvb, vNonce)]
                u_ += ["s_mov_b32 s4, %d" % ((j_ // 4) * 32768 + (j_ % 4) * 2048),
                       Ins("buffer_load_dword v%d, v%d, %s, s4 offen %s" % (160 + j_, vT[16], srd(SRD_K), cfg.trickle_aux), "TR")]
                dm.append(u_)
            mf = q_mfmas(n)
            if cfg.defer and n < 16:
                dm = merge(dm, D[(len(D) * n) // 16:(len(D) * (n + 1)) // 16]) if dm else D[(len(D) * n) // 16:(len(D) * (n + 1)) // 16]
            if cfg.defer and n == 17 and cfg.fuse: dm = dm + [nonce_pub]
            seq = []
            nr = len(rd)
            rpos = [min(3, (4 * k) // max(nr, 1)) for k in range(nr)]
            dpos = [2 + (4 * k) // max(len(dm), 1) for k in range(len(dm))]
            for i, m in enumerate(mf):
                seq.append(m)
                seq += [rd[k] for k in range(nr) if rpos[k] == i]
                seq += [dm[k] for k in range(len(dm)) if min(dpos[k], 5) == i]
            self.emit(seq)
        if cfg.code_pf >= 2: self.code_prefetch(vT[0], vT[2])
        self.emit(self.stamp())
        e("s_waitcnt lgkmcnt(0)")
        e("s_barrier")
        blk4 = self.kv_block(2)
        def exch_write(src_of):
            seq = []
            for dt in range(2):
                for rg in range(4):
                    va = vT[12 + ((dt * 4 + rg) & 1)]
                    seq.append("v_xor_b32 v%d, %d, v%d" % (va, (4 * dt + rg) * 16, vQw))
                    for qt in range(3):
                        b = src_of(dt, qt) + rg * 4
                        ta = vT[14 + 2 * qt]
                        seq.append(["v_cvt_pk_bf16_f32 v%d, v%d, v%d" % (ta, b, b + 1), "v_cvt_pk_bf16_f32 v%d, v%d, v%d" % (ta + 1, b + 2, b + 3),
                                    "ds_write_b64 v%d, %s offset:%d" % (va, vr(ta, 2), qt * 16384)])
            return seq
        if cfg.kd3:
            self.emit(k_addr(0))
            pre0 = [lambda: p.wait_vm("B0")] + [k_read(0, s) for s in range(8)]
            self.emit(weave(exch_write(qacc), blk4 + pre0))
        elif cfg.h5 == 1:
            self.emit(k_addr(0))
            pre0 = self.k_rest + [lambda: p.wait_vm("B0")] + [k_read(0, s) for s in range(8)]
            self.emit(weave(exch_write(qacc), pre0, 0, 20))
        else:
            self.emit(weave(exch_write(qacc), self.k_rest + ([] if cfg.b2s0 else blk4), 8 if cfg.kpace else 0))
        if not cfg.krow:
            e("v_add_u32 v%d, 0x10000, v%d" % (vT[10], vKr0)); e("v_add_u32 v%d, 0x10000, v%d" % (vT[11], vKr1))
        e("s_waitcnt lgkmcnt(0)")
        e("s_barrier")
        self.emit(self.stamp())
        QF = lambda t, s: (s * 6 + t) * 4
        def q_read(t, s):
            return "ds_read_b128 %s, v%d offset:%d" % (ar(QF(t, s)), vQr[s & 3], t * 8192 + (s >> 2) * 256)
        def qk_mfma(i, t, s):
            c = "0" if s == 0 else vr(S(i, t))
            return "v_mfma_f32_16x16x32_bf16 %s, %s, %s, %s" % (vr(S(i, t)), KFr(i, s), ar(QF(t, s)), c)
        def max_ops(i):
            r = []
            for t in range(6):
                b = S(i, t)
                if cfg.prescale:
                    for k in range(4): r.append("v_mul_f32 v%d, s%d, v%d" % (b + k, s_c, b + k))
                if i == 0:
                    r.append("v_max3_f32 v%d, v%d, v%d, v%d" % (vM[t], b, b + 1, b + 2))
                    r.append("v_max_f32 v%d, v%d, v%d" % (vM[t], vM[t], b + 3))
                else:
                    r.append("v_max3_f32 v%d, v%d, v%d, v%d" % (vM[t], vM[t], b, b + 1))
                    r.append("v_max3_f32 v%d, v%d, v%d, v%d" % (vM[t], vM[t], b + 2, b + 3))
            return r
        for j in range(1, 4): e("v_add_u32 v%d, %d, v%d" % (vVD[j], j * 3072, vV))
        for i in range(8):
            if cfg.h5 == 1:
                mx = max_ops(i - 1) if i >= 1 else []
                if i == 0:
                    dm = self.kv_block(2) + self.kv_block(3)
                    self.emit([q_read(t, 0) for t in range(6)])
                    seq = []
                    for s in range(8):
                        nxq = [q_read(t, s + 1) for t in range(6)] if s < 7 else []
                        seq += weave([qk_mfma(0, t, s) for t in range(6)], nxq)
                    self.emit(weave(seq, dm[:9]))
                    self.k_b4 = dm[9:]
                else:
                    self.emit(k_addr(i))
                    p.wait_vm("B%d" % i)
                    self.emit([k_read(i, s) for s in range(8)])
                    mf = [qk_mfma(i, t, s) for s in range(8) for t in range(6)]
                    self.emit(mf[:6])
                    e("s_waitcnt lgkmcnt(0)")
                    dm = self.kv_block(i + 3)
                    if i == 1: dm = self.k_b4 + dm
                    self.emit(weave(mf[6:], merge(dm, mx), 0, 41))
                if cfg.fine and i < 7: self.emit(self.stamp())
                continue
            if cfg.kd3 and i == 0:
                dm = self.kv_block(3)
                self.emit([q_read(t, 0) for t in range(6)])
                seq = []
                for s in range(8):
                    nxq = [q_read(t, s + 1) for t in range(6)] if s < 7 else []
                    seq += weave([qk_mfma(0, t, s) for t in range(6)], nxq)
                self.emit(weave(seq, dm, 6, len(seq)))
                if cfg.fine: self.emit(self.stamp())
                continue
            if cfg.s4 and i == 1:
                e("s_waitcnt lgkmcnt(0)")
                e("s_barrier")
            self.emit(k_addr(i))
            p.wait_vm("B%d" % i)
            rd = [k_read(i, s) for s in range(8)]
            mx = max_ops(i - 1) if i >= 1 else []
            if cfg.kd3:
                dm = self.kv_block(i + 3)
                mf = [qk_mfma(i, t, s) for s in range(8) for t in range(6)]
                self.emit(rd)
                self.emit(mf[:6])
                e("s_waitcnt lgkmcnt(0)")
                self.emit(weave(mf[6:], merge(dm, mx), 0, 41))
            else:
                if cfg.s4:
                    dm = (self.kv_block(3) + self.kv_block(4)) if i == 1 else (self.kv_block(i + 3) if i >= 2 else [])
                else:
                    dm = self.kv_block(i + 2) if i >= 1 else []
                if i == 0:
                    self.emit([rd[0]] + [q_read(t, 0) for t in range(6)])
                    seq = []
                    for s in range(8):
                        nxq = ([rd[s + 1]] + [q_read(t, s + 1) for t in range(6)]) if s < 7 else []
                        seq += weave([qk_mfma(0, t, s) for t in range(6)], nxq)
                    self.emit(weave(seq, blk4) if cfg.b2s0 else seq)
                else:
                    mf = [qk_mfma(i, t, s) for s in range(8) for t in range(6)]
                    self.emit(rd)
                    if cfg.tlb2 and i == 2:
                        dm = dm + [[Ins("buffer_load_dword v%d, v%d, %s, 0 offen nt" % (248, vStO, srd(SRD_V)), "TW")]]
                    self.emit(weave(mf, merge(dm, mx), 2, 47))
            if cfg.fine and i < 7: self.emit(self.stamp())
        if cfg.code_pf >= 2: self.code_prefetch(vT[0], vT[2])
        self.emit(self.stamp())
        e("v_add_u32 v%d, 0x10000, v%d" % (vA0, vVr0)); e("v_add_u32 v%d, 0x10000, v%d" % (vA1, vVr1))
        vB0, vB1 = vKr0, vKr1
        e("v_add_u32 v%d, %d, v%d" % (vB0, SLOT[3], vVr0)); e("v_add_u32 v%d, %d, v%d" % (vB1, SLOT[3], vVr1))
        self.emit(max_ops(7))
        seq = []
        for t in range(6):
            a = vT[0 + (t & 1)]
            seq += ["v_mov_b32 v%d, v%d" % (a, vM[t]), "v_permlane32_swap_b32 v%d, v%d" % (a, vM[t]), "v_max_f32 v%d, v%d, v%d" % (vM[t], vM[t], a),
                    "v_mov_b32 v%d, v%d" % (a, vM[t]), "v_permlane16_swap_b32 v%d, v%d" % (a, vM[t]), "v_max_f32 v%d, v%d, v%d" % (vM[t], vM[t], a),
                    "ds_write_b32 v%d, v%d offset:%d" % (vStW, vM[t], t * 256)]
        chains = [seq[7 * t:7 * t + 7] for t in range(6)]
        chains = []
        for t in range(6):
            a = vT[t]
            chains.append(["v_mov_b32 v%d, v%d" % (a, vM[t]), "v_permlane32_swap_b32 v%d, v%d" % (a, vM[t]), "v_max_f32 v%d, v%d, v%d" % (vM[t], vM[t], a),
                           "v_mov_b32 v%d, v%d" % (a, vM[t]), "v_permlane16_swap_b32 v%d, v%d" % (a, vM[t]), "v_max_f32 v%d, v%d, v%d" % (vM[t], vM[t], a),
                           "ds_write_b32 v%d, v%d offset:%d" % (vStW, vM[t], t * 256)])
        for k in range(7):
            for t in range(6): e(chains[t][k])
        e("s_waitcnt lgkmcnt(0)")
        e("s_barrier")
        for t in range(5): e("ds_read_b128 %s, v%d offset:%d" % (vr(44 + 4 * t, 4), vStR, t * 256))
        for t in range(6):
            b = 44 + 4 * (t % 5)
            if t == 5: e("ds_read_b128 %s, v%d offset:%d" % (vr(b, 4), vStR, t * 256))
            e("v_max3_f32 v%d, v%d, v%d, v%d" % (vM[t], b, b + 1, b + 2)); e("v_max_f32 v%d, v%d, v%d" % (vM[t], vM[t], b + 3))
        if not cfg.prescale:
            for t in range(6): e("v_mul_f32 v%d, s%d, v%d" % (vM[t], s_c, vM[t]))
        for j in range(4): e("v_add_u32 v%d, %d, v%d" % (vXr[j], (R - XB) & 0xffffffff, vXr[j]))
        e("s_mov_b32 s%d, 0x3f803f80" % s_ones)
        for t in range(6): e("v_mov_b32 v%d, 0" % vL[t])
        def exp_ops(i):
            us = []
            for t in range(6):
                b = S(i, t)
                tm = [vT[0], vT[1], vT[2], vT[3]] if t % 2 == 0 else [vT[4], vT[5], vT[6], vT[7]]
                pk = vT[8 + 2 * (t % 2)] if False else (vT[12] + 2 * (t % 2))
                for k in range(4):
                    if cfg.prescale: us.append("v_sub_f32 v%d, v%d, v%d" % (tm[k], b + k, vM[t]))
                    else: us.append("v_fma_f32 v%d, v%d, s%d, -v%d" % (tm[k], b + k, s_c, vM[t]))
                for k in range(4): us.append("v_exp_f32 v%d, v%d" % (tm[k], tm[k]))
                if cfg.sumadd:
                    us.append("v_add_f32 v%d, v%d, v%d" % (vL[t], vL[t], tm[0]))
                    us.append("v_cvt_pk_bf16_f32 v%d, v%d, v%d" % (pk, tm[0], tm[1]))
                    us.append("v_add_f32 v%d, v%d, v%d" % (vL[t], vL[t], tm[1]))
                    us.append("v_cvt_pk_bf16_f32 v%d, v%d, v%d" % (pk + 1, tm[2], tm[3]))
                    us.append("v_add_f32 v%d, v%d, v%d" % (vL[t], vL[t], tm[2]))
                    us.append("v_add_f32 v%d, v%d, v%d" % (vL[t], vL[t], tm[3]))
                else:
                    us.append("v_cvt_pk_bf16_f32 v%d, v%d, v%d" % (pk, tm[0], tm[1]))
                    us.append("v_cvt_pk_bf16_f32 v%d, v%d, v%d" % (pk + 1, tm[2], tm[3]))
                    us.append("v_dot2c_f32_bf16 v%d, s%d, v%d" % (vL[t], s_ones, pk))
                    us.append("v_dot2c_f32_bf16 v%d, s%d, v%d" % (vL[t], s_ones, pk + 1))
                us.append("ds_write_b64 v%d, %s offset:%d" % (vPw, vr(pk, 2), (i & 1) * 12288 + t * 2048))
            return us
        self.emit(weave(exp_ops(0), self.kv_block(11 if cfg.s4 else 10)) if not (cfg.kd3 or cfg.h5 == 1) else exp_ops(0))
        self.emit(self.stamp())
        OAa = lambda dt, qt: (dt * 3 + qt) * 16
        OAv = lambda dt, qt: vS + (dt * 3 + qt) * 16
        VF = lambda buf, dt: 96 + buf * 20 + dt * 4
        PF = lambda buf, qt: 96 + buf * 20 + 8 + qt * 4
        def v_reads(i, u, buf):
            slot = self.kv_slot(8 + i)
            rd = []
            for dt in range(2):
                for jj in range(2):
                    off = slot + (16 * u + 4 * jj) * 128
                    base = vVr1 if dt else vVr0
                    if slot == SLOT[3]:
                        base = vB1 if dt else vB0; off -= SLOT[3]
                    elif off >= 65536:
                        base = vA1 if dt else vA0; off -= 65536
                    rd.append("ds_read_b64_tr_b16 %s, v%d offset:%d" % (ar(VF(buf, dt) + 2 * jj, 2), base, off))
            for qt in range(3):
                rd.append("ds_read_b128 %s, v%d offset:%d" % (ar(PF(buf, qt)), vXr[u], (i & 1) * 12288 + qt * 4096))
            return [rd[0], rd[1], rd[4], rd[2], rd[3], rd[5], rd[6]]
        def pv_mfmas(i, u, buf):
            out = []
            for qt in range(3):
                for dt in range(2):
                    d = ar(OAa(dt, qt), 16) if i < 4 else vr(OAv(dt, qt), 16)
                    c = "0" if (i == 0 and u == 0) else d
                    out.append("v_mfma_f32_32x32x16_bf16 %s, %s, %s, %s" % (d, ar(VF(buf, dt)), ar(PF(buf, qt)), c))
            return out
        wo_slot = (lambda k: SLOT[(0, 2, 1)[(11 + k) % 3]]) if cfg.h5 == 1 else ((lambda k: SLOT[k % 3]) if cfg.s4 else (lambda k: SLOT[(16 + k) % 3]))
        def wo_block(k):
            slot = wo_slot(k)
            tag = "WO%d" % k
            us = [lambda: p.group(tag)]
            for i in range(8):
                m0 = (s_kvb, slot + i * 1024) if i % 4 == 0 else None
                us.append(self.dma(vWoD[i], SRD_O, (sWO[k], None), m0, tag, cfg.aux_wo, imm=(i & 3) * 1024))
            return us
        if cfg.rot:
            e("s_cmp_eq_u32 s%d, 7" % s_b); e("s_cselect_b32 s%d, 0, s%d" % (s_ng, s_b))
        else:
            e("s_mov_b32 s%d, 0" % s_ng)
        e("s_mov_b32 s4, s%d" % s_ng)
        for k in range(7):
            if k: e("s_add_u32 s4, s4, 1"); e("s_cmp_eq_u32 s4, 7"); e("s_cselect_b32 s4, 0, s4")
            e("s_lshl_b32 s%d, s4, 7" % sWO[k])
            e("s_lshl_b32 s6, s4, 2"); e("s_add_u32 s6, s6, s%d" % s_w); e("s_mul_i32 s%d, s6, 3072" % sST[k])
        def split_reads(i, u, buf):
            r = v_reads(i, u, buf)
            return [r[2], r[5], r[6]], [r[0], r[1], r[3], r[4]]
        e("s_waitcnt lgkmcnt(0)")
        e("s_barrier")
        p.wait_vm("B8")
        self.emit(v_reads(0, 0, 0))
        for i in range(8):
            fill = exp_ops(i + 1) if i + 1 < 8 else []
            dm = []
            late = []
            if cfg.s4:
                if 1 <= i <= 4: dm = self.kv_block(8 + i + 3)
            elif 1 <= i <= 5: dm = self.kv_block(8 + i + 2)
            if i == 2 and cfg.tlb2:
                dm = dm + [[Ins("buffer_load_dword v%d, v%d, %s, 0 offen" % (64 + k_, vStO, srd(sr_)), "TW")] for k_, sr_ in enumerate((SRD_O, SRD_P, SRD_OUT))]
            if i == 1 and cfg.fuse:
                dm = [["v_mov_b32 v%d, 0" % vT[19], lambda: p.group("NC"),
                       Ins("global_load_dword v%d, v%d, s[%d:%d] sc1" % (vNonce, vT[19], s_dbgp, s_dbgp + 1), "NC")]] + dm
            if i == (3 if cfg.s4 else 4):
                a0, a1, a2 = 168, 169, 170
                late += ["v_lshrrev_b32 v%d, 3, v0" % a0, "s_lshl_b32 s6, s%d, 6" % s_w, "v_add_u32 v%d, s6, v%d" % (a0, a0), "v_mul_u32_u24 v%d, 896, v%d" % (a0, a0)]
                late += ["v_lshrrev_b32 v%d, 4, v0" % a1, "v_and_b32 v%d, 1, v%d" % (a1, a1), "v_lshlrev_b32 v%d, 1, v%d" % (a1, a1), "v_and_b32 v%d, 7, v0" % a2, "v_xor_b32 v%d, v%d, v%d" % (a1, a1, a2),
                         "v_lshlrev_b32 v%d, 4, v%d" % (a1, a1)]
                late += ["v_add_u32 v%d, v%d, v%d" % (a2, a0, a1), "v_xor_b32 v%d, 64, v%d" % (a1, a1), "v_add_u32 v%d, v%d, v%d" % (a1, a0, a1)]
                for k in range(8):
                    late.append("v_add_u32 v%d, %d, v%d" % (vWoD[k], k * 7168 - (k & 3) * 1024, a1 if k & 1 else a2))
            if cfg.s4 and i == 5: dm = wo_block(0)
            if i == 6:
                dm = wo_block(1 if cfg.s4 else 0)
                ch = []
                for t in range(6):
                    a = vT[t]
                    ch.append(["v_mov_b32 v%d, v%d" % (a, vL[t]), "v_permlane32_swap_b32 v%d, v%d" % (a, vL[t]), "v_add_f32 v%d, v%d, v%d" % (vL[t], vL[t], a),
                               "v_mov_b32 v%d, v%d" % (a, vL[t]), "v_permlane16_swap_b32 v%d, v%d" % (a, vL[t]), "v_add_f32 v%d, v%d, v%d" % (vL[t], vL[t], a),
                               "ds_write_b32 v%d, v%d offset:%d" % (vStW, vL[t], 2048 + t * 256)])
                self.red_chain = [ch[t][k] for k in range(7) for t in range(6)]
                if cfg.red_early: self.pre_wait = self.red_chain
            if i == 7:
                dm = wo_block(2 if cfg.s4 else 1) if not cfg.wo1_late else []
                fill = self.red_chain if not cfg.red_early else []
                fin = late if not cfg.red_early else []
                self.fin_stats = fin
                for t in range(6):
                    b = 44 + 4 * (t % 3)
                    fin += ["ds_read_b128 %s, v%d offset:%d" % (vr(b, 4), vStR, 2048 + t * 256),
                             ["v_add_f32 v%d, v%d, v%d" % (b, b, b + 1), "v_add_f32 v%d, v%d, v%d" % (b + 2, b + 2, b + 3),
                              "v_add_f32 v%d, v%d, v%d" % (b, b, b + 2), "v_rcp_f32 v%d, v%d" % (vM[t], b)]]
            if 'nodma' in cfg.exp_v: dm = [x for x in dm if callable(x)]
            if 'noexp' in cfg.exp_v: fill = [x for x in fill if 'v_exp' not in str(x)]
            if 'nodot' in cfg.exp_v: fill = [x for x in fill if 'v_dot2c' not in str(x)]
            if 'nofill' in cfg.exp_v: fill = [x for x in fill if 'ds_write' in str(x)]
            mf = []
            if i == 4 and not cfg.mv_weave:
                mv = ["v_accvgpr_read_b32 v%d, a%d" % (vS + r, r) for r in range(96)]
                self.emit(weave(mv, dm[:5], 0, 96)); dm = dm[5:]
            for u in range(3):
                m = pv_mfmas(i, u, u & 1)
                if i == 4 and u == 0 and cfg.mv_weave:
                    rd = v_reads(i, 1, 1)
                    k = 0
                    seq = []
                    for qt in range(3):
                        for dt in range(2):
                            seq.append(["v_accvgpr_read_b32 v%d, a%d" % (OAv(dt, qt) + r, OAa(dt, qt) + r) for r in range(16)])
                            seq.append(m[k])
                            seq += rd[k:k + 1] + (rd[6:7] if k == 5 else [])
                            k += 1
                    self.emit(weave(seq, dm[:4], 0, len(seq))); dm = dm[4:]
                    continue
                mf += weave(m, v_reads(i, u + 1, (u + 1) & 1), 0, 4)
            m3 = pv_mfmas(i, 3, 1)
            kb = cfg.vbar if i < 7 else 0
            mf += m3[:kb]
            self.emit(weave(mf, merge(fill, dm), 0, len(mf) - 1))
            e("s_waitcnt lgkmcnt(0)")
            if 'nobar' not in cfg.exp_v: e("s_barrier")
            r3 = m3[kb:]
            if i < 7:
                pr, vrd = split_reads(i + 1, 0, 0)
                pw = self.red_chain if (cfg.red_early and i == 6) else []
                wv = (lambda j=i + 1: p.wait_vm("B%d" % (8 + j)))
                if len(r3) >= 3:
                    seq = [r3[0]] + pr + [r3[1]] + pw + [wv] + vrd + weave(r3[2:], late)
                else:
                    seq = pr + pw + [wv] + vrd + weave(r3, late)
            else:
                seq = weave(r3, late)
            self.emit(seq)
            if cfg.fine and i < 7: self.emit(self.stamp())
        self.emit(self.stamp())
        ex_fill = (wo_block(1) if cfg.wo1_late == 1 else [])
        if cfg.red_early: ex_fill = merge(ex_fill, self.fin_stats)
        self.emit(weave(exch_write(OAv), ex_fill))
        if cfg.fuse: self.get_nonce()
        p.wait_vm("WO0")
        e("s_waitcnt lgkmcnt(0)")
        e("s_barrier")
        self.emit(self.stamp())
        OF = QF
        WF = lambda b, s: 192 + 32 * b + s * 4
        ACC = lambda t: vS + t * 4
        def wo_reads(k):
            slot = wo_slot(k)
            base = vWor
            if slot >= 65536: base = vA0
            off0 = slot if slot < 65536 else slot - 65536
            return ["ds_read_b64_tr_b16 %s, v%d offset:%d" % (ar(WF(k & 1, s) + 2 * jj, 2), base, off0 + (32 * s + 4 * jj) * 128) for s in range(8) for jj in range(2)]
        def epi(t):
            b = ACC(t)
            pk = vT[8] + 4 * ((t >> 1) & 1) + 2 * (t & 1)
            u = ["v_mul_f32 v%d, v%d, v%d" % (b + k, vM[t], b + k) for k in range(4)]
            u += ["v_cvt_pk_bf16_f32 v%d, v%d, v%d" % (pk, b, b + 1), "v_cvt_pk_bf16_f32 v%d, v%d, v%d" % (pk + 1, b + 2, b + 3)]
            return u
        def st(pair, k):
            pk = vT[8] + 4 * (pair & 1)
            if cfg.exp_nostore: return []
            return [[lambda: p.group("ST%d_%d" % (k, pair)),
                     Ins("buffer_store_dwordx4 %s, v%d, %s, s%d offen offset:%d %s" % (vr(pk, 4), vStO, srd(SRD_P), sST[k], pair * 1024, cfg.aux_st), "ST%d_%d" % (k, pair))]]
        def tile(k, t):
            return ["v_mfma_f32_16x16x32_bf16 %s, %s, %s, %s" % (vr(ACC(t)), ar(WF(k & 1, s)), ar(OF(t, s)), "0" if s == 0 else vr(ACC(t))) for s in range(8)]
        e("v_add_u32 v%d, 0x10000, v%d" % (vA0, vWor))
        r0 = wo_reads(0)
        self.emit([x for s in range(8) for x in (r0[2 * s:2 * s + 2] + [q_read(0, s)])])
        if cfg.wo1_late == 2: self.emit(wo_block(1))
        elif not cfg.s4: self.emit(wo_block(2))
        for k in range(7):
            f = [[] for _ in range(6)]
            if k == 0:
                for t in range(5): f[t] += [q_read(t + 1, s) for s in range(8)]
                if cfg.wo1_late == 2:
                    w2 = wo_block(2)
                    f[0] = merge(f[0], w2[:5]); f[1] = merge(f[1], w2[5:])
            else:
                f[0] += epi(4); f[1] += epi(5) + st(2, k - 1)
            f[2] += epi(0); f[3] += epi(1) + st(0, k); f[4] += epi(2); f[5] += epi(3) + st(1, k)
            nx = wo_reads(k + 1) if k < 6 else []
            dm = wo_block(k + 3) if (k + 3 <= 6 and not cfg.exp_nowodma) else []
            for t in range(6):
                if t == 2 and k < 6:
                    if k == 5 and cfg.fuse:
                        e("s_waitcnt vmcnt(0)")
                        e("s_barrier")
                        self.emit(self.flag_store(0))
                    else:
                        p.wait_vm("WO%d" % (k + 1))
                        if not cfg.exp_nobar: e("s_barrier")
                ex = []
                if t >= 2:
                    ex = nx[4 * (t - 2):4 * (t - 1)]
                    dd = dm[0:1] + dm[1:3] if t == 2 else dm[1 + 2 * (t - 2):3 + 2 * (t - 2)]
                    ex = merge(ex, dd)
                if cfg.fuse and cfg.epoll and k == 6 and t == 2:
                    ex = ex + [["s_mov_b32 s%d, 0x40000000" % s_oob], self.early_poll_issue(0, 46, 0)]
                self.emit(weave(tile(k, t), merge(f[t], ex), 0, 8))
        self.emit(epi(4)); self.emit(epi(5)); self.emit(st(2, 6))
        self.emit(self.stamp())
        if cfg.fuse:
            self.reduce_tail()
        elif cfg.stamps or cfg.dbg:
            e("s_waitcnt vmcnt(0)")
            self.emit(self.stamp())
        e("L_k1_end:")
        e("s_endpgm")
        p.resolve()
        return p.text()

    def get_nonce(self):
        cfg, p, e = self.cfg, self.p, self.p.e
        e("v_readfirstlane_b32 s%d, v%d" % (s_nonce, vNonce))
        e("s_cmp_lg_u32 s%d, 0" % s_nonce); e("s_cbranch_scc1 L_havenonce")
        e("s_mov_b32 s63, 0x100000")
        e("L_pollnonce:")
        e("s_sub_u32 s63, s63, 1"); e("s_cbranch_scc1 L_havenonce")
        e("v_mov_b32 v44, 0")
        p.raw(Ins("global_load_dword v%d, v44, s[%d:%d] sc1" % (vNonce, s_dbgp, s_dbgp + 1), "nocount"))
        p.raw(Ins("s_waitcnt vmcnt(0)", "nocredit"))
        e("v_readfirstlane_b32 s%d, v%d" % (s_nonce, vNonce))
        e("s_cmp_eq_u32 s%d, 0" % s_nonce); e("s_cbranch_scc1 L_pollnonce")
        e("L_havenonce:")
        e("s_lshl_b32 s4, s%d, 8" % s_G); e("s_add_u32 s4, s4, %d" % FLAG_OFF)
        e("s_add_u32 s68, s58, s4"); e("s_addc_u32 s69, s59, 0")

    def flag_store(self, which):
        lab = "L_nofl%d" % which
        return ["s_cmp_lg_u32 s%d, 0" % s_w, "s_cbranch_scc1 %s" % lab,
                "v_mov_b32 v42, s%d" % s_nonce, "s_lshl_b32 s4, s%d, 2" % s_h, "s_add_u32 s4, s4, %d" % (128 * which), "v_mov_b32 v43, s4",
                "s_mov_b64 exec, 1",
                Ins("global_store_dword v43, v42, s[68:69] sc1", "nocount"),
                "s_mov_b64 exec, -1", "s_nop 4", lab + ":"]

    def poll(self, which):
        e, p = self.p.e, self.p
        e("s_mov_b64 exec, 0xffff")
        e("v_lshlrev_b32 v45, 2, v0")
        e("s_mov_b32 s60, 0x100000")
        e("L_poll%d:" % which)
        p.raw(Ins("global_load_dword v46, v45, s[68:69] offset:%d sc1" % (128 * which), "nocount"))
        p.raw(Ins("s_waitcnt vmcnt(0)", "nocredit"))
        e("v_cmp_ne_u32 vcc, s%d, v46" % s_nonce)
        e("s_nop 4")
        e("s_cbranch_vccz L_polldone%d" % which)
        e("s_sub_u32 s60, s60, 1"); e("s_cbranch_scc1 L_polldone%d" % which)
        e("s_sleep 2")
        e("s_branch L_poll%d" % which)
        e("L_polldone%d:" % which)
        e("s_mov_b64 exec, -1")

    def early_poll_issue(self, which, dst, ndummy):
        p = self.p
        u = ["v_and_b32 v45, 15, v0", "v_lshlrev_b32 v45, 2, v45", lambda: p.group("PL%d" % which),
             Ins("global_load_dword v%d, v45, s[68:69] offset:%d sc1" % (dst, 128 * which), "PL%d" % which)]
        for k in range(ndummy):
            u.append(Ins("buffer_load_dword v%d, v%d, %s, s%d offen" % (192 + 8 * which + k, vStO, srd(SRD_P), s_oob), "DUM"))
        return u

    def early_poll_check(self, which, dst):
        e = self.p.e
        e("v_cmp_ne_u32 vcc, s%d, v%d" % (s_nonce, dst))
        e("s_nop 4")
        e("s_cbranch_vccz L_ep%d" % which)
        self.poll(which)
        e("L_ep%d:" % which)

    def unit(self, su, tagname, after_loads=None, before_stores=None):
        cfg, p, e = self.cfg, self.p, self.p.e
        SG = 64
        e("s_mul_hi_u32 s5, s%d, %d" % (su, (1 << 32) // 12 + 1)); e("s_mul_i32 s6, s5, 12"); e("s_sub_u32 s6, s%d, s6" % su)
        e("s_add_u32 s5, s5, s%d" % s_ng); e("s_cmp_ge_u32 s5, 7"); e("s_cselect_b32 s7, 7, 0"); e("s_sub_u32 s5, s5, s7")
        e("s_mul_i32 s72, s5, 12"); e("s_add_u32 s72, s72, s6"); e("s_lshl_b32 s72, s72, 10")
        e("s_mul_hi_u32 s7, s6, %d" % ((1 << 32) // 3 + 1)); e("s_mul_i32 s76, s7, 3"); e("s_sub_u32 s76, s6, s76")
        e("s_lshl_b32 s5, s5, 7"); e("s_lshl_b32 s7, s7, 5"); e("s_mul_i32 s76, s76, %d" % (32 * 1792))
        e("s_add_u32 s5, s5, s7"); e("s_add_u32 s5, s5, s76"); e("s_add_u32 s73, s5, s70")
        e("s_cmp_ge_u32 s%d, 84" % su)
        e("s_cselect_b32 s72, 0x40000000, s72"); e("s_cselect_b32 s73, 0x40000000, s73")
        for h in range(16):
            e("s_add_u32 s5, s72, %d" % (h * PART))
            p.raw(Ins("buffer_load_dwordx4 %s, v%d, %s, s5 offen %s" % (vr(64 + 4 * h, 4), vStO, srd(SG), cfg.aux_rd), tagname))
        if after_loads: self.emit(after_loads)
        acc = list(range(48, 56))
        for a in acc: e("v_mov_b32 v%d, 0" % a)
        for h in range(16):
            b = 64 + 4 * h
            for q in range(4):
                e("v_dot2c_f32_bf16 v%d, s74, v%d" % (acc[2 * q], b + q)); e("v_dot2c_f32_bf16 v%d, s75, v%d" % (acc[2 * q + 1], b + q))
        for q in range(4): e("v_cvt_pk_bf16_f32 v%d, v%d, v%d" % (56 + q, acc[2 * q], acc[2 * q + 1]))
        if before_stores: before_stores()
        e("buffer_store_dwordx2 v[56:57], v41, %s, s73 offen %s" % (srd(SRD_OUT), cfg.aux_out))
        e("s_add_u32 s5, s73, %d" % (16 * 1792))
        e("buffer_store_dwordx2 v[58:59], v41, %s, s5 offen %s" % (srd(SRD_OUT), cfg.aux_out))

    def reduce_tail(self):
        cfg, p, e = self.cfg, self.p, self.p.e
        SG = 64
        e("s_mul_i32 s4, s%d, %d" % (s_G, PART * 16))
        if cfg.part_off: e("s_add_u32 s4, s4, %d" % cfg.part_off)
        e("s_add_u32 s%d, s58, s4" % SG); e("s_addc_u32 s%d, s59, 0" % (SG + 1)); e("s_mov_b32 s%d, %d" % (SG + 2, PART * 16)); e("s_mov_b32 s%d, 0x20000" % (SG + 3))
        e("s_mul_i32 s70, s%d, %d" % (s_b, 96 * 1792)); e("s_mul_i32 s4, s%d, 896" % s_br); e("s_add_u32 s70, s70, s4")
        e("v_and_b32 v41, 15, v0"); e("v_mul_u32_u24 v41, 1792, v41"); e("v_lshrrev_b32 v42, 4, v0"); e("v_lshlrev_b32 v42, 3, v42"); e("v_add_u32 v41, v41, v42")
        e("s_mov_b32 s74, 0x3f80"); e("s_mov_b32 s75, 0x3f800000")
        e("s_lshl_b32 s61, s%d, 2" % s_h); e("s_add_u32 s61, s61, s%d" % s_w)
        e("s_cmp_ge_u32 s61, 60"); e("s_cselect_b32 s61, 127, s61")
        e("s_lshl_b32 s62, s%d, 4" % s_w); e("s_add_u32 s62, s62, s%d" % s_h); e("s_add_u32 s62, s62, 60")
        if cfg.epoll:
            e("s_waitcnt vmcnt(0)")
            self.early_poll_check(0, 46)
            e("s_barrier")
            self.emit(self.stamp())
            self.emit(self.flag_store(1))
            self.unit(61, "RD1", after_loads=self.early_poll_issue(1, 60, 0), before_stores=lambda: self.early_poll_check(1, 60))
            self.emit(self.stamp())
        else:
            e("s_cmp_eq_u32 s%d, 3" % s_w); e("s_cbranch_scc0 L_np1")
            self.poll(0)
            e("L_np1:")
            e("s_waitcnt vmcnt(0)")
            e("s_barrier")
            self.emit(self.stamp())
            self.emit(self.flag_store(1))
            self.unit(61, "RD1")
            e("s_cmp_eq_u32 s%d, 3" % s_w); e("s_cbranch_scc0 L_np2")
            self.poll(1)
            e("L_np2:")
            e("s_barrier")
            self.emit(self.stamp())
        e("s_cmp_ge_u32 s%d, 2" % s_w); e("s_cbranch_scc1 L_fin")
        self.unit(62, "RD2")
        e("L_fin:")
        if cfg.stamps or cfg.dbg:
            e("s_waitcnt vmcnt(0)")
            self.emit(self.stamp())

def desc(name, vg, acc, sg=102):
    return """.amdhsa_kernel %s
  .amdhsa_next_free_vgpr %d
  .amdhsa_next_free_sgpr %d
  .amdhsa_accum_offset %d
  .amdhsa_group_segment_fixed_size 0
  .amdhsa_kernarg_size 104
  .amdhsa_user_sgpr_count 2
  .amdhsa_user_sgpr_kernarg_segment_ptr 1
  .amdhsa_system_sgpr_workgroup_id_x 1
  .amdhsa_float_denorm_mode_32 3
.end_amdhsa_kernel
""" % (name, vg, sg, acc)

REF = "concat_heads__gqa_block_cached__mha_block_cached__near_ridge.s.ref"
HEAD = open(REF).read().split("; Override launch geometry")[0] if os.path.exists(REF) else ""

DOC = """;
"""

def generate(cfg):
    k1 = K1(cfg).build()
    out = HEAD
    out += "; @launch grid=(256,1,1) block=(256,1,1) lds=163840\n"
    out += DOC
    out += '.amdgcn_target "amdgcn-amd-amdhsa--gfx950"\n.text\n'
    out += ".globl %s\n.p2align 8\n.type %s,@function\n%s:\n%s\n" % (KNAME, KNAME, KNAME, k1)
    out += '.section .rodata,"a"\n.p2align 6\n' + desc(KNAME, 512, 256)
    return out

if __name__ == "__main__":
    kw = {}
    for a in sys.argv[2:]:
        k, v = a.split("=", 1)
        kw[k] = eval(v)
    txt = generate(Cfg(**kw))
    open(sys.argv[1], "w").write(txt)
    print("wrote", sys.argv[1], len(txt), "bytes,", txt.count("\n"), "lines")
```
